```python
import torch

def _softmax(x, axis=-1):
    return torch.softmax(x, dim=axis)
def _gelu(x):
    return torch.nn.functional.gelu(x, approximate="tanh")
def _silu(x):
    return torch.nn.functional.silu(x)
def _sigmoid(x):
    return torch.sigmoid(x)
def _layernorm(x, axis=-1, eps=1e-5):
    m = x.mean(dim=axis, keepdim=True)
    v = x.var(dim=axis, keepdim=True, unbiased=False)
    return (x - m) / torch.sqrt(v + eps)
def _scatter_add(tgt, idx, src, axis=0):
    return tgt.clone().index_add_(axis, idx, src)
def _segment_sum(src, seg, n):
    out = torch.zeros((n,) + src.shape[1:], dtype=src.dtype)
    return out.index_add_(0, seg, src)
def _pad(x, pw):
    flat = tuple(v for pair in reversed(pw) for v in pair)
    return torch.nn.functional.pad(x, flat)

kernel_name = 'standalone__mha_softmax__near_ridge'

def setup_inputs():

    _w = (lambda a: (lambda t: t.to(torch.bfloat16) if t.is_floating_point() else t)(torch.as_tensor(a)))
    B, H, Sq, Sk, D = 16, 32, 384, 1024, 128
    return {
        "q": _w((lambda *s: torch.randn(*s, dtype=torch.bfloat16) * 0.8)(B, H, Sq, D)),
        "k": _w((lambda *s: torch.randn(*s, dtype=torch.bfloat16) * 0.8)(B, H, Sk, D)),
        "v": _w((lambda *s: torch.randn(*s, dtype=torch.bfloat16) * 0.05)(B, H, Sk, D)),
    }

def reference(q, k, v):
    scale = q.shape[-1] ** -0.5
    scores = torch.einsum("bhqd,bhkd->bhqk", q, k) * scale
    p = _softmax(scores, axis=-1)
    return torch.einsum("bhqk,bhkd->bhqd", p, v)
```

```python
import re

def R(kind, n, cnt=1):
    return [(kind, n + i) for i in range(cnt)]
def rs(kind, n, cnt=1):
    return f"{kind}{n}" if cnt == 1 else f"{kind}[{n}:{n+cnt-1}]"

class Reg:
    def __init__(self, kind, n, cnt=1):
        self.kind, self.n, self.cnt = kind, n, cnt
    def __str__(self): return rs(self.kind, self.n, self.cnt)
    def regs(self): return R(self.kind, self.n, self.cnt)
    def __getitem__(self, i):
        if isinstance(i, slice):
            a = i.start or 0; b = i.stop if i.stop is not None else self.cnt
            return Reg(self.kind, self.n + a, b - a)
        assert 0 <= i < self.cnt
        return Reg(self.kind, self.n + i, 1)
def V(n, c=1): return Reg('v', n, c)
def A(n, c=1): return Reg('a', n, c)
def S(n, c=1): return Reg('s', n, c)

def regs_of(x):
    if isinstance(x, Reg): return x.regs()
    if isinstance(x, str) and x in ('vcc', 'm0', 'exec', 'scc'): return [('x', x)]
    return []

class Inst:
    def __init__(self, text, kind, rd=(), wr=(), srcc=(), ab=(), tag=None, wait=None, cost=4, passes=0):
        self.text, self.kind = text, kind
        self.rd, self.wr, self.srcc, self.ab = list(rd), list(wr), list(srcc), list(ab)
        self.tag, self.wait, self.cost, self.passes = tag, wait, cost, passes
        self.pre_nop = 0
        self.waitN = None
    def render(self):
        out = ""
        n = self.pre_nop
        while n > 0:
            k = min(n, 16); out += f"  s_nop {k-1}\n"; n -= k
        if self.kind == 'waitv':
            N = 0 if self.waitN is None else min(self.waitN, 63)
            return out + f"  s_waitcnt vmcnt({N})\n"
        if self.kind == 'waitl':
            N = 0 if self.waitN is None else min(self.waitN, 15)
            return out + f"  s_waitcnt lgkmcnt({N})\n"
        if self.kind == 'label': return out + f"{self.text}:\n"
        if self.kind == 'raw': return out + self.text + "\n"
        return out + f"  {self.text}\n"

def _fmt(x): return str(x)

def valu(op, dst, *src, extra="", trans=False, rmw=False, wr_extra=(), rd_extra=()):
    rd = []
    for s in src: rd += regs_of(s)
    wr = regs_of(dst)
    if rmw: rd += wr
    rd += [r for x in rd_extra for r in regs_of(x)]
    wr2 = wr + [r for x in wr_extra for r in regs_of(x)]
    t = f"{op} {_fmt(dst)}, " + ", ".join(_fmt(s) for s in src) + (" " + extra if extra else "")
    return Inst(t, 'trans' if trans else 'valu', rd, wr2, cost=8 if trans else 4)
def permswap(op, a, b):
    i = Inst(f"{op} {a}, {b}", 'valu', regs_of(a) + regs_of(b), regs_of(a) + regs_of(b)); i.perm = True; return i
def salu(op, dst, *src, scc_w=True, scc_r=False):
    rd = []
    for s in src: rd += regs_of(s)
    wr = regs_of(dst) if dst is not None else []
    if scc_w: wr = wr + [('x', 'scc')]
    if scc_r: rd = rd + [('x', 'scc')]
    ops = ([_fmt(dst)] if dst is not None else []) + [_fmt(s) for s in src]
    return Inst(f"{op} " + ", ".join(ops), 'salu', rd, wr)
def mfma16(d, a, b, c):
    srcc = regs_of(c)
    return Inst(f"v_mfma_f32_16x16x32_bf16 {d}, {a}, {b}, {c}", 'mfma', regs_of(a) + regs_of(b) + srcc, regs_of(d),
                srcc=srcc, ab=regs_of(a) + regs_of(b), cost=8, passes=4)
def ds_read(op, dst, addr, off, tag=None):
    return Inst(f"{op} {dst}, {addr} offset:{off}", 'ds_read', regs_of(addr), regs_of(dst), tag=tag)
def ds_write(op, addr, data, off):
    return Inst(f"{op} {addr}, {data} offset:{off}", 'ds_write', regs_of(addr) + regs_of(data), [])
def buf_load(op, dst, voff, srd, soff, off, tag=None, flags=""):
    return Inst(f"{op} {dst}, {voff}, {srd}, {soff} offen offset:{off}{flags}", 'vmem_load',
                regs_of(voff) + regs_of(srd) + regs_of(soff), regs_of(dst), tag=tag)
def buf_store(op, data, voff, srd, soff, off, flags=""):
    i = Inst(f"{op} {data}, {voff}, {srd}, {soff} offen offset:{off}{flags}", 'vmem_store',
                regs_of(voff) + regs_of(srd) + regs_of(soff) + regs_of(data), []); i.sdata = regs_of(data); return i
def dma(voff, srd, soff, off, tag, flags="", cost=8):
    return Inst(f"buffer_load_dwordx4 {voff}, {srd}, {soff} offen offset:{off}{flags} lds", 'dma',
                regs_of(voff) + regs_of(srd) + regs_of(soff) + [('x', 'm0')], [], tag=tag, cost=cost)
def waitv(*tags): return Inst("", 'waitv', wait=list(tags))
def waitl(*regs):
    w = []
    for r in regs: w += regs_of(r)
    return Inst("", 'waitl', wait=w)
def barrier(): return Inst("s_barrier", 'barrier')
def label(n): return Inst(n, 'label', cost=0)
def branch(op, target):
    rd = [('x', 'scc')] if 'scc' in op else ([('x', 'vcc')] if 'vcc' in op else [])
    return Inst(f"{op} {target}", 'branch', rd)
def raw(t, kind='raw', rd=(), wr=()):
    return Inst(t if kind == 'raw' else t, kind, [r for x in rd for r in regs_of(x)], [r for x in wr for r in regs_of(x)])
def nop(n): return Inst(f"s_nop {n}", 'nop')

def slots(i):
    if i.kind in ('label',): return 0
    if i.kind == 'nop': return int(i.text.split()[1]) + 1
    return 1

def resolve_waits(trace):
    vq = []
    lq = []
    for i in trace:
        if i.kind in ('vmem_load', 'vmem_store', 'dma'): vq.append(i)
        elif i.kind in ('ds_read', 'ds_write'): lq.append(i)
        elif i.kind == 'waitv':
            if not i.wait: n = 0
            else:
                last = -1
                for k in range(len(vq) - 1, -1, -1):
                    if vq[k].tag in i.wait: last = k; break
                assert last >= 0, f"waitv: no op with tag {i.wait}"
                n = len(vq) - 1 - last
            i.waitN = n if i.waitN is None else min(i.waitN, n)
        elif i.kind == 'waitl':
            if not i.wait: n = 0
            else:
                last = -1; ws = set(i.wait)
                for k in range(len(lq) - 1, -1, -1):
                    if ws & set(lq[k].wr): last = k; break
                assert last >= 0, f"waitl: no ds op writing {i.wait[:4]}"
                n = len(lq) - 1 - last
            i.waitN = n if i.waitN is None else min(i.waitN, n)

def check_trace(trace, fix=True, verbose=False):
    nprob = 0
    pos = 0
    lastw = {}
    lastc = {}
    laststore = {}
    pend_v = []
    pend_l = []
    def need(i, have, req, why):
        nonlocal nprob
        if have < req:
            nprob += 1
            if verbose or not fix: print(f"HAZARD {why}: have {have} need {req} at '{i.render().strip()}'")
            if fix: i.pre_nop += (req - have)
    for i in trace:
        pos += i.pre_nop
        if i.kind == 'label': continue
        add = 0
        before = i.pre_nop
        touched = set(i.rd) | set(i.wr)
        for q, nm in ((pend_v, 'vmem'), (pend_l, 'lds')):
            for o in q:
                if set(o.wr) & touched:
                    print(f"ERROR: '{i.render().strip()}' touches regs of outstanding {nm} op '{o.render().strip()}'"); nprob += 1000
        for r in i.rd:
            if r in lastw:
                p, w = lastw[r]; have = pos - p + (i.pre_nop - before)
                if w.kind == 'mfma':
                    if i.kind == 'mfma':
                        if r in i.ab: need(i, have, 8, 'mfma D->AB')
                        elif r in i.srcc:
                            if set(i.srcc) == set(w.wr): pass
                            else: need(i, have, 6, 'mfma D->C overlap')
                    elif i.kind in ('valu', 'trans', 'ds_write', 'ds_read', 'vmem_store', 'vmem_load', 'dma'):
                        need(i, have, 8, 'mfma D->read')
                elif w.kind in ('valu', 'trans'):
                    if r[0] in 'va':
                        if i.kind == 'mfma': need(i, have, 2, 'valu->mfma')
                        if getattr(i, 'perm', False): need(i, have, 2, 'valu->permlane')
                        if w.kind == 'trans' and i.kind == 'valu': need(i, have, 1, 'trans->valu')
                        if 'readfirstlane' in i.text or 'readlane' in i.text: need(i, have, 1, 'valu->readlane')
                    else:
                        if i.kind in ('valu', 'trans'): need(i, have, 2, 'valu sgpr->valu')
                        if i.kind in ('vmem_load', 'vmem_store', 'dma'): need(i, have, 5, 'valu sgpr->vmem')
                        if i.kind in ('salu', 'branch'): need(i, have, 2, 'valu sgpr->salu(pad)')
                elif w.kind == 'salu':
                    if r == ('x', 'm0') and i.kind == 'dma': need(i, have, 1, 'm0->dma')
        for r in i.wr:
            if r in lastw:
                p, w = lastw[r]; have = pos - p + (i.pre_nop - before)
                if w.kind == 'mfma' and i.kind in ('valu', 'trans', 'ds_read', 'vmem_load'):
                    need(i, have, 8, 'mfma D->WAW')
                if w.kind == 'mfma' and i.kind == 'mfma' and not (set(i.srcc) == set(w.wr)) :
                    need(i, have, 6, 'mfma D->D WAW')
            if r in lastc and i.kind in ('valu', 'trans'):
                p, w = lastc[r]; have = pos - p + (i.pre_nop - before)
                need(i, have, 3, 'mfma C WAR')
            if r in laststore and i.kind != 'mfma':
                have = pos - laststore[r] + (i.pre_nop - before)
                need(i, have, 2, 'store data WAR')
        pos += (i.pre_nop - before)
        pos += slots(i)
        for r in i.wr: lastw[r] = (pos, i)
        if i.kind == 'mfma':
            for r in i.srcc: lastc[r] = (pos, i)
        if i.kind == 'vmem_store':
            for r in i.sdata: laststore[r] = pos
        if i.kind in ('vmem_load', 'vmem_store', 'dma'): pend_v.append(i)
        elif i.kind in ('ds_read', 'ds_write'): pend_l.append(i)
        elif i.kind == 'waitv':
            n = min(i.waitN or 0, 63); pend_v = pend_v[len(pend_v) - n:] if n else []
        elif i.kind == 'waitl':
            n = min(i.waitN or 0, 15); pend_l = pend_l[len(pend_l) - n:] if n else []
        elif i.kind == 'raw' and 's_waitcnt' in i.text:
            if 'vmcnt(0)' in i.text: pend_v = []
            if 'lgkmcnt(0)' in i.text: pend_l = []
    return nprob

def check_lds_protocol(trace):
    vq = []; lq = []
    state = {}
    ok = True
    for i in trace:
        if i.kind in ('vmem_load', 'vmem_store', 'dma'):
            ent = [i, None]
            if i.kind == 'dma' and i.tag and i.tag[0] == 't':
                key = i.tag[1:]
                st = state.setdefault(key, dict(gen=0, pieces=0, done=0, visible=False, rd_out=0, rd_unfenced=False))
                if i.piece == 0:
                    if st['rd_out'] or st['rd_unfenced']:
                        print(f"LDS WAR violation: DMA into {key} while reads not fenced"); ok = False
                    st.update(gen=st['gen'] + 1, pieces=0, done=0, visible=False)
                st['pieces'] += 1
                ent[1] = (key, st['gen'])
            vq.append(ent)
        elif i.kind in ('ds_read', 'ds_write'):
            ent = [i, None]
            if i.tag and i.tag[0] == 't':
                key = i.tag[1:]; st = state.get(key)
                if not st or not st['visible']:
                    print(f"LDS RAW violation: read of {key} not visible: {i.render().strip()}"); ok = False
                else:
                    st['rd_out'] += 1; ent[1] = key
            lq.append(ent)
        elif i.kind == 'waitv' or (i.kind == 'raw' and 'vmcnt(0)' in i.text):
            n = 0 if i.kind == 'raw' else min(i.waitN or 0, 63)
            done, vq = (vq[:len(vq) - n], vq[len(vq) - n:]) if n else (vq, [])
            for o, k in done:
                if k and state[k[0]]['gen'] == k[1]: state[k[0]]['done'] += 1
        if i.kind == 'waitl' or (i.kind == 'raw' and 'lgkmcnt(0)' in i.text):
            n = 0 if i.kind == 'raw' else min(i.waitN or 0, 15)
            done, lq = (lq[:len(lq) - n], lq[len(lq) - n:]) if n else (lq, [])
            for o, k in done:
                if k: state[k]['rd_out'] -= 1; state[k]['rd_unfenced'] = True
        if i.kind == 'barrier':
            for st in state.values():
                if st['pieces'] == 4 and st['done'] == 4: st['visible'] = True
                if st['rd_out'] == 0: st['rd_unfenced'] = False
    return ok
```

```python
import sys, math, struct
from asmlib import *

def f2u(f): return struct.unpack('<I', struct.pack('<f', f))[0]

class Cfg:
    dma_flags = ""
    q_flags = ""
    st_flags = ""
    dma_cost = 8
    thr = 2.0 ** 32
cfg = Cfg()
for a in sys.argv[2:]:
    k, v = a.split('=', 1)
    cur = getattr(cfg, k)
    setattr(cfg, k, type(cur)(v) if not isinstance(cur, str) else v.replace('_', ' '))

NWG = 256
QH = 98304
KH = 262144
Q_BYTES = 512 * QH
K_BYTES = 512 * KH
OOB = 0x10000000
LDS_RING = 131072
LDS_TOTAL = LDS_RING + 64
SCALE = (128 ** -0.5) * math.log2(math.e)

vTID = V(0)
aK = [V(1 + j) for j in range(4)]
aV = [V(5 + d) for d in range(8)]
dK = [V(13 + i) for i in range(4)]
dV = [V(17 + i) for i in range(2)]
vQo, vOo = V(19), V(20)
vX = V(21)
RL = V(22, 2)
T4 = [V(24, 4), V(28, 4)]
Sb = [V(32, 8), V(40, 8)]
Pb = [V(48, 4), V(52, 4)]
NEGM = [V(56 + 4 * q, 4) for q in range(6)]
Qf = [[V(80 + (q * 4 + j) * 4, 4) for j in range(4)] for q in range(6)]
def Oblk(q, db):
    if q < 4: return A((q * 8 + db) * 4, 4)
    return V(176 + ((q - 4) * 8 + db) * 4, 4)
X8 = V(240, 8)
Y8 = V(248, 8)
KF = [[A(128 + (kb * 4 + j) * 4, 4) for j in range(4)] for kb in range(2)]
VF = [A(160 + db * 4, 4) for db in range(8)]
Lb = [A(192 + 4 * q, 4) for q in range(6)]
ONES = A(216, 4)
S0 = [V(176, 8), V(184, 8), V(192, 8), V(200, 8), X8, Sb[1]]

srdQ, srdK, srdV, srdO = S(8, 4), S(12, 4), S(16, 4), S(20, 4)
sWG = S(2)
sW, sM0B, sHEAD, sNEXT, sDOFF, sNB, sPASS, sMODE, sFLAGS, sQO, sBIT, sTHR = [S(24 + i) for i in range(12)]
sARG = S(36, 8)
sC = S(44, 2)
sMASK, sFIRST, sT0, sT1, sIT = S(46), S(47), S(48), S(49), S(50)
M0 = 'm0'

def smov(d, x): return salu('s_mov_b32', d, x, scc_w=False)

def phase(pre, mf, fa, fb=(), fa_start=0):
    out = list(pre)
    fb = sorted(fb, key=lambda x: x[0])
    total = sum(i.cost for i in fa) + sum(i.cost for _, l in fb for i in l)
    ng = len(mf)
    budget = max(8, int(math.ceil(total / max(ng - fa_start, 1) / 4.0)) * 4)
    ia = 0
    fb = list(fb)
    for g, m in enumerate(mf):
        out.append(m)
        rem = budget
        while fb and fb[0][0] <= g:
            c = sum(i.cost for i in fb[0][1])
            if c <= rem or rem == budget:
                out += fb[0][1]; rem -= c; fb.pop(0)
            else: break
        while g >= fa_start and ia < len(fa) and fa[ia].cost <= rem:
            out.append(fa[ia]); rem -= fa[ia].cost; ia += 1
    for _, l in fb: out += l
    out += fa[ia:]
    return out

def qk_mfmas(q, Sdst, cinit):
    L = []
    for kb in range(2):
        d = Sdst[4 * kb:4 * kb + 4]
        for j in range(4):
            L.append(mfma16(d, KF[kb][j], Qf[q][j], (cinit if j == 0 else d)))
    return L
def pv_mfmas(q, P, first=False):
    L = [mfma16(Oblk(q, db), VF[db], P, 0 if first else Oblk(q, db)) for db in range(8)]
    L.append(mfma16(Lb[q], ONES, P, 0 if first else Lb[q]))
    return L
def sm_valu(Ssrc, P):
    e = [valu('v_exp_f32', Ssrc[i], Ssrc[i], trans=True) for i in range(8)]
    c = [valu('v_cvt_pk_bf16_f32', P[i], Ssrc[2 * i], Ssrc[2 * i + 1]) for i in range(4)]
    return [e[0], e[1], e[2], c[0], e[3], e[4], c[1], e[5], e[6], c[2], e[7], c[3]]
def k_read(kb, j, slot, sub):
    return ds_read('ds_read_b128', KF[kb][j], aK[j], slot * 16384 + sub * 8192 + kb * 4096, tag=('t', slot, 'K'))
def v_reads(db, slot, sub):
    return [ds_read('ds_read_b64_tr_b16', VF[db][2 * h:2 * h + 2], aV[db], slot * 16384 + sub * 8192 + h * 4096, tag=('t', slot, 'V'))
            for h in range(2)]
def dma_piece(part, slot, idx):
    if part == 'K': d = dma(dK[idx], srdK, sDOFF, idx * 1024, ('t', slot, 'K'), cfg.dma_flags, cfg.dma_cost)
    else: d = dma(dV[idx & 1], srdV, sDOFF, idx * 1024, ('t', slot, 'V'), cfg.dma_flags, cfg.dma_cost)
    d.piece = idx
    return d
def set_m0(part, slot):
    return salu('s_add_u32', M0, sM0B, (65536 if part == 'V' else 0) + slot * 16384)
ALLK = [KF[kb][j] for kb in range(2) for j in range(4)]

def q_loads():
    L = [salu('s_mul_i32', sQO, sHEADQ, QH, scc_w=False)]
    for q in range(6):
        for j in range(4):
            L.append(buf_load('buffer_load_dwordx4', Qf[q][j], vQo, srdQ, sQO, j * 64, tag=('q', q), flags=cfg.q_flags))
        if q < 5: L.append(salu('s_add_u32', sQO, sQO, 4096))
    return L
def q_scale():
    L = []
    for q in range(6):
        L.append(waitv(('q', q)))
        for j in range(4):
            x = Qf[q][j]; t = X8 if (j & 1) == 0 else Y8
            for i in range(4):
                L.append(valu('v_lshlrev_b32', t[2 * i], 16, x[i]))
                L.append(valu('v_and_b32', t[2 * i + 1], sMASK, x[i]))
            for i in range(4):
                L.append(valu('v_pk_mul_f32', t[2 * i:2 * i + 2], t[2 * i:2 * i + 2], sC))
            for i in range(4):
                L.append(valu('v_cvt_pk_bf16_f32', x[i], t[2 * i], t[2 * i + 1]))
    return L
def minit_reset():
    return [valu('v_mov_b32', NEGM[q][3], '0xff800000') for q in range(6)]

def max_valu(q):
    s = S0[q]; m = NEGM[q][3]; t = RL[q & 1]
    L = [valu('v_max3_f32', m, s[0], s[1], m), valu('v_max3_f32', m, s[2], s[3], m),
         valu('v_max3_f32', m, s[4], s[5], m), valu('v_max3_f32', m, s[6], s[7], m),
         valu('v_mov_b32', t, m), permswap('v_permlane32_swap_b32', t, m), valu('v_max_f32', m, t, m),
         valu('v_mov_b32', t, m), permswap('v_permlane16_swap_b32', t, m), valu('v_max_f32', t, t, m)]
    L += [valu('v_sub_f32', s[i], s[i], t) for i in range(8)]
    L += [valu('v_sub_f32', NEGM[q][i], 0, t) for i in range(4)]
    return L

blk = {}
E = []
E += [salu('s_cmp_ge_u32', None, sWG, NWG), branch('s_cbranch_scc1', 'L_exit')]
E += [raw(f"  s_load_dwordx8 {sARG}, s[0:1], 0", wr=[sARG])]
E += [valu('v_lshrrev_b32', vX, 6, vTID), valu('v_and_b32', vTID, 63, vTID)]
E += [Inst(f"v_readfirstlane_b32 {sW}, {vX}", 'valu', regs_of(vX), regs_of(sW))]
tA, tB, tC, tD = X8[0], X8[1], X8[2], X8[3]
tQ, tG = X8[4], X8[5]
E += [valu('v_and_b32', tQ, 15, vTID), valu('v_lshrrev_b32', tG, 4, vTID)]
E += [valu('v_xor_b32', tA, tG, tQ), valu('v_lshlrev_b32', tB, 8, tQ)]
for j in range(4):
    E += [valu('v_xor_b32', tC, 4 * j, tA), valu('v_lshl_add_u32', aK[j], tC, 4, tB)]
E += [valu('v_lshrrev_b32', tA, 2, vTID), valu('v_and_b32', tC, 7, tA), valu('v_lshlrev_b32', tA, 8, tA),
      valu('v_and_b32', tB, 3, vTID), valu('v_lshl_add_u32', tA, tB, 3, tA), valu('v_add_u32', tA, 65536, tA)]
for db in range(8):
    E += [valu('v_xor_b32', tB, db, tC), valu('v_lshl_add_u32', aV[db], tB, 5, tA)]
E += [salu('s_lshl_b32', sM0B, sW, 12)]
E += [valu('v_lshlrev_b32', tB, 8, tG), valu('v_add_u32', tB, sM0B, tB), valu('v_xor_b32', tA, tG, tQ)]
for i in range(4):
    E += [valu('v_xor_b32', tC, 4 * i, tA), valu('v_lshl_add_u32', dK[i], tC, 4, tB)]
E += [valu('v_lshlrev_b32', tA, 1, tG), valu('v_xor_b32', tA, tA, tQ)]
for i in range(2):
    E += [valu('v_xor_b32', tC, 8 * i, tA), valu('v_lshl_add_u32', dV[i], tC, 4, tB)]
E += [salu('s_mul_i32', sT0, sW, 96 * 256, scc_w=False)]
E += [valu('v_lshlrev_b32', tA, 8, tQ), valu('v_add_u32', tA, sT0, tA), valu('v_lshl_add_u32', vQo, tG, 4, tA),
      valu('v_and_b32', tB, 1, tG), valu('v_lshl_add_u32', tA, tB, 5, tA), valu('v_lshrrev_b32', tB, 1, tG),
      valu('v_lshl_add_u32', vOo, tB, 4, tA)]
E += [valu('v_mov_b32', tA, '0x3f803f80')]
E += [Inst(f"v_accvgpr_write_b32 {ONES[i]}, {tA}", 'valu', regs_of(tA), regs_of(ONES[i])) for i in range(4)]
E += [smov(sC[0], hex(f2u(SCALE))), smov(sC[1], hex(f2u(SCALE))), smov(sMASK, '0xffff0000'), smov(sTHR, hex(f2u(cfg.thr)))]
E += [smov(sHEAD, sWG), salu('s_add_u32', sNEXT, sWG, NWG), smov(sMODE, 0), smov(sFLAGS, 0), smov(sBIT, 1)]
E += minit_reset()
E += [raw("  s_waitcnt lgkmcnt(0)")]
for srd, k, nb in ((srdQ, 0, Q_BYTES), (srdK, 2, K_BYTES), (srdV, 4, K_BYTES), (srdO, 6, Q_BYTES)):
    E += [smov(srd[0], sARG[k]), salu('s_and_b32', srd[1], sARG[k + 1], '0xffff'), smov(srd[2], nb), smov(srd[3], '0x20000')]
blk['entry'] = E

B = [label('L_stream')]
sHEADQ = sHEAD
B += q_loads()
B += [salu('s_mul_i32', sDOFF, sHEAD, KH, scc_w=False)]
for t in range(3):
    B += [set_m0('K', t)] + [dma_piece('K', t, i) for i in range(4)]
    B += [set_m0('V', t)] + [dma_piece('V', t, i) for i in range(4)]
    B += [salu('s_add_u32', sDOFF, sDOFF, 16384)]
B += [set_m0('K', 3), dma_piece('K', 3, 0)]
B += [salu('s_mul_i32', sNB, sNEXT, KH, scc_w=False), salu('s_cmp_lt_u32', None, sNEXT, 512),
      salu('s_cselect_b32', sNB, sNB, OOB, scc_w=False, scc_r=True), smov(sFIRST, 1)]
blk['stream'] = B

H = [label('L_head')] + q_scale()
H += [salu('s_cmp_eq_u32', None, sFIRST, 0), branch('s_cbranch_scc1', 'L_hmain')]
blk['hscale'] = H
B0 = [waitv(('t', 0, 'V')), barrier()]
B0 += [k_read(kb, j, 0, 0) for kb in range(2) for j in range(4)]
for db in range(8): B0 += v_reads(db, 0, 0)
B0 += [smov(sFIRST, 0)]
blk['b0'] = B0

HM = [label('L_hmain'), smov(sPASS, 0)]
zero_init = [valu('v_mov_b32', Oblk(5, db)[i], 0) for db in range(8) for i in range(4)]
zero_init += [Inst(f"v_accvgpr_write_b32 {Lb[5][i]}, 0", 'valu', [], regs_of(Lb[5][i])) for i in range(4)]
for h in range(8):
    pre = []; mf = []; fa = []; fb = []
    if h == 0: pre = [waitl(*ALLK)]
    if h <= 5: mf += qk_mfmas(h, S0[h], 0)
    if h == 7:
        pre = [waitl(*ALLK)]
        mf += qk_mfmas(0, Sb[0], NEGM[0])
    if h == 3: pre = [waitl(*VF)]
    if 3 <= h <= 7: mf += pv_mfmas(h - 3, Pb[(h - 3) % 2], first=True)
    if h == 0: fa += zero_init
    if 2 <= h <= 7: fa += sm_valu(S0[h - 2], Pb[(h - 2) % 2])
    if 1 <= h <= 6: fa += max_valu(h - 1)
    if h == 5:
        for kb in range(2):
            for j in range(4): fb.append((kb * 4 + j, [k_read(kb, j, 0, 1)]))
    if h == 0: fb.append((1, [dma_piece('K', 3, 1)])); fb.append((5, [dma_piece('K', 3, 2)]))
    if h == 1: fb.append((0, [dma_piece('K', 3, 3)]))
    if h == 2: fb.append((1, [set_m0('V', 3), dma_piece('V', 3, 0)]))
    HM += phase(pre, mf, fa, fb, fa_start=(3 if h == 1 else 0))
HM += [branch('s_branch', 'L_body1')]
blk['hmain'] = HM

def body_phase(k, lp):
    sub, q = divmod(lp, 6)
    qn = (q + 1) % 6; qp = (q - 1) % 6
    pre = []; fb = []
    mf = qk_mfmas(qn, Sb[(q + 1) % 2], NEGM[qn]) + pv_mfmas(qp, Pb[(q - 1) % 2])
    fa = sm_valu(Sb[q % 2], Pb[q % 2])
    if q == 4:
        slot, s2 = (k, 1) if sub == 0 else ((k + 1) % 4, 0)
        if sub == 1: pre += [waitv(('t', slot, 'V')), barrier()]
        for kb in range(2):
            for j in range(4): fb.append((kb * 4 + j, [k_read(kb, j, slot, s2)]))
    if q == 5: pre += [waitl(*ALLK)]
    if q == 0:
        for db in range(8): fb.append((8 + db, v_reads(db, k, sub)))
    if q == 1: fb.append((7, [waitl(*VF)]))
    x3 = (k + 3) % 4
    if lp in (1, 2, 3): fb.append((2, [dma_piece('K', x3, lp)]))
    if lp == 5: fb.append((2, [set_m0('V', x3), dma_piece('V', x3, 0)]))
    if lp in (7, 8, 9): fb.append((2, [dma_piece('V', x3, lp - 6)]))
    if lp == 11:
        upd = [salu('s_add_u32', sDOFF, sDOFF, 16384)]
        if k == 0:
            upd += [salu('s_cmp_eq_u32', None, sPASS, 3), salu('s_cselect_b32', sDOFF, sNB, sDOFF, scc_w=False, scc_r=True)]
        fb.append((0, upd[:2]));
        if len(upd) > 2: fb.append((1, upd[2:]))
        fb.append((2, [set_m0('K', k), dma_piece('K', k, 0)]))
    return phase(pre, mf, fa, fb)

BA = [raw(".p2align 6"), label('L_body0')]
for lp in range(6): BA += body_phase(0, lp)
blk['body_a'] = BA
BB = [label('L_body1')]
for lp in range(6, 12): BB += body_phase(0, lp)
for k in range(1, 4):
    for lp in range(12): BB += body_phase(k, lp)
BB += [salu('s_add_u32', sPASS, sPASS, 1), salu('s_cmp_lt_u32', None, sPASS, 4), branch('s_cbranch_scc1', 'L_body0')]
blk['body_b'] = BB

D1 = [salu('s_cmp_ge_u32', None, sNEXT, 512), branch('s_cbranch_scc1', 'L_drain')]
blk['bnd_chk'] = D1
sHEADQ = sNEXT
blk['bnd_q'] = q_loads()
D = [label('L_drain')]
fb = [(db, v_reads(db, 0, 0)) for db in range(8)]
D += phase([], pv_mfmas(5, Pb[1]), [], fb)
D += [salu('s_mul_i32', sQO, sHEAD, QH, scc_w=False)]
ti = 0
for q in range(6):
    D += [Inst(f"v_accvgpr_read_b32 {RL[1]}, {Lb[q][0]}", 'valu', regs_of(Lb[q][0]), regs_of(RL[1]))]
    D += [valu('v_rcp_f32', RL[0], RL[1], trans=True)]
    if q == 0: D += [valu('v_mov_b32', vX, RL[1])]
    else: D += [valu('v_add_f32', vX, vX, RL[1])]
    for dp in range(4):
        if q < 4:
            t = X8 if dp % 2 == 0 else Y8
            for bi in range(2):
                o = Oblk(q, 2 * dp + bi)
                D += [Inst(f"v_accvgpr_read_b32 {t[4*bi+i]}, {o[i]}", 'valu', regs_of(o[i]), regs_of(t[4 * bi + i])) for i in range(4)]
        else:
            o = Oblk(q, 2 * dp); t = V(o.n, 8)
        for i in range(4):
            D += [valu('v_pk_mul_f32', t[2 * i:2 * i + 2], t[2 * i:2 * i + 2], RL, extra="op_sel_hi:[1,0]")]
        T = T4[ti % 2]; ti += 1
        for i in range(4): D += [valu('v_cvt_pk_bf16_f32', T[i], t[2 * i], t[2 * i + 1])]
        D += [permswap('v_permlane16_swap_b32', T[0], T[2]), permswap('v_permlane16_swap_b32', T[1], T[3])]
        D += [buf_store('buffer_store_dwordx4', T, vOo, srdO, sQO, dp * 64, flags=cfg.st_flags)]
    if q < 5: D += [salu('s_add_u32', sQO, sQO, 4096)]
D += [Inst(f"v_cmp_nge_f32 vcc, {sTHR}, {vX}", 'valu', regs_of(sTHR) + regs_of(vX), [('x', 'vcc')])]
D += [salu('s_cmp_lg_u64', None, 'vcc', 0), salu('s_cselect_b32', sT0, sBIT, 0, scc_w=False, scc_r=True),
      salu('s_or_b32', sFLAGS, sFLAGS, sT0)]
D += [salu('s_cmp_ge_u32', None, sNEXT, 512), branch('s_cbranch_scc1', 'L_end')]
blk['drain'] = D
N = [smov(sHEAD, sNEXT), smov(sNEXT, '0xffff'), smov(sNB, OOB), smov(sBIT, 2)] + minit_reset() + [branch('s_branch', 'L_head')]
blk['bnd_next'] = N

F = [label('L_end')]
F += [valu('v_mov_b32', tA, sFLAGS), salu('s_lshl_b32', sT0, sW, 2), salu('s_add_u32', sT0, sT0, LDS_RING),
      valu('v_mov_b32', tB, sT0), valu('v_mov_b32', tC, LDS_RING),
      ds_write('ds_write_b32', tB, tA, 0), raw("  s_waitcnt vmcnt(0) lgkmcnt(0)"), barrier(),
      ds_read('ds_read_b128', Y8[0:4], tC, 0), raw("  s_waitcnt lgkmcnt(0)"),
      valu('v_or_b32', tA, Y8[0], Y8[1]), valu('v_or3_b32', tA, tA, Y8[2], Y8[3]),
      Inst(f"v_readfirstlane_b32 {sFLAGS}, {tA}", 'valu', regs_of(tA), regs_of(sFLAGS)),
      salu('s_cmp_eq_u32', None, sFLAGS, 0), branch('s_cbranch_scc1', 'L_exit')]
blk['end'] = F
M = []
M += [salu('s_and_b32', sT0, sFLAGS, 1), salu('s_add_u32', sT1, sWG, NWG), salu('s_cmp_lg_u32', None, sT0, 0),
      salu('s_cselect_b32', sHEAD, sWG, sT1, scc_w=False, scc_r=True),
      salu('s_cselect_b32', sT0, 1, 2, scc_w=False, scc_r=True), salu('s_andn2_b32', sFLAGS, sFLAGS, sT0),
      smov(sMODE, 1), smov(sBIT, 0), smov(sNEXT, '0xffff')]
sHEADQ = sHEAD
M += q_loads() + q_scale() + minit_reset()
M += [valu('v_and_b32', tA, 15, vTID), valu('v_lshrrev_b32', tB, 4, vTID), valu('v_lshlrev_b32', tA, 8, tA),
      valu('v_lshl_add_u32', vX, tB, 4, tA)]
M += [salu('s_mul_i32', sT1, sHEAD, KH, scc_w=False), smov(sIT, 0)]
blk['max_pre'] = M
ML = [label('L_maxloop')]
ML += [buf_load('buffer_load_dwordx4', KF[0][j], vX, srdK, sT1, j * 64, tag=('mk',)) for j in range(4)]
ML += [waitv(('mk',))]
MS = [Sb[0][0:4], Sb[0][4:8], Sb[1][0:4], Sb[1][4:8], X8[0:4], X8[4:8]]
for q in range(6):
    for j in range(4): ML.append(mfma16(MS[q], KF[0][j], Qf[q][j], 0 if j == 0 else MS[q]))
for q in range(6):
    m = NEGM[q][3]
    ML += [valu('v_max3_f32', m, MS[q][0], MS[q][1], m), valu('v_max3_f32', m, MS[q][2], MS[q][3], m)]
ML += [salu('s_add_u32', sT1, sT1, 4096), salu('s_add_u32', sIT, sIT, 1), salu('s_cmp_lt_u32', None, sIT, 64),
       branch('s_cbranch_scc1', 'L_maxloop')]
blk['max_loop'] = ML
blk['max_post'] = [branch('s_branch', 'L_stream')]
blk['exit'] = [label('L_exit'), raw("  s_endpgm")]

def head_trace(first, has_next):
    t = blk['hscale'] + (blk['b0'] if first else []) + blk['hmain'] + blk['body_b']
    for _ in range(3): t += blk['body_a'] + blk['body_b']
    t += blk['bnd_chk'] + (blk['bnd_q'] if has_next else []) + blk['drain']
    t += blk['bnd_next'] if has_next else blk['end']
    return t
trace = blk['entry'] + blk['stream'] + head_trace(True, True) + head_trace(False, False)
for _ in range(2):
    trace += blk['max_pre'] + blk['max_loop'] * 3 + blk['max_post'] + blk['stream'] + head_trace(True, False)
trace += blk['exit']

resolve_waits(trace)
for it in range(10):
    n = check_trace(trace, fix=True, verbose=False)
    if n == 0: break
    if n >= 1000: sys.exit("pending-load errors")
assert check_trace(trace, fix=False) == 0
assert check_lds_protocol(trace)

order = ['entry', 'stream', 'hscale', 'b0', 'hmain', 'body_a', 'body_b', 'bnd_chk', 'bnd_q', 'drain', 'bnd_next', 'end',
         'max_pre', 'max_loop', 'max_post', 'exit']
NAME = "standalone__mha_softmax__near_ridge_kernel"
out = f"""; MHA forward (B16 H32 Sq384 Sk1024 D128, bf16) - generated by gen/gen.py (hand-written generator)
; @launch grid=({NWG},1,1) block=(256,1,1) lds={LDS_TOTAL}
.amdgcn_target "amdgcn-amd-amdhsa--gfx950"
.text
.globl {NAME}
.p2align 8
.type {NAME},@function
{NAME}:
"""
for b in order:
    out += f"; ---- {b}\n"
    for i in blk[b]: out += i.render()
out += f""".section .rodata,"a"
.p2align 6
.amdhsa_kernel {NAME}
  .amdhsa_next_free_vgpr 512
  .amdhsa_next_free_sgpr 64
  .amdhsa_accum_offset 256
  .amdhsa_group_segment_fixed_size 0
  .amdhsa_kernarg_size 48
  .amdhsa_user_sgpr_count 2
  .amdhsa_user_sgpr_kernarg_segment_ptr 1
  .amdhsa_system_sgpr_workgroup_id_x 1
.end_amdhsa_kernel
"""
open(sys.argv[1], 'w').write(out)
nn = sum(i.pre_nop for b in ('body_a', 'body_b') for i in blk[b])
print("emitted", sys.argv[1], "insts:", {b: len(blk[b]) for b in order}, "body nops:", nn)
```

```python
import sys, math, struct
from asmlib import *

def f2u(f): return struct.unpack('<I', struct.pack('<f', f))[0]

class Cfg:
    dma_flags = ""
    q_flags = ""
    st_flags = ""
    dma_cost = 8
    thr = 2.0 ** 32
    stamps = 0
cfg = Cfg()
for a in sys.argv[2:]:
    k, v = a.split('=', 1)
    cur = getattr(cfg, k)
    setattr(cfg, k, type(cur)(v) if not isinstance(cur, str) else v.replace('_', ' '))

NWG = 256
QH = 98304
KH = 262144
Q_BYTES = 512 * QH
K_BYTES = 512 * KH
OOB = 0x10000000
LDS_RING = 131072
LDS_TOTAL = LDS_RING + 64
SCALE = (128 ** -0.5) * math.log2(math.e)

vTID = V(0)
aK = [V(1 + j) for j in range(4)]
aV = [V(5 + d) for d in range(8)]
dK = [V(13 + i) for i in range(4)]
dV = [V(17 + i) for i in range(2)]
vQo, vOo = V(19), V(20)
vX = V(21)
RL = V(22, 2)
T4 = [V(24, 4), V(28, 4)]
Sb = [V(32, 8), V(40, 8)]
Pb = [V(48, 4), V(52, 4)]
NEGM = [V(56 + 4 * q, 4) for q in range(6)]
Qf = [[V(80 + (q * 4 + j) * 4, 4) for j in range(4)] for q in range(6)]
def Oblk(q, db):
    if q < 4: return A((q * 8 + db) * 4, 4)
    return V(176 + ((q - 4) * 8 + db) * 4, 4)
X8 = V(240, 8)
Y8 = V(248, 8)
KF = [[A(128 + (kb * 4 + j) * 4, 4) for j in range(4)] for kb in range(2)]
VF = [A(160 + db * 4, 4) for db in range(8)]
Lb = [A(192 + 4 * q, 4) for q in range(6)]
ONES = A(216, 4)
S0 = [V(176, 8), V(184, 8), V(192, 8), V(200, 8), X8, Sb[1]]

srdQ, srdK, srdV, srdO = S(8, 4), S(12, 4), S(16, 4), S(20, 4)
sWG = S(2)
sW, sM0B, sHEAD, sNEXT, sDOFF, sNB, sPASS, sMODE, sFLAGS, sQO, sBIT, sTHR = [S(24 + i) for i in range(12)]
sARG = S(36, 8)
sC = S(44, 2)
sMASK, sFIRST, sT0, sT1, sIT = S(46), S(47), S(48), S(49), S(50)
M0 = 'm0'

def smov(d, x): return salu('s_mov_b32', d, x, scc_w=False)
srdW = S(56, 4); sST = S(52, 2); sSTO = S(54); sST2 = S(60, 2)
def stamp():
    if not cfg.stamps: return []
    st = Inst(f"buffer_store_dwordx2 {T4[0][0:2]}, off, {srdW}, {sSTO}", 'vmem_store', regs_of(T4[0][0:2]) + regs_of(srdW) + regs_of(sSTO), [])
    st.sdata = regs_of(T4[0][0:2])
    return [raw(f"  s_memtime {sST}", wr=[sST]), raw(f"  s_memrealtime {sST2}", wr=[sST2]), raw("  s_waitcnt lgkmcnt(0)"),
            valu('v_mov_b32', T4[0][0], sST[0]), valu('v_mov_b32', T4[0][1], sST2[0]), st, salu('s_add_u32', sSTO, sSTO, 8)]

def phase(pre, mf, fa, fb=(), fa_start=0):
    out = list(pre)
    fb = sorted(fb, key=lambda x: x[0])
    total = sum(i.cost for i in fa) + sum(i.cost for _, l in fb for i in l)
    ng = len(mf)
    budget = max(8, int(math.ceil(total / max(ng - fa_start, 1) / 4.0)) * 4)
    ia = 0
    fb = list(fb)
    for g, m in enumerate(mf):
        out.append(m)
        rem = budget
        while fb and fb[0][0] <= g:
            c = sum(i.cost for i in fb[0][1])
            if c <= rem or rem == budget:
                out += fb[0][1]; rem -= c; fb.pop(0)
            else: break
        while g >= fa_start and ia < len(fa) and fa[ia].cost <= rem:
            out.append(fa[ia]); rem -= fa[ia].cost; ia += 1
    for _, l in fb: out += l
    out += fa[ia:]
    return out

def qk_mfmas(q, Sdst, cinit):
    L = []
    for kb in range(2):
        d = Sdst[4 * kb:4 * kb + 4]
        for j in range(4):
            L.append(mfma16(d, KF[kb][j], Qf[q][j], (cinit if j == 0 else d)))
    return L
def pv_mfmas(q, P, first=False):
    L = [mfma16(Oblk(q, db), VF[db], P, 0 if first else Oblk(q, db)) for db in range(8)]
    L.append(mfma16(Lb[q], ONES, P, 0 if first else Lb[q]))
    return L
def sm_valu(Ssrc, P):
    e = [valu('v_exp_f32', Ssrc[i], Ssrc[i], trans=True) for i in range(8)]
    c = [valu('v_cvt_pk_bf16_f32', P[i], Ssrc[2 * i], Ssrc[2 * i + 1]) for i in range(4)]
    return [e[0], e[1], e[2], c[0], e[3], e[4], c[1], e[5], e[6], c[2], e[7], c[3]]
def k_read(kb, j, slot, sub):
    return ds_read('ds_read_b128', KF[kb][j], aK[j], slot * 16384 + sub * 8192 + kb * 4096, tag=('t', slot, 'K'))
def v_reads(db, slot, sub):
    return [ds_read('ds_read_b64_tr_b16', VF[db][2 * h:2 * h + 2], aV[db], slot * 16384 + sub * 8192 + h * 4096, tag=('t', slot, 'V'))
            for h in range(2)]
def dma_piece(part, slot, idx):
    if part == 'K': d = dma(dK[idx], srdK, sDOFF, idx * 1024, ('t', slot, 'K'), cfg.dma_flags, cfg.dma_cost)
    else: d = dma(dV[idx & 1], srdV, sDOFF, idx * 1024, ('t', slot, 'V'), cfg.dma_flags, cfg.dma_cost)
    d.piece = idx
    return d
def set_m0(part, slot):
    return salu('s_add_u32', M0, sM0B, (65536 if part == 'V' else 0) + slot * 16384)
ALLK = [KF[kb][j] for kb in range(2) for j in range(4)]

def q_loads():
    L = [salu('s_mul_i32', sQO, sHEADQ, QH, scc_w=False)]
    for q in range(6):
        for j in range(4):
            L.append(buf_load('buffer_load_dwordx4', Qf[q][j], vQo, srdQ, sQO, j * 64, tag=('q', q), flags=cfg.q_flags))
        if q < 5: L.append(salu('s_add_u32', sQO, sQO, 4096))
    return L
def q_scale():
    L = []
    for q in range(6):
        L.append(waitv(('q', q)))
        for j in range(4):
            x = Qf[q][j]; t = X8 if (j & 1) == 0 else Y8
            for i in range(4):
                L.append(valu('v_lshlrev_b32', t[2 * i], 16, x[i]))
                L.append(valu('v_and_b32', t[2 * i + 1], sMASK, x[i]))
            for i in range(4):
                L.append(valu('v_pk_mul_f32', t[2 * i:2 * i + 2], t[2 * i:2 * i + 2], sC))
            for i in range(4):
                L.append(valu('v_cvt_pk_bf16_f32', x[i], t[2 * i], t[2 * i + 1]))
    return L
def minit_reset():
    return [valu('v_mov_b32', NEGM[q][3], '0xff800000') for q in range(6)]

def max_valu(q):
    s = S0[q]; m = NEGM[q][3]; t = RL[q & 1]
    L = [valu('v_max3_f32', m, s[0], s[1], m), valu('v_max3_f32', m, s[2], s[3], m),
         valu('v_max3_f32', m, s[4], s[5], m), valu('v_max3_f32', m, s[6], s[7], m),
         valu('v_mov_b32', t, m), permswap('v_permlane32_swap_b32', t, m), valu('v_max_f32', m, t, m),
         valu('v_mov_b32', t, m), permswap('v_permlane16_swap_b32', t, m), valu('v_max_f32', t, t, m)]
    L += [valu('v_sub_f32', s[i], s[i], t) for i in range(8)]
    L += [valu('v_sub_f32', NEGM[q][i], 0, t) for i in range(4)]
    return L

blk = {}
E = []
E += [salu('s_cmp_ge_u32', None, sWG, NWG), branch('s_cbranch_scc1', 'L_exit')]
E += [raw(f"  s_load_dwordx8 {sARG}, s[0:1], 0", wr=[sARG])]
E += [valu('v_lshrrev_b32', vX, 6, vTID), valu('v_and_b32', vTID, 63, vTID)]
E += [Inst(f"v_readfirstlane_b32 {sW}, {vX}", 'valu', regs_of(vX), regs_of(sW))]
tA, tB, tC, tD = X8[0], X8[1], X8[2], X8[3]
tQ, tG = X8[4], X8[5]
E += [valu('v_and_b32', tQ, 15, vTID), valu('v_lshrrev_b32', tG, 4, vTID)]
E += [valu('v_xor_b32', tA, tG, tQ), valu('v_lshlrev_b32', tB, 8, tQ)]
for j in range(4):
    E += [valu('v_xor_b32', tC, 4 * j, tA), valu('v_lshl_add_u32', aK[j], tC, 4, tB)]
E += [valu('v_lshrrev_b32', tA, 2, vTID), valu('v_and_b32', tC, 7, tA), valu('v_lshlrev_b32', tA, 8, tA),
      valu('v_and_b32', tB, 3, vTID), valu('v_lshl_add_u32', tA, tB, 3, tA), valu('v_add_u32', tA, 65536, tA)]
for db in range(8):
    E += [valu('v_xor_b32', tB, db, tC), valu('v_lshl_add_u32', aV[db], tB, 5, tA)]
E += [salu('s_lshl_b32', sM0B, sW, 12)]
E += [valu('v_lshlrev_b32', tB, 8, tG), valu('v_add_u32', tB, sM0B, tB), valu('v_xor_b32', tA, tG, tQ)]
for i in range(4):
    E += [valu('v_xor_b32', tC, 4 * i, tA), valu('v_lshl_add_u32', dK[i], tC, 4, tB)]
E += [valu('v_lshlrev_b32', tA, 1, tG), valu('v_xor_b32', tA, tA, tQ)]
for i in range(2):
    E += [valu('v_xor_b32', tC, 8 * i, tA), valu('v_lshl_add_u32', dV[i], tC, 4, tB)]
E += [salu('s_mul_i32', sT0, sW, 96 * 256, scc_w=False)]
E += [valu('v_lshlrev_b32', tA, 8, tQ), valu('v_add_u32', tA, sT0, tA), valu('v_lshl_add_u32', vQo, tG, 4, tA),
      valu('v_and_b32', tB, 1, tG), valu('v_lshl_add_u32', tA, tB, 5, tA), valu('v_lshrrev_b32', tB, 1, tG),
      valu('v_lshl_add_u32', vOo, tB, 4, tA)]
E += [valu('v_mov_b32', tA, '0x3f803f80')]
E += [Inst(f"v_accvgpr_write_b32 {ONES[i]}, {tA}", 'valu', regs_of(tA), regs_of(ONES[i])) for i in range(4)]
E += [smov(sC[0], hex(f2u(SCALE))), smov(sC[1], hex(f2u(SCALE))), smov(sMASK, '0xffff0000'), smov(sTHR, hex(f2u(cfg.thr)))]
E += [smov(sHEAD, sWG), salu('s_add_u32', sNEXT, sWG, NWG), smov(sMODE, 0), smov(sFLAGS, 0), smov(sBIT, 1)]
E += minit_reset()
E += [raw("  s_waitcnt lgkmcnt(0)")]
for srd, k, nb in ((srdQ, 0, Q_BYTES), (srdK, 2, K_BYTES), (srdV, 4, K_BYTES), (srdO, 6, Q_BYTES)):
    E += [smov(srd[0], sARG[k]), salu('s_and_b32', srd[1], sARG[k + 1], '0xffff'), smov(srd[2], nb), smov(srd[3], '0x20000')]
if cfg.stamps:
    E += [raw(f"  s_load_dwordx2 {srdW[0:2]}, s[0:1], 40", wr=[srdW[0:2]]), raw("  s_waitcnt lgkmcnt(0)"),
          salu('s_and_b32', srdW[1], srdW[1], '0xffff'), smov(srdW[2], 1 << 20), smov(srdW[3], '0x20000'),
          salu('s_lshl_b32', sSTO, sWG, 2), salu('s_add_u32', sSTO, sSTO, sW), salu('s_lshl_b32', sSTO, sSTO, 9)]
    E += stamp()
blk['entry'] = E

B = [label('L_stream')]
sHEADQ = sHEAD
B += q_loads()
B += [salu('s_mul_i32', sDOFF, sHEAD, KH, scc_w=False)]
for t in range(3):
    B += [set_m0('K', t)] + [dma_piece('K', t, i) for i in range(4)]
    B += [set_m0('V', t)] + [dma_piece('V', t, i) for i in range(4)]
    B += [salu('s_add_u32', sDOFF, sDOFF, 16384)]
B += [set_m0('K', 3), dma_piece('K', 3, 0)]
B += [salu('s_mul_i32', sNB, sNEXT, KH, scc_w=False), salu('s_cmp_lt_u32', None, sNEXT, 512),
      salu('s_cselect_b32', sNB, sNB, OOB, scc_w=False, scc_r=True), smov(sFIRST, 1)]
blk['stream'] = B

H = [label('L_head')] + stamp() + q_scale() + stamp()
H += [salu('s_cmp_eq_u32', None, sFIRST, 0), branch('s_cbranch_scc1', 'L_hmain')]
blk['hscale'] = H
B0 = [waitv(('t', 0, 'V')), barrier()]
B0 += [k_read(kb, j, 0, 0) for kb in range(2) for j in range(4)]
for db in range(8): B0 += v_reads(db, 0, 0)
B0 += [smov(sFIRST, 0)]
blk['b0'] = B0

HM = [label('L_hmain'), smov(sPASS, 0)] + stamp()
zero_init = [valu('v_mov_b32', Oblk(5, db)[i], 0) for db in range(8) for i in range(4)]
zero_init += [Inst(f"v_accvgpr_write_b32 {Lb[5][i]}, 0", 'valu', [], regs_of(Lb[5][i])) for i in range(4)]
for h in range(8):
    pre = []; mf = []; fa = []; fb = []
    if h == 0: pre = [waitl(*ALLK)]
    if h <= 5: mf += qk_mfmas(h, S0[h], 0)
    if h == 7:
        pre = [waitl(*ALLK)]
        mf += qk_mfmas(0, Sb[0], NEGM[0])
    if h == 3: pre = [waitl(*VF)]
    if 3 <= h <= 7: mf += pv_mfmas(h - 3, Pb[(h - 3) % 2], first=True)
    if h == 0: fa += zero_init
    if 2 <= h <= 7: fa += sm_valu(S0[h - 2], Pb[(h - 2) % 2])
    if 1 <= h <= 6: fa += max_valu(h - 1)
    if h == 5:
        for kb in range(2):
            for j in range(4): fb.append((kb * 4 + j, [k_read(kb, j, 0, 1)]))
    if h == 0: fb.append((1, [dma_piece('K', 3, 1)])); fb.append((5, [dma_piece('K', 3, 2)]))
    if h == 1: fb.append((0, [dma_piece('K', 3, 3)]))
    if h == 2: fb.append((1, [set_m0('V', 3), dma_piece('V', 3, 0)]))
    HM += phase(pre, mf, fa, fb, fa_start=(3 if h == 1 else 0))
HM += stamp() + [branch('s_branch', 'L_body1')]
blk['hmain'] = HM

def body_phase(k, lp):
    sub, q = divmod(lp, 6)
    qn = (q + 1) % 6; qp = (q - 1) % 6
    pre = []; fb = []
    mf = qk_mfmas(qn, Sb[(q + 1) % 2], NEGM[qn]) + pv_mfmas(qp, Pb[(q - 1) % 2])
    fa = sm_valu(Sb[q % 2], Pb[q % 2])
    if q == 4:
        slot, s2 = (k, 1) if sub == 0 else ((k + 1) % 4, 0)
        if sub == 1: pre += [waitv(('t', slot, 'V')), barrier()]
        for kb in range(2):
            for j in range(4): fb.append((kb * 4 + j, [k_read(kb, j, slot, s2)]))
    if q == 5: pre += [waitl(*ALLK)]
    if q == 0:
        for db in range(8): fb.append((8 + db, v_reads(db, k, sub)))
    if q == 1: fb.append((7, [waitl(*VF)]))
    x3 = (k + 3) % 4
    if lp in (1, 2, 3): fb.append((2, [dma_piece('K', x3, lp)]))
    if lp == 5: fb.append((2, [set_m0('V', x3), dma_piece('V', x3, 0)]))
    if lp in (7, 8, 9): fb.append((2, [dma_piece('V', x3, lp - 6)]))
    if lp == 11:
        upd = [salu('s_add_u32', sDOFF, sDOFF, 16384)]
        if k == 0:
            upd += [salu('s_cmp_eq_u32', None, sPASS, 3), salu('s_cselect_b32', sDOFF, sNB, sDOFF, scc_w=False, scc_r=True)]
        fb.append((0, upd[:2]));
        if len(upd) > 2: fb.append((1, upd[2:]))
        fb.append((2, [set_m0('K', k), dma_piece('K', k, 0)]))
    return phase(pre, mf, fa, fb)

BA = [raw(".p2align 6"), label('L_body0')]
for lp in range(6): BA += body_phase(0, lp)
blk['body_a'] = BA
BB = [label('L_body1')]
for lp in range(6, 12): BB += body_phase(0, lp)
for k in range(1, 4):
    for lp in range(12): BB += body_phase(k, lp)
BB += stamp() + [salu('s_add_u32', sPASS, sPASS, 1), salu('s_cmp_lt_u32', None, sPASS, 4), branch('s_cbranch_scc1', 'L_body0')]
blk['body_b'] = BB

D1 = [salu('s_cmp_ge_u32', None, sNEXT, 512), branch('s_cbranch_scc1', 'L_drain')]
blk['bnd_chk'] = D1
sHEADQ = sNEXT
blk['bnd_q'] = q_loads()
D = [label('L_drain')]
fb = [(db, v_reads(db, 0, 0)) for db in range(8)]
D += phase([], pv_mfmas(5, Pb[1]), [], fb)
D += [salu('s_mul_i32', sQO, sHEAD, QH, scc_w=False)]
ti = 0
for q in range(6):
    D += [Inst(f"v_accvgpr_read_b32 {RL[1]}, {Lb[q][0]}", 'valu', regs_of(Lb[q][0]), regs_of(RL[1]))]
    D += [valu('v_rcp_f32', RL[0], RL[1], trans=True)]
    if q == 0: D += [valu('v_mov_b32', vX, RL[1])]
    else: D += [valu('v_add_f32', vX, vX, RL[1])]
    for dp in range(4):
        if q < 4:
            t = X8 if dp % 2 == 0 else Y8
            for bi in range(2):
                o = Oblk(q, 2 * dp + bi)
                D += [Inst(f"v_accvgpr_read_b32 {t[4*bi+i]}, {o[i]}", 'valu', regs_of(o[i]), regs_of(t[4 * bi + i])) for i in range(4)]
        else:
            o = Oblk(q, 2 * dp); t = V(o.n, 8)
        for i in range(4):
            D += [valu('v_pk_mul_f32', t[2 * i:2 * i + 2], t[2 * i:2 * i + 2], RL, extra="op_sel_hi:[1,0]")]
        T = T4[ti % 2]; ti += 1
        for i in range(4): D += [valu('v_cvt_pk_bf16_f32', T[i], t[2 * i], t[2 * i + 1])]
        D += [permswap('v_permlane16_swap_b32', T[0], T[2]), permswap('v_permlane16_swap_b32', T[1], T[3])]
        D += [buf_store('buffer_store_dwordx4', T, vOo, srdO, sQO, dp * 64, flags=cfg.st_flags)]
    if q < 5: D += [salu('s_add_u32', sQO, sQO, 4096)]
D += stamp()
D += [Inst(f"v_cmp_nge_f32 vcc, {sTHR}, {vX}", 'valu', regs_of(sTHR) + regs_of(vX), [('x', 'vcc')])]
D += [salu('s_cmp_lg_u64', None, 'vcc', 0), salu('s_cselect_b32', sT0, sBIT, 0, scc_w=False, scc_r=True),
      salu('s_or_b32', sFLAGS, sFLAGS, sT0)]
D += [salu('s_cmp_ge_u32', None, sNEXT, 512), branch('s_cbranch_scc1', 'L_end')]
blk['drain'] = D
N = [smov(sHEAD, sNEXT), smov(sNEXT, '0xffff'), smov(sNB, OOB), smov(sBIT, 2)] + minit_reset() + [branch('s_branch', 'L_head')]
blk['bnd_next'] = N

F = [label('L_end')]
F += [valu('v_mov_b32', tA, sFLAGS), salu('s_lshl_b32', sT0, sW, 2), salu('s_add_u32', sT0, sT0, LDS_RING),
      valu('v_mov_b32', tB, sT0), valu('v_mov_b32', tC, LDS_RING),
      ds_write('ds_write_b32', tB, tA, 0), raw("  s_waitcnt vmcnt(0) lgkmcnt(0)"), barrier(),
      ds_read('ds_read_b128', Y8[0:4], tC, 0), raw("  s_waitcnt lgkmcnt(0)"),
      valu('v_or_b32', tA, Y8[0], Y8[1]), valu('v_or3_b32', tA, tA, Y8[2], Y8[3]),
      Inst(f"v_readfirstlane_b32 {sFLAGS}, {tA}", 'valu', regs_of(tA), regs_of(sFLAGS)),
      ] + stamp() + [salu('s_cmp_eq_u32', None, sFLAGS, 0), branch('s_cbranch_scc1', 'L_exit')]
blk['end'] = F
M = []
M += [salu('s_and_b32', sT0, sFLAGS, 1), salu('s_add_u32', sT1, sWG, NWG), salu('s_cmp_lg_u32', None, sT0, 0),
      salu('s_cselect_b32', sHEAD, sWG, sT1, scc_w=False, scc_r=True),
      salu('s_cselect_b32', sT0, 1, 2, scc_w=False, scc_r=True), salu('s_andn2_b32', sFLAGS, sFLAGS, sT0),
      smov(sMODE, 1), smov(sBIT, 0), smov(sNEXT, '0xffff')]
sHEADQ = sHEAD
M += q_loads() + q_scale() + minit_reset()
M += [valu('v_and_b32', tA, 15, vTID), valu('v_lshrrev_b32', tB, 4, vTID), valu('v_lshlrev_b32', tA, 8, tA),
      valu('v_lshl_add_u32', vX, tB, 4, tA)]
M += [salu('s_mul_i32', sT1, sHEAD, KH, scc_w=False), smov(sIT, 0)]
blk['max_pre'] = M
ML = [label('L_maxloop')]
ML += [buf_load('buffer_load_dwordx4', KF[0][j], vX, srdK, sT1, j * 64, tag=('mk',)) for j in range(4)]
ML += [waitv(('mk',))]
MS = [Sb[0][0:4], Sb[0][4:8], Sb[1][0:4], Sb[1][4:8], X8[0:4], X8[4:8]]
for q in range(6):
    for j in range(4): ML.append(mfma16(MS[q], KF[0][j], Qf[q][j], 0 if j == 0 else MS[q]))
for q in range(6):
    m = NEGM[q][3]
    ML += [valu('v_max3_f32', m, MS[q][0], MS[q][1], m), valu('v_max3_f32', m, MS[q][2], MS[q][3], m)]
ML += [salu('s_add_u32', sT1, sT1, 4096), salu('s_add_u32', sIT, sIT, 1), salu('s_cmp_lt_u32', None, sIT, 64),
       branch('s_cbranch_scc1', 'L_maxloop')]
blk['max_loop'] = ML
blk['max_post'] = [branch('s_branch', 'L_stream')]
blk['exit'] = [label('L_exit'), raw("  s_endpgm")]

def head_trace(first, has_next):
    t = blk['hscale'] + (blk['b0'] if first else []) + blk['hmain'] + blk['body_b']
    for _ in range(3): t += blk['body_a'] + blk['body_b']
    t += blk['bnd_chk'] + (blk['bnd_q'] if has_next else []) + blk['drain']
    t += blk['bnd_next'] if has_next else blk['end']
    return t
trace = blk['entry'] + blk['stream'] + head_trace(True, True) + head_trace(False, False)
for _ in range(2):
    trace += blk['max_pre'] + blk['max_loop'] * 3 + blk['max_post'] + blk['stream'] + head_trace(True, False)
trace += blk['exit']

resolve_waits(trace)
for it in range(10):
    n = check_trace(trace, fix=True, verbose=False)
    if n == 0: break
    if n >= 1000: sys.exit("pending-load errors")
assert check_trace(trace, fix=False) == 0
assert check_lds_protocol(trace)

order = ['entry', 'stream', 'hscale', 'b0', 'hmain', 'body_a', 'body_b', 'bnd_chk', 'bnd_q', 'drain', 'bnd_next', 'end',
         'max_pre', 'max_loop', 'max_post', 'exit']
NAME = "standalone__mha_softmax__near_ridge_kernel"
out = f"""; MHA forward (B16 H32 Sq384 Sk1024 D128, bf16) - generated by gen/gen.py (hand-written generator)
; @launch grid=({NWG},1,1) block=(256,1,1) lds={LDS_TOTAL}
.amdgcn_target "amdgcn-amd-amdhsa--gfx950"
.text
.globl {NAME}
.p2align 8
.type {NAME},@function
{NAME}:
"""
for b in order:
    out += f"; ---- {b}\n"
    for i in blk[b]: out += i.render()
out += f""".section .rodata,"a"
.p2align 6
.amdhsa_kernel {NAME}
  .amdhsa_next_free_vgpr 512
  .amdhsa_next_free_sgpr 64
  .amdhsa_accum_offset 256
  .amdhsa_group_segment_fixed_size 0
  .amdhsa_kernarg_size 48
  .amdhsa_user_sgpr_count 2
  .amdhsa_user_sgpr_kernarg_segment_ptr 1
  .amdhsa_system_sgpr_workgroup_id_x 1
.end_amdhsa_kernel
"""
open(sys.argv[1], 'w').write(out)
nn = sum(i.pre_nop for b in ('body_a', 'body_b') for i in blk[b])
print("emitted", sys.argv[1], "insts:", {b: len(blk[b]) for b in order}, "body nops:", nn)
```

```python
import re

def R(kind, n, cnt=1):
    return [(kind, n + i) for i in range(cnt)]
def rs(kind, n, cnt=1):
    return f"{kind}{n}" if cnt == 1 else f"{kind}[{n}:{n+cnt-1}]"

class Reg:
    def __init__(self, kind, n, cnt=1):
        self.kind, self.n, self.cnt = kind, n, cnt
    def __str__(self): return rs(self.kind, self.n, self.cnt)
    def regs(self): return R(self.kind, self.n, self.cnt)
    def __getitem__(self, i):
        if isinstance(i, slice):
            a = i.start or 0; b = i.stop if i.stop is not None else self.cnt
            return Reg(self.kind, self.n + a, b - a)
        assert 0 <= i < self.cnt
        return Reg(self.kind, self.n + i, 1)
def V(n, c=1): return Reg('v', n, c)
def A(n, c=1): return Reg('a', n, c)
def S(n, c=1): return Reg('s', n, c)

def regs_of(x):
    if isinstance(x, Reg): return x.regs()
    if isinstance(x, str) and x in ('vcc', 'm0', 'exec', 'scc'): return [('x', x)]
    return []

class Inst:
    def __init__(self, text, kind, rd=(), wr=(), srcc=(), ab=(), tag=None, wait=None, cost=4, passes=0):
        self.text, self.kind = text, kind
        self.rd, self.wr, self.srcc, self.ab = list(rd), list(wr), list(srcc), list(ab)
        self.tag, self.wait, self.cost, self.passes = tag, wait, cost, passes
        self.pre_nop = 0
        self.waitN = None
    def render(self):
        out = ""
        n = self.pre_nop
        while n > 0:
            k = min(n, 16); out += f"  s_nop {k-1}\n"; n -= k
        if self.kind == 'waitv':
            N = 0 if self.waitN is None else min(self.waitN, 63)
            return out + f"  s_waitcnt vmcnt({N})\n"
        if self.kind == 'waitl':
            N = 0 if self.waitN is None else min(self.waitN, 15)
            return out + f"  s_waitcnt lgkmcnt({N})\n"
        if self.kind == 'label': return out + f"{self.text}:\n"
        if self.kind == 'raw': return out + self.text + "\n"
        return out + f"  {self.text}\n"

def _fmt(x): return str(x)

def valu(op, dst, *src, extra="", trans=False, rmw=False, wr_extra=(), rd_extra=()):
    rd = []
    for s in src: rd += regs_of(s)
    wr = regs_of(dst)
    if rmw: rd += wr
    rd += [r for x in rd_extra for r in regs_of(x)]
    wr2 = wr + [r for x in wr_extra for r in regs_of(x)]
    t = f"{op} {_fmt(dst)}, " + ", ".join(_fmt(s) for s in src) + (" " + extra if extra else "")
    return Inst(t, 'trans' if trans else 'valu', rd, wr2, cost=8 if trans else 4)
def permswap(op, a, b):
    i = Inst(f"{op} {a}, {b}", 'valu', regs_of(a) + regs_of(b), regs_of(a) + regs_of(b)); i.perm = True; return i
def salu(op, dst, *src, scc_w=True, scc_r=False):
    rd = []
    for s in src: rd += regs_of(s)
    wr = regs_of(dst) if dst is not None else []
    if scc_w: wr = wr + [('x', 'scc')]
    if scc_r: rd = rd + [('x', 'scc')]
    ops = ([_fmt(dst)] if dst is not None else []) + [_fmt(s) for s in src]
    return Inst(f"{op} " + ", ".join(ops), 'salu', rd, wr)
def mfma16(d, a, b, c):
    srcc = regs_of(c)
    return Inst(f"v_mfma_f32_16x16x32_bf16 {d}, {a}, {b}, {c}", 'mfma', regs_of(a) + regs_of(b) + srcc, regs_of(d),
                srcc=srcc, ab=regs_of(a) + regs_of(b), cost=8, passes=4)
def ds_read(op, dst, addr, off, tag=None):
    return Inst(f"{op} {dst}, {addr} offset:{off}", 'ds_read', regs_of(addr), regs_of(dst), tag=tag)
def ds_write(op, addr, data, off):
    return Inst(f"{op} {addr}, {data} offset:{off}", 'ds_write', regs_of(addr) + regs_of(data), [])
def buf_load(op, dst, voff, srd, soff, off, tag=None, flags=""):
    return Inst(f"{op} {dst}, {voff}, {srd}, {soff} offen offset:{off}{flags}", 'vmem_load',
                regs_of(voff) + regs_of(srd) + regs_of(soff), regs_of(dst), tag=tag)
def buf_store(op, data, voff, srd, soff, off, flags=""):
    i = Inst(f"{op} {data}, {voff}, {srd}, {soff} offen offset:{off}{flags}", 'vmem_store',
                regs_of(voff) + regs_of(srd) + regs_of(soff) + regs_of(data), []); i.sdata = regs_of(data); return i
def dma(voff, srd, soff, off, tag, flags="", cost=8):
    return Inst(f"buffer_load_dwordx4 {voff}, {srd}, {soff} offen offset:{off}{flags} lds", 'dma',
                regs_of(voff) + regs_of(srd) + regs_of(soff) + [('x', 'm0')], [], tag=tag, cost=cost)
def waitv(*tags): return Inst("", 'waitv', wait=list(tags))
def waitl(*regs):
    w = []
    for r in regs: w += regs_of(r)
    return Inst("", 'waitl', wait=w)
class Ghost:
    def __init__(self, o): object.__setattr__(self, 'o', o)
    def __getattr__(self, k): return getattr(self.o, k)
    def __setattr__(self, k, v): setattr(self.o, k, v)
def barrier(): return Inst("s_barrier", 'barrier')
def label(n): return Inst(n, 'label', cost=0)
def branch(op, target):
    rd = [('x', 'scc')] if 'scc' in op else ([('x', 'vcc')] if 'vcc' in op else [])
    return Inst(f"{op} {target}", 'branch', rd)
def raw(t, kind='raw', rd=(), wr=()):
    return Inst(t if kind == 'raw' else t, kind, [r for x in rd for r in regs_of(x)], [r for x in wr for r in regs_of(x)])
def nop(n): return Inst(f"s_nop {n}", 'nop')

def slots(i):
    if i.kind in ('label',): return 0
    if i.kind == 'nop': return int(i.text.split()[1]) + 1
    return 1

def resolve_waits(trace):
    vq = []
    lq = []
    for i in trace:
        if isinstance(i, Ghost): continue
        if i.kind in ('vmem_load', 'vmem_store', 'dma'): vq.append(i)
        elif i.kind in ('ds_read', 'ds_write'): lq.append(i)
        elif i.kind == 'waitv':
            if not i.wait: n = 0
            else:
                last = -1
                for k in range(len(vq) - 1, -1, -1):
                    if vq[k].tag in i.wait: last = k; break
                assert last >= 0, f"waitv: no op with tag {i.wait}"
                n = len(vq) - 1 - last
            i.waitN = n if i.waitN is None else min(i.waitN, n)
        elif i.kind == 'waitl':
            if not i.wait: n = 0
            else:
                last = -1; ws = set(i.wait)
                for k in range(len(lq) - 1, -1, -1):
                    if ws & set(lq[k].wr): last = k; break
                assert last >= 0, f"waitl: no ds op writing {i.wait[:4]}"
                n = len(lq) - 1 - last
            i.waitN = n if i.waitN is None else min(i.waitN, n)

def check_trace(trace, fix=True, verbose=False):
    nprob = 0
    pos = 0
    lastw = {}
    lastc = {}
    laststore = {}
    pend_v = []
    pend_l = []
    def need(i, have, req, why):
        nonlocal nprob
        if have < req:
            nprob += 1
            if verbose or not fix: print(f"HAZARD {why}: have {have} need {req} at '{i.render().strip()}'")
            if fix: i.pre_nop += (req - have)
    for i in trace:
        pos += i.pre_nop
        if i.kind == 'label': continue
        add = 0
        before = i.pre_nop
        touched = set(i.rd) | set(i.wr)
        for q, nm in ((pend_v, 'vmem'), (pend_l, 'lds')):
            for o in q:
                if set(o.wr) & touched:
                    print(f"ERROR: '{i.render().strip()}' touches regs of outstanding {nm} op '{o.render().strip()}'"); nprob += 1000
        for r in i.rd:
            if r in lastw:
                p, w = lastw[r]; have = pos - p + (i.pre_nop - before)
                if w.kind == 'mfma':
                    if i.kind == 'mfma':
                        if r in i.ab: need(i, have, 8, 'mfma D->AB')
                        elif r in i.srcc:
                            if set(i.srcc) == set(w.wr): pass
                            else: need(i, have, 6, 'mfma D->C overlap')
                    elif i.kind in ('valu', 'trans', 'ds_write', 'ds_read', 'vmem_store', 'vmem_load', 'dma'):
                        need(i, have, 8, 'mfma D->read')
                elif w.kind in ('valu', 'trans'):
                    if r[0] in 'va':
                        if i.kind == 'mfma': need(i, have, 2, 'valu->mfma')
                        if getattr(i, 'perm', False): need(i, have, 2, 'valu->permlane')
                        if w.kind == 'trans' and i.kind == 'valu': need(i, have, 1, 'trans->valu')
                        if 'readfirstlane' in i.text or 'readlane' in i.text: need(i, have, 1, 'valu->readlane')
                    else:
                        if i.kind in ('valu', 'trans'): need(i, have, 2, 'valu sgpr->valu')
                        if i.kind in ('vmem_load', 'vmem_store', 'dma'): need(i, have, 5, 'valu sgpr->vmem')
                        if i.kind in ('salu', 'branch'): need(i, have, 2, 'valu sgpr->salu(pad)')
                elif w.kind == 'salu':
                    if r == ('x', 'm0') and i.kind == 'dma': need(i, have, 1, 'm0->dma')
        for r in i.wr:
            if r in lastw:
                p, w = lastw[r]; have = pos - p + (i.pre_nop - before)
                if w.kind == 'mfma' and i.kind in ('valu', 'trans', 'ds_read', 'vmem_load'):
                    need(i, have, 8, 'mfma D->WAW')
                if w.kind == 'mfma' and i.kind == 'mfma' and not (set(i.srcc) == set(w.wr)) :
                    need(i, have, 6, 'mfma D->D WAW')
            if r in lastc and i.kind in ('valu', 'trans'):
                p, w = lastc[r]; have = pos - p + (i.pre_nop - before)
                need(i, have, 3, 'mfma C WAR')
            if r in laststore and i.kind != 'mfma':
                have = pos - laststore[r] + (i.pre_nop - before)
                need(i, have, 2, 'store data WAR')
        pos += (i.pre_nop - before)
        pos += slots(i)
        for r in i.wr: lastw[r] = (pos, i)
        if i.kind == 'mfma':
            for r in i.srcc: lastc[r] = (pos, i)
        if i.kind == 'vmem_store':
            for r in i.sdata: laststore[r] = pos
        if i.kind in ('vmem_load', 'vmem_store', 'dma'): pend_v.append(i)
        elif i.kind in ('ds_read', 'ds_write'): pend_l.append(i)
        elif i.kind == 'waitv':
            n = min(i.waitN or 0, 63); pend_v = pend_v[len(pend_v) - n:] if n else []
        elif i.kind == 'waitl':
            n = min(i.waitN or 0, 15); pend_l = pend_l[len(pend_l) - n:] if n else []
        elif i.kind == 'raw' and 's_waitcnt' in i.text:
            if 'vmcnt(0)' in i.text: pend_v = []
            if 'lgkmcnt(0)' in i.text: pend_l = []
    return nprob

def check_lds_protocol(trace):
    vq = []; lq = []
    state = {}
    ok = True
    for i in trace:
        if i.kind in ('vmem_load', 'vmem_store', 'dma'):
            ent = [i, None]
            if i.kind == 'dma' and i.tag and i.tag[0] == 't':
                key = i.tag[1:]
                st = state.setdefault(key, dict(gen=0, pieces=0, done=0, visible=False, rd_out=0, rd_unfenced=False))
                if i.piece == 0:
                    if st['rd_out'] or st['rd_unfenced']:
                        print(f"LDS WAR violation: DMA into {key} while reads not fenced"); ok = False
                    st.update(gen=st['gen'] + 1, pieces=0, done=0, visible=False)
                st['pieces'] += 1
                ent[1] = (key, st['gen'])
            vq.append(ent)
        elif i.kind in ('ds_read', 'ds_write'):
            ent = [i, None]
            if i.tag and i.tag[0] == 't':
                key = i.tag[1:]; st = state.get(key)
                if not st or not st['visible']:
                    print(f"LDS RAW violation: read of {key} not visible: {i.render().strip()}"); ok = False
                else:
                    st['rd_out'] += 1; ent[1] = key
            lq.append(ent)
        elif i.kind == 'waitv' or (i.kind == 'raw' and 'vmcnt(0)' in i.text):
            n = 0 if i.kind == 'raw' else min(i.waitN or 0, 63)
            done, vq = (vq[:len(vq) - n], vq[len(vq) - n:]) if n else (vq, [])
            for o, k in done:
                if k and state[k[0]]['gen'] == k[1]: state[k[0]]['done'] += 1
        if i.kind == 'waitl' or (i.kind == 'raw' and 'lgkmcnt(0)' in i.text):
            n = 0 if i.kind == 'raw' else min(i.waitN or 0, 15)
            done, lq = (lq[:len(lq) - n], lq[len(lq) - n:]) if n else (lq, [])
            for o, k in done:
                if k: state[k]['rd_out'] -= 1; state[k]['rd_unfenced'] = True
        if i.kind == 'barrier':
            for st in state.values():
                if st['pieces'] == 4 and st['done'] == 4: st['visible'] = True
                if st['rd_out'] == 0: st['rd_unfenced'] = False
    return ok
```

```python
import sys, math, struct
from asmlib import *

def f2u(f): return struct.unpack('<I', struct.pack('<f', f))[0]

class Cfg:
    dma_flags = " nt"
    q_flags = " nt"
    st_flags = ""
    dma_cost = 8
    thr = 2.0 ** 32
    stamps = 0
cfg = Cfg()
for a in sys.argv[2:]:
    k, v = a.split('=', 1)
    cur = getattr(cfg, k)
    setattr(cfg, k, type(cur)(v) if not isinstance(cur, str) else v.replace('_', ' '))

NWG = 256
QH = 98304
KH = 262144
Q_BYTES = 512 * QH
K_BYTES = 512 * KH
OOB = 0x10000000
LDS_RING = 131072
LDS_TOTAL = LDS_RING + 32768
SCALE = (128 ** -0.5) * math.log2(math.e)

vTID = V(0)
aK = [V(1 + j) for j in range(4)]
aV = [V(5 + d) for d in range(8)]
dK = [V(13 + i) for i in range(4)]
dV = [V(17 + i) for i in range(2)]
vQo, vOo = V(19), V(20)
vX = V(21)
RL = V(22, 2)
T4 = [V(24, 4), V(28, 4)]
Sb = [V(32, 8), V(40, 8)]
Pb = [V(48, 4), V(52, 4)]
NEGM = [V(56 + 4 * q, 4) for q in range(6)]
Qf = [[V(80 + (q * 4 + j) * 4, 4) for j in range(4)] for q in range(6)]
def Oblk(q, db):
    if q < 4: return A((q * 8 + db) * 4, 4)
    return V(176 + ((q - 4) * 8 + db) * 4, 4)
X8 = V(240, 8)
Y8 = V(248, 8)
KF = [[A(128 + (kb * 4 + j) * 4, 4) for j in range(4)] for kb in range(2)]
VF = [A(160 + db * 4, 4) for db in range(8)]
Lb = [A(192 + 4 * q, 4) for q in range(6)]
ONES = A(216, 4)
S0 = [Sb[0], Y8, Sb[1], Sb[0], Y8, Sb[1]]
QST = [[A(220 + (q * 4 + j) * 4, 4) for j in range(4)] for q in range(2)]
vQs = V(0)

srdQ, srdK, srdV, srdO = S(8, 4), S(12, 4), S(16, 4), S(20, 4)
sWG = S(2)
sW, sM0B, sHEAD, sNEXT, sDOFF, sNB, sPASS, sMODE, sFLAGS, sQO, sBIT, sTHR = [S(24 + i) for i in range(12)]
sARG = S(36, 8)
sC = S(44, 2)
sMASK, sFIRST, sT0, sT1, sIT, sOH, sQH, sQP = S(46), S(47), S(48), S(49), S(50), S(51), S(62), S(63)
M0 = 'm0'
sQO2, sM0Q, sBITN = S(64), S(65), S(66)

def smov(d, x): return salu('s_mov_b32', d, x, scc_w=False)
srdW = S(56, 4); sST = S(52, 2); sSTO = S(54); sST2 = S(60, 2)
def stamp():
    if not cfg.stamps: return []
    st = Inst(f"buffer_store_dwordx2 {T4[0][0:2]}, off, {srdW}, {sSTO}", 'vmem_store', regs_of(T4[0][0:2]) + regs_of(srdW) + regs_of(sSTO), [])
    st.sdata = regs_of(T4[0][0:2])
    return [raw(f"  s_memtime {sST}", wr=[sST]), raw(f"  s_memrealtime {sST2}", wr=[sST2]), raw("  s_waitcnt lgkmcnt(0)"),
            valu('v_mov_b32', T4[0][0], sST[0]), valu('v_mov_b32', T4[0][1], sST2[0]), st, salu('s_add_u32', sSTO, sSTO, 8)]

def phase(pre, mf, fa, fb=(), fa_start=0):
    out = list(pre)
    fb = sorted(fb, key=lambda x: x[0])
    total = sum(i.cost for i in fa) + sum(i.cost for _, l in fb for i in l)
    ng = len(mf)
    budget = max(8, int(math.ceil(total / max(ng - fa_start, 1) / 4.0)) * 4)
    ia = 0
    fb = list(fb)
    for g, m in enumerate(mf):
        out.append(m)
        rem = budget
        while fb and fb[0][0] <= g:
            c = sum(i.cost for i in fb[0][1])
            if c <= rem or rem == budget:
                out += fb[0][1]; rem -= c; fb.pop(0)
            else: break
        while g >= fa_start and ia < len(fa) and fa[ia].cost <= rem:
            out.append(fa[ia]); rem -= fa[ia].cost; ia += 1
    for _, l in fb: out += l
    out += fa[ia:]
    return out

def qk_mfmas(q, Sdst, cinit):
    L = []
    for kb in range(2):
        d = Sdst[4 * kb:4 * kb + 4]
        for j in range(4):
            L.append(mfma16(d, KF[kb][j], Qf[q][j], (cinit if j == 0 else d)))
    return L
def pv_mfmas(q, P, first=False):
    L = [mfma16(Oblk(q, db), VF[db], P, 0 if first else Oblk(q, db)) for db in range(8)]
    L.append(mfma16(Lb[q], ONES, P, 0 if first else Lb[q]))
    return L
def sm_valu(Ssrc, P):
    e = [valu('v_exp_f32', Ssrc[i], Ssrc[i], trans=True) for i in range(8)]
    c = [valu('v_cvt_pk_bf16_f32', P[i], Ssrc[2 * i], Ssrc[2 * i + 1]) for i in range(4)]
    return [e[0], e[1], e[2], c[0], e[3], e[4], c[1], e[5], e[6], c[2], e[7], c[3]]
def k_read(kb, j, slot, sub):
    return ds_read('ds_read_b128', KF[kb][j], aK[j], slot * 16384 + sub * 8192 + kb * 4096, tag=('t', slot, 'K'))
def v_reads(db, slot, sub):
    return [ds_read('ds_read_b64_tr_b16', VF[db][2 * h:2 * h + 2], aV[db], slot * 16384 + sub * 8192 + h * 4096, tag=('t', slot, 'V'))
            for h in range(2)]
def dma_piece(part, slot, idx):
    if part == 'K': d = dma(dK[idx], srdK, sDOFF, idx * 1024, ('t', slot, 'K'), cfg.dma_flags, cfg.dma_cost)
    else: d = dma(dV[idx & 1], srdV, sDOFF, idx * 1024, ('t', slot, 'V'), cfg.dma_flags, cfg.dma_cost)
    d.piece = idx
    return d
def set_m0(part, slot):
    return salu('s_add_u32', M0, sM0B, (65536 if part == 'V' else 0) + slot * 16384)
ALLK = [KF[kb][j] for kb in range(2) for j in range(4)]

def q_loads():
    L = [salu('s_mul_i32', sQO, sHEADQ, QH, scc_w=False)]
    for q in range(6):
        for j in range(4):
            L.append(buf_load('buffer_load_dwordx4', Qf[q][j], vQo, srdQ, sQO, j * 64, tag=('q', q), flags=cfg.q_flags))
        if q < 5: L.append(salu('s_add_u32', sQO, sQO, 4096))
    return L
def q_scale():
    L = []
    for q in range(6):
        L.append(waitv(('q', q)))
        for j in range(4):
            x = Qf[q][j]; t = X8 if (j & 1) == 0 else Y8
            for i in range(4):
                L.append(valu('v_lshlrev_b32', t[2 * i], 16, x[i]))
                L.append(valu('v_and_b32', t[2 * i + 1], sMASK, x[i]))
            for i in range(4):
                L.append(valu('v_pk_mul_f32', t[2 * i:2 * i + 2], t[2 * i:2 * i + 2], sC))
            for i in range(4):
                L.append(valu('v_cvt_pk_bf16_f32', x[i], t[2 * i], t[2 * i + 1]))
    return L
def minit_reset():
    return [valu('v_mov_b32', NEGM[q][3], '0xff800000') for q in range(6)]

def max_valu(q):
    s = S0[q]; m = NEGM[q][3]; t = RL[q & 1]
    L = [valu('v_max3_f32', m, s[0], s[1], m), valu('v_max3_f32', m, s[2], s[3], m),
         valu('v_max3_f32', m, s[4], s[5], m), valu('v_max3_f32', m, s[6], s[7], m),
         valu('v_mov_b32', t, m), permswap('v_permlane32_swap_b32', t, m), valu('v_max_f32', m, t, m),
         valu('v_mov_b32', t, m), permswap('v_permlane16_swap_b32', t, m), valu('v_max_f32', t, t, m)]
    L += [valu('v_sub_f32', s[i], s[i], t) for i in range(8)]
    L += [valu('v_sub_f32', NEGM[q][i], 0, t) for i in range(4)]
    return L

blk = {}
E = []
E += [salu('s_cmp_ge_u32', None, sWG, NWG), branch('s_cbranch_scc1', 'L_exit')]
E += [raw(f"  s_load_dwordx8 {sARG}, s[0:1], 0", wr=[sARG])]
E += [valu('v_lshrrev_b32', vX, 6, vTID), valu('v_and_b32', vTID, 63, vTID)]
E += [Inst(f"v_readfirstlane_b32 {sW}, {vX}", 'valu', regs_of(vX), regs_of(sW))]
tA, tB, tC, tD = X8[0], X8[1], X8[2], X8[3]
tQ, tG = X8[4], X8[5]
E += [valu('v_and_b32', tQ, 15, vTID), valu('v_lshrrev_b32', tG, 4, vTID)]
E += [valu('v_xor_b32', tA, tG, tQ), valu('v_lshlrev_b32', tB, 8, tQ)]
for j in range(4):
    E += [valu('v_xor_b32', tC, 4 * j, tA), valu('v_lshl_add_u32', aK[j], tC, 4, tB)]
E += [valu('v_lshrrev_b32', tA, 2, vTID), valu('v_and_b32', tC, 7, tA), valu('v_lshlrev_b32', tA, 8, tA),
      valu('v_and_b32', tB, 3, vTID), valu('v_lshl_add_u32', tA, tB, 3, tA), valu('v_add_u32', tA, 65536, tA)]
for db in range(8):
    E += [valu('v_xor_b32', tB, db, tC), valu('v_lshl_add_u32', aV[db], tB, 5, tA)]
E += [salu('s_lshl_b32', sM0B, sW, 12)]
E += [valu('v_lshlrev_b32', tB, 8, tG), valu('v_add_u32', tB, sM0B, tB), valu('v_xor_b32', tA, tG, tQ)]
for i in range(4):
    E += [valu('v_xor_b32', tC, 4 * i, tA), valu('v_lshl_add_u32', dK[i], tC, 4, tB)]
E += [valu('v_lshlrev_b32', tA, 1, tG), valu('v_xor_b32', tA, tA, tQ)]
for i in range(2):
    E += [valu('v_xor_b32', tC, 8 * i, tA), valu('v_lshl_add_u32', dV[i], tC, 4, tB)]
E += [salu('s_mul_i32', sT0, sW, 96 * 256, scc_w=False)]
E += [valu('v_lshlrev_b32', tA, 8, tQ), valu('v_add_u32', tA, sT0, tA), valu('v_lshl_add_u32', vQo, tG, 4, tA),
      valu('v_and_b32', tB, 1, tG), valu('v_lshl_add_u32', tA, tB, 5, tA), valu('v_lshrrev_b32', tB, 1, tG),
      valu('v_lshl_add_u32', vOo, tB, 4, tA)]
E += [salu('s_lshl_b32', sM0Q, sW, 13), salu('s_add_u32', sM0Q, sM0Q, LDS_RING),
      valu('v_lshlrev_b32', vQs, 4, vTID), valu('v_add_u32', vQs, sM0Q, vQs)]
E += [valu('v_mov_b32', tA, '0x3f803f80')]
E += [Inst(f"v_accvgpr_write_b32 {ONES[i]}, {tA}", 'valu', regs_of(tA), regs_of(ONES[i])) for i in range(4)]
E += [smov(sC[0], hex(f2u(SCALE))), smov(sC[1], hex(f2u(SCALE))), smov(sMASK, '0xffff0000'), smov(sTHR, hex(f2u(cfg.thr)))]
E += [smov(sHEAD, sWG), salu('s_add_u32', sNEXT, sWG, NWG), smov(sMODE, 0), smov(sFLAGS, 0), smov(sBIT, 1)]
E += minit_reset()
E += [raw("  s_waitcnt lgkmcnt(0)")]
for srd, k, nb in ((srdQ, 0, Q_BYTES), (srdK, 2, K_BYTES), (srdV, 4, K_BYTES), (srdO, 6, Q_BYTES)):
    E += [smov(srd[0], sARG[k]), salu('s_and_b32', srd[1], sARG[k + 1], '0xffff'), smov(srd[2], nb), smov(srd[3], '0x20000')]
if cfg.stamps:
    E += [raw(f"  s_load_dwordx2 {srdW[0:2]}, s[0:1], 40", wr=[srdW[0:2]]), raw("  s_waitcnt lgkmcnt(0)"),
          salu('s_and_b32', srdW[1], srdW[1], '0xffff'), smov(srdW[2], 1 << 20), smov(srdW[3], '0x20000'),
          salu('s_lshl_b32', sSTO, sWG, 2), salu('s_add_u32', sSTO, sSTO, sW), salu('s_lshl_b32', sSTO, sSTO, 9)]
    E += stamp()
blk['entry'] = E

def q_load_q(q, restore_m0=None):
    L = [salu('s_add_u32', sQO, sQH, q * 4096)]
    if q < 2:
        L += [buf_load('buffer_load_dwordx4', QST[q][j], vQo, srdQ, sQO, j * 64, tag=('q', q), flags=cfg.q_flags) for j in range(4)]
    elif q < 4:
        for j in range(4):
            L.append(salu('s_add_u32', M0, sM0Q, ((q - 2) * 4 + j) * 1024 - j * 64))
            d = dma(vQo, srdQ, sQO, j * 64, ('q', q), cfg.q_flags, cfg.dma_cost); d.piece = j; L.append(d)
        if restore_m0: L.append(restore_m0)
    else:
        L += [buf_load('buffer_load_dwordx4', Qf[q][j], vQo, srdQ, sQO, j * 64, tag=('q', q), flags=cfg.q_flags) for j in range(4)]
    return L
def q_unstage(q):
    if q < 2:
        return [Inst(f"v_accvgpr_read_b32 {Qf[q][j][i]}, {QST[q][j][i]}", 'valu', regs_of(QST[q][j][i]), regs_of(Qf[q][j][i]))
                for j in range(4) for i in range(4)]
    if q < 4:
        return [ds_read('ds_read_b128', Qf[q][j], vQs, ((q - 2) * 4 + j) * 1024) for j in range(4)]
    return []
def q_scale_q(q):
    L = []
    for j in range(4):
        x = Qf[q][j]; t = X8
        for i in range(4):
            L.append(valu('v_lshlrev_b32', t[2 * i], 16, x[i]))
            L.append(valu('v_and_b32', t[2 * i + 1], sMASK, x[i]))
        for i in range(4):
            L.append(valu('v_pk_mul_f32', t[2 * i:2 * i + 2], t[2 * i:2 * i + 2], sC))
        for i in range(4):
            L.append(valu('v_cvt_pk_bf16_f32', x[i], t[2 * i], t[2 * i + 1]))
    return L
_ti = [0]
def epi_q(q, tsets):
    D = [salu('s_add_u32', sQO2, sOH, q * 4096)]
    D += [Inst(f"v_accvgpr_read_b32 {RL[1]}, {Lb[q][0]}", 'valu', regs_of(Lb[q][0]), regs_of(RL[1]))]
    D += [valu('v_rcp_f32', RL[0], RL[1], trans=True)]
    if q == 0: D += [valu('v_mov_b32', vX, RL[1])]
    else: D += [valu('v_add_f32', vX, vX, RL[1])]
    for dp in range(4):
        if q < 4:
            t = tsets[dp % len(tsets)]
            for bi in range(2):
                o = Oblk(q, 2 * dp + bi)
                D += [Inst(f"v_accvgpr_read_b32 {t[4*bi+i]}, {o[i]}", 'valu', regs_of(o[i]), regs_of(t[4 * bi + i])) for i in range(4)]
        else:
            o = Oblk(q, 2 * dp); t = V(o.n, 8)
        for i in range(4):
            D += [valu('v_pk_mul_f32', t[2 * i:2 * i + 2], t[2 * i:2 * i + 2], RL, extra="op_sel_hi:[1,0]")]
        T = T4[_ti[0] % 2]; _ti[0] += 1
        for i in range(4): D += [valu('v_cvt_pk_bf16_f32', T[i], t[2 * i], t[2 * i + 1])]
        D += [permswap('v_permlane16_swap_b32', T[0], T[2]), permswap('v_permlane16_swap_b32', T[1], T[3])]
        D += [buf_store('buffer_store_dwordx4', T, vOo, srdO, sQO2, dp * 64, flags=cfg.st_flags)]
    return D
def fail_check():
    return [Inst(f"v_cmp_nge_f32 vcc, {sTHR}, {vX}", 'valu', regs_of(sTHR) + regs_of(vX), [('x', 'vcc')]),
            salu('s_cmp_lg_u64', None, 'vcc', 0), salu('s_cselect_b32', sT0, sBIT, 0, scc_w=False, scc_r=True),
            salu('s_or_b32', sFLAGS, sFLAGS, sT0)]

def is_pk(i): return 'v_pk_' in i.text
def vphase(mf, seq, start=0):
    n = len(seq); out = []
    if not mf: return list(seq)
    tot = sum(i.cost for i in seq if isinstance(i, Inst))
    step = (tot * (1.0 - start)) / len(mf)
    acc = 0.0; nxt = tot * start; k = 0
    for idx, i in enumerate(seq):
        if k < len(mf) and acc >= nxt:
            look = [x for x in seq[idx:idx + 3] if isinstance(x, Inst)]
            if not any(is_pk(x) for x in look):
                m = mf[k]; out += (m if isinstance(m, list) else [m]); k += 1; nxt += step
        out.append(i)
        if isinstance(i, Inst): acc += i.cost
    for m in mf[k:]: out += (m if isinstance(m, list) else [m])
    return out

class Cond:
    n = 0
    def __init__(self, first, body):
        self.first, self.body = first, body
        self.lab = f"L_c{Cond.n}"; Cond.n += 1
        self.head = [salu('s_cmp_eq_u32', None, sFIRST, 0), branch('s_cbranch_scc1' if first else 's_cbranch_scc0', self.lab)]
        self.tail = [label(self.lab)]
    def static(self): return self.head + self.body + self.tail
    def dyn(self, first): return self.head + (self.body if first == self.first else []) + self.tail
def flat_static(seq): return [y for x in seq for y in (x.static() if hasattr(x, 'static') else [x])]
def flat_dyn(seq, flag):
    out = []
    for x in seq:
        if hasattr(x, 'dyn'): out += x.dyn(flag)
        elif flag and getattr(x, 'nf_only', False): out.append(Ghost(x))
        else: out.append(x)
    return out
def waitv_nf(*tags):
    w = waitv(*tags); w.nf_only = True; return w

def tile_dma(part, t): return [set_m0(part, t)] + [dma_piece(part, t, i) for i in range(4)]
nxt_tile = lambda: [salu('s_add_u32', sDOFF, sDOFF, 16384)]

B = [label('L_stream')]
B += [salu('s_mul_i32', sQH, sHEAD, QH, scc_w=False), salu('s_mul_i32', sDOFF, sHEAD, KH, scc_w=False)]
B += q_load_q(0) + tile_dma('K', 0) + q_load_q(1)
B += [salu('s_mul_i32', sNB, sNEXT, KH, scc_w=False), salu('s_cmp_lt_u32', None, sNEXT, 512),
      salu('s_cselect_b32', sNB, sNB, OOB, scc_w=False, scc_r=True),
      salu('s_cselect_b32', sQP, 3, 99, scc_w=False, scc_r=True),
      smov(sFIRST, 1), smov(sOH, OOB), smov(sBITN, sBIT), smov(sBIT, 0)]
blk['stream'] = B

zero_init = [valu('v_mov_b32', Oblk(5, db)[i], 0) for db in range(8) for i in range(4)]
zero_init += [Inst(f"v_accvgpr_write_b32 {Lb[5][i]}, 0", 'valu', [], regs_of(Lb[5][i])) for i in range(4)]
first_issue = {0: q_load_q(2), 1: q_load_q(3), 2: q_load_q(4), 3: q_load_q(5),
               4: tile_dma('V', 1) + nxt_tile(), 5: tile_dma('K', 2)}
FU = [label('L_fuse'), smov(sPASS, 0)] + stamp()
FU += [Cond(False, q_load_q(4) + q_load_q(5))]
for f in range(9):
    mf = []; seq = []; pre = []; start = 0.0
    if f == 0:
        pv = pv_mfmas(5, Pb[1])
        mf += [[pv[db]] + v_reads(db, 0, 0) for db in range(8)] + [pv[8]]
        for m in mf[:8]:
            for r in m[1:]: r.tag = ('tx', 0, 'V')
    if f == 1:
        pre += [Cond(True, [waitv(('t', 0, 'K')), barrier()] + [k_read(kb, j, 0, 0) for kb in range(2) for j in range(4)] + tile_dma('V', 0) + nxt_tile())]
        pre += [waitl(*ALLK)]
    if f == 4:
        pre += [Cond(True, [waitv(('t', 0, 'V')), barrier()] + [r for db in range(8) for r in v_reads(db, 0, 0)] + tile_dma('K', 1))]
        pre += [waitl(*VF)]
    if 1 <= f <= 6:
        qk = qk_mfmas(f - 1, S0[f - 1], 0)
        if f == 6: qk = [[qk[kb * 4 + j], k_read(kb, j, 0, 1)] for kb in range(2) for j in range(4)]
        mf += qk
    if f == 8:
        pre += [waitl(*ALLK)]
        mf += qk_mfmas(0, Sb[0], NEGM[0])
    if 4 <= f <= 8: mf += pv_mfmas(f - 4, Pb[(f - 4) % 2], first=True)
    if 3 <= f <= 8: seq += sm_valu(S0[f - 3], Pb[(f - 3) % 2])
    if f <= 5:
        seq += epi_q(f, [X8])
        if f == 5: seq += fail_check()
        seq += [Cond(True, [waitv(('q', f))] + first_issue[f]), waitv_nf(('q', f))]
        seq += q_unstage(f)
        if 2 <= f <= 3: seq += max_valu(f - 2) + [waitl(*Qf[f])]
        seq += q_scale_q(f)
    if 4 <= f <= 7: seq += max_valu(f - 2)
    if f == 6: seq += [Cond(True, tile_dma('V', 2) + nxt_tile())] + zero_init
    if f == 7: seq += [Cond(True, [set_m0('K', 3), dma_piece('K', 3, 0)]), set_m0('K', 3), dma_piece('K', 3, 1), dma_piece('K', 3, 2)]
    if f == 8: seq += [dma_piece('K', 3, 3), set_m0('V', 3), dma_piece('V', 3, 0)]
    FU += pre + vphase(mf, seq, start)
FU += [smov(sFIRST, 0), smov(sBIT, sBITN), salu('s_mul_i32', sQH, sNEXT, QH, scc_w=False)] + stamp() + [branch('s_branch', 'L_body1')]
blk['fuse'] = FU

class CondQ:
    n = 0
    def __init__(self, body):
        self.body = body; self.lab = f"L_q{CondQ.n}"; CondQ.n += 1
        self.head = [salu('s_cmp_eq_u32', None, sPASS, sQP), branch('s_cbranch_scc0', self.lab)]
        self.tail = [label(self.lab)]
        self.cost = 8
    def static(self): return self.head + self.body + self.tail
    def dyn(self, flag): return self.head + (self.body if flag else []) + self.tail

def body_phase(k, lp):
    sub, q = divmod(lp, 6)
    qn = (q + 1) % 6; qp = (q - 1) % 6
    pre = []; fb = []
    mf = qk_mfmas(qn, Sb[(q + 1) % 2], NEGM[qn]) + pv_mfmas(qp, Pb[(q - 1) % 2])
    fa = sm_valu(Sb[q % 2], Pb[q % 2])
    if q == 4:
        slot, s2 = (k, 1) if sub == 0 else ((k + 1) % 4, 0)
        if sub == 1: pre += [waitv(('t', slot, 'V')), barrier()]
        for kb in range(2):
            for j in range(4): fb.append((kb * 4 + j, [k_read(kb, j, slot, s2)]))
    if q == 5: pre += [waitl(*ALLK)]
    if q == 0:
        for db in range(8): fb.append((8 + db, v_reads(db, k, sub)))
    if q == 1: fb.append((7, [waitl(*VF)]))
    x3 = (k + 3) % 4
    if lp in (1, 2, 3): fb.append((2, [dma_piece('K', x3, lp)]))
    if lp == 5: fb.append((2, [set_m0('V', x3), dma_piece('V', x3, 0)]))
    if lp in (7, 8, 9): fb.append((2, [dma_piece('V', x3, lp - 6)]))
    if lp == 8:
        fb.append((12, [CondQ(q_load_q(k, restore_m0=set_m0('V', x3)))]))
    if lp == 11:
        upd = [salu('s_add_u32', sDOFF, sDOFF, 16384)]
        if k == 0:
            upd += [salu('s_cmp_eq_u32', None, sPASS, 3), salu('s_cselect_b32', sDOFF, sNB, sDOFF, scc_w=False, scc_r=True)]
        fb.append((0, upd[:2]))
        if len(upd) > 2: fb.append((1, upd[2:]))
        fb.append((2, [set_m0('K', k), dma_piece('K', k, 0)]))
    return phase(pre, mf, fa, fb)

BA = [raw(".p2align 6"), label('L_body0')]
for lp in range(6): BA += body_phase(0, lp)
blk['body_a'] = BA
BB = [label('L_body1')]
for lp in range(6, 12): BB += body_phase(0, lp)
for k in range(1, 4):
    for lp in range(12): BB += body_phase(k, lp)
BB += stamp() + [salu('s_add_u32', sPASS, sPASS, 1), salu('s_cmp_lt_u32', None, sPASS, 4), branch('s_cbranch_scc1', 'L_body0')]
blk['body_b'] = BB

D1 = [salu('s_mul_i32', sOH, sHEAD, QH, scc_w=False), salu('s_cmp_ge_u32', None, sNEXT, 512), branch('s_cbranch_scc1', 'L_drain')]
blk['bnd_chk'] = D1
N = [smov(sHEAD, sNEXT), smov(sNEXT, '0xffff'), smov(sNB, OOB), smov(sBITN, 2), smov(sQP, 99)] + minit_reset() + [branch('s_branch', 'L_fuse')]
blk['bnd_next'] = N
D = [label('L_drain')] + pv_mfmas(5, Pb[1])
for q in range(6): D += epi_q(q, [X8, Y8])
D += stamp() + fail_check()
blk['drain'] = D

F = [label('L_end')]
F += [valu('v_mov_b32', tA, sFLAGS), salu('s_lshl_b32', sT0, sW, 2), salu('s_add_u32', sT0, sT0, LDS_RING),
      valu('v_mov_b32', tB, sT0), valu('v_mov_b32', tC, LDS_RING),
      ds_write('ds_write_b32', tB, tA, 0), raw("  s_waitcnt vmcnt(0) lgkmcnt(0)"), barrier(),
      ds_read('ds_read_b128', Y8[0:4], tC, 0), raw("  s_waitcnt lgkmcnt(0)"),
      valu('v_or_b32', tA, Y8[0], Y8[1]), valu('v_or3_b32', tA, tA, Y8[2], Y8[3]),
      Inst(f"v_readfirstlane_b32 {sFLAGS}, {tA}", 'valu', regs_of(tA), regs_of(sFLAGS)),
      ] + stamp() + [salu('s_cmp_eq_u32', None, sFLAGS, 0), branch('s_cbranch_scc1', 'L_exit')]
blk['end'] = F
M = [barrier()]
M += [salu('s_and_b32', sT0, sFLAGS, 1), salu('s_add_u32', sT1, sWG, NWG), salu('s_cmp_lg_u32', None, sT0, 0),
      salu('s_cselect_b32', sHEAD, sWG, sT1, scc_w=False, scc_r=True),
      salu('s_cselect_b32', sT0, 1, 2, scc_w=False, scc_r=True), salu('s_andn2_b32', sFLAGS, sFLAGS, sT0),
      smov(sMODE, 1), smov(sBIT, 0), smov(sNEXT, '0xffff')]
M += [salu('s_mul_i32', sQO, sHEAD, QH, scc_w=False)]
for q in range(6):
    M += [buf_load('buffer_load_dwordx4', Qf[q][j], vQo, srdQ, sQO, j * 64, tag=('mq',)) for j in range(4)]
    M += [salu('s_add_u32', sQO, sQO, 4096)]
M += [waitv(('mq',))]
for q in range(6): M += q_scale_q(q)
M += minit_reset()
M += [valu('v_mbcnt_lo_u32_b32', tC, -1, 0), valu('v_mbcnt_hi_u32_b32', tC, -1, tC),
      valu('v_and_b32', tA, 15, tC), valu('v_lshrrev_b32', tB, 4, tC), valu('v_lshlrev_b32', tA, 8, tA),
      valu('v_lshl_add_u32', vX, tB, 4, tA)]
M += [salu('s_mul_i32', sT1, sHEAD, KH, scc_w=False), smov(sIT, 0)]
blk['max_pre'] = M
ML = [label('L_maxloop')]
ML += [buf_load('buffer_load_dwordx4', KF[0][j], vX, srdK, sT1, j * 64, tag=('mk',)) for j in range(4)]
ML += [waitv(('mk',))]
MS = [Sb[0][0:4], Sb[0][4:8], Sb[1][0:4], Sb[1][4:8], X8[0:4], X8[4:8]]
for q in range(6):
    for j in range(4): ML.append(mfma16(MS[q], KF[0][j], Qf[q][j], 0 if j == 0 else MS[q]))
for q in range(6):
    m = NEGM[q][3]
    ML += [valu('v_max3_f32', m, MS[q][0], MS[q][1], m), valu('v_max3_f32', m, MS[q][2], MS[q][3], m)]
ML += [salu('s_add_u32', sT1, sT1, 4096), salu('s_add_u32', sIT, sIT, 1), salu('s_cmp_lt_u32', None, sIT, 64),
       branch('s_cbranch_scc1', 'L_maxloop')]
blk['max_loop'] = ML
blk['max_post'] = [branch('s_branch', 'L_stream')]
blk['exit'] = [label('L_exit'), raw("  s_endpgm")]

def head_trace(first, has_next):
    t = flat_dyn(blk['fuse'], first) + flat_dyn(blk['body_b'], False)
    for p in range(1, 4): t += flat_dyn(blk['body_a'] + blk['body_b'], has_next and p == 3)
    t += blk['bnd_chk'] + (blk['bnd_next'] if has_next else blk['drain'] + blk['end'])
    return t
trace = blk['entry'] + blk['stream'] + head_trace(True, True) + head_trace(False, False)
for _ in range(2):
    trace += blk['max_pre'] + blk['max_loop'] * 3 + blk['max_post'] + blk['stream'] + head_trace(True, False)
trace += blk['exit']
for b in blk: blk[b] = flat_static(blk[b])

resolve_waits(trace)
for it in range(10):
    n = check_trace(trace, fix=True, verbose=False)
    if n == 0: break
    if n >= 1000: sys.exit("pending-load errors")
assert check_trace(trace, fix=False) == 0
assert check_lds_protocol(trace)

order = ['entry', 'stream', 'fuse', 'body_a', 'body_b', 'bnd_chk', 'bnd_next', 'drain', 'end',
         'max_pre', 'max_loop', 'max_post', 'exit']
NAME = "standalone__mha_softmax__near_ridge_kernel"
out = f"""; MHA forward (B16 H32 Sq384 Sk1024 D128, bf16) - generated by gen/gen.py (hand-written generator)
; @launch grid=({NWG},1,1) block=(256,1,1) lds={LDS_TOTAL}
.amdgcn_target "amdgcn-amd-amdhsa--gfx950"
.text
.globl {NAME}
.p2align 8
.type {NAME},@function
{NAME}:
"""
for b in order:
    out += f"; ---- {b}\n"
    for i in blk[b]: out += i.render()
out += f""".section .rodata,"a"
.p2align 6
.amdhsa_kernel {NAME}
  .amdhsa_next_free_vgpr 512
  .amdhsa_next_free_sgpr 72
  .amdhsa_accum_offset 256
  .amdhsa_group_segment_fixed_size 0
  .amdhsa_kernarg_size 48
  .amdhsa_user_sgpr_count 2
  .amdhsa_user_sgpr_kernarg_segment_ptr 1
  .amdhsa_system_sgpr_workgroup_id_x 1
.end_amdhsa_kernel
"""
open(sys.argv[1], 'w').write(out)
nn = sum(i.pre_nop for b in ('body_a', 'body_b') for i in blk[b])
print("emitted", sys.argv[1], "insts:", {b: len(blk[b]) for b in order}, "body nops:", nn)
```

```python
import re

def R(kind, n, cnt=1):
    return [(kind, n + i) for i in range(cnt)]
def rs(kind, n, cnt=1):
    return f"{kind}{n}" if cnt == 1 else f"{kind}[{n}:{n+cnt-1}]"

class Reg:
    def __init__(self, kind, n, cnt=1):
        self.kind, self.n, self.cnt = kind, n, cnt
    def __str__(self): return rs(self.kind, self.n, self.cnt)
    def regs(self): return R(self.kind, self.n, self.cnt)
    def __getitem__(self, i):
        if isinstance(i, slice):
            a = i.start or 0; b = i.stop if i.stop is not None else self.cnt
            return Reg(self.kind, self.n + a, b - a)
        assert 0 <= i < self.cnt
        return Reg(self.kind, self.n + i, 1)
def V(n, c=1): return Reg('v', n, c)
def A(n, c=1): return Reg('a', n, c)
def S(n, c=1): return Reg('s', n, c)

def regs_of(x):
    if isinstance(x, Reg): return x.regs()
    if isinstance(x, str) and x in ('vcc', 'm0', 'exec', 'scc'): return [('x', x)]
    return []

class Inst:
    def __init__(self, text, kind, rd=(), wr=(), srcc=(), ab=(), tag=None, wait=None, cost=4, passes=0):
        self.text, self.kind = text, kind
        self.rd, self.wr, self.srcc, self.ab = list(rd), list(wr), list(srcc), list(ab)
        self.tag, self.wait, self.cost, self.passes = tag, wait, cost, passes
        self.pre_nop = 0
        self.waitN = None
    def render(self):
        out = ""
        n = self.pre_nop
        while n > 0:
            k = min(n, 16); out += f"  s_nop {k-1}\n"; n -= k
        if self.kind == 'waitv':
            N = 0 if self.waitN is None else min(self.waitN, 63)
            return out + f"  s_waitcnt vmcnt({N})\n"
        if self.kind == 'waitl':
            N = 0 if self.waitN is None else min(self.waitN, 15)
            return out + f"  s_waitcnt lgkmcnt({N})\n"
        if self.kind == 'label': return out + f"{self.text}:\n"
        if self.kind == 'raw' or self.text.startswith('  '): return out + self.text + "\n"
        return out + f"  {self.text}\n"

def _fmt(x): return str(x)

def valu(op, dst, *src, extra="", trans=False, rmw=False, wr_extra=(), rd_extra=()):
    rd = []
    for s in src: rd += regs_of(s)
    wr = regs_of(dst)
    if rmw: rd += wr
    rd += [r for x in rd_extra for r in regs_of(x)]
    wr2 = wr + [r for x in wr_extra for r in regs_of(x)]
    t = f"{op} {_fmt(dst)}, " + ", ".join(_fmt(s) for s in src) + (" " + extra if extra else "")
    return Inst(t, 'trans' if trans else 'valu', rd, wr2, cost=8 if trans else 4)
def permswap(op, a, b):
    i = Inst(f"{op} {a}, {b}", 'valu', regs_of(a) + regs_of(b), regs_of(a) + regs_of(b)); i.perm = True; return i
def salu(op, dst, *src, scc_w=True, scc_r=False):
    rd = []
    for s in src: rd += regs_of(s)
    wr = regs_of(dst) if dst is not None else []
    if scc_w: wr = wr + [('x', 'scc')]
    if scc_r: rd = rd + [('x', 'scc')]
    ops = ([_fmt(dst)] if dst is not None else []) + [_fmt(s) for s in src]
    return Inst(f"{op} " + ", ".join(ops), 'salu', rd, wr)
def mfma16(d, a, b, c):
    srcc = regs_of(c)
    return Inst(f"v_mfma_f32_16x16x32_bf16 {d}, {a}, {b}, {c}", 'mfma', regs_of(a) + regs_of(b) + srcc, regs_of(d),
                srcc=srcc, ab=regs_of(a) + regs_of(b), cost=8, passes=4)
def mfma4(d, a, b, c):
    srcc = regs_of(c)
    return Inst(f"v_mfma_f32_4x4x4_16b_bf16 {d}, {a}, {b}, {c}", 'mfma', regs_of(a) + regs_of(b) + srcc, regs_of(d),
                srcc=srcc, ab=regs_of(a) + regs_of(b), cost=cfg_mf4_cost, passes=2)
cfg_mf4_cost = 4
def ds_read(op, dst, addr, off, tag=None):
    return Inst(f"{op} {dst}, {addr} offset:{off}", 'ds_read', regs_of(addr), regs_of(dst), tag=tag)
def ds_write(op, addr, data, off):
    return Inst(f"{op} {addr}, {data} offset:{off}", 'ds_write', regs_of(addr) + regs_of(data), [])
def buf_load(op, dst, voff, srd, soff, off, tag=None, flags=""):
    return Inst(f"{op} {dst}, {voff}, {srd}, {soff} offen offset:{off}{flags}", 'vmem_load',
                regs_of(voff) + regs_of(srd) + regs_of(soff), regs_of(dst), tag=tag)
def buf_store(op, data, voff, srd, soff, off, flags=""):
    i = Inst(f"{op} {data}, {voff}, {srd}, {soff} offen offset:{off}{flags}", 'vmem_store',
                regs_of(voff) + regs_of(srd) + regs_of(soff) + regs_of(data), []); i.sdata = regs_of(data); return i
def dma(voff, srd, soff, off, tag, flags="", cost=8):
    return Inst(f"buffer_load_dwordx4 {voff}, {srd}, {soff} offen offset:{off}{flags} lds", 'dma',
                regs_of(voff) + regs_of(srd) + regs_of(soff) + [('x', 'm0')], [], tag=tag, cost=cost)
def waitv(*tags): return Inst("", 'waitv', wait=list(tags))
def waitl(*regs):
    w = []
    for r in regs: w += regs_of(r)
    return Inst("", 'waitl', wait=w)
class Ghost:
    def __init__(self, o): object.__setattr__(self, 'o', o)
    def __getattr__(self, k): return getattr(self.o, k)
    def __setattr__(self, k, v): setattr(self.o, k, v)
class Remap:
    def __init__(self, o, sh): object.__setattr__(self, 'o', o); object.__setattr__(self, 'sh', sh)
    def _m(self, t): return (t[0], (t[1] + self.sh) % 4) + tuple(t[2:]) if t and t[0] == 't' else t
    def __getattr__(self, k):
        if k == 'tag': return self._m(self.o.tag)
        if k == 'wait' and self.o.kind == 'waitv': return [self._m(t) for t in self.o.wait]
        return getattr(self.o, k)
    def __setattr__(self, k, v): setattr(self.o, k, v)
def barrier(): return Inst("s_barrier", 'barrier')
def label(n): return Inst(n, 'label', cost=0)
def branch(op, target):
    rd = [('x', 'scc')] if 'scc' in op else ([('x', 'vcc')] if 'vcc' in op else [])
    return Inst(f"{op} {target}", 'branch', rd)
def raw(t, kind='raw', rd=(), wr=()):
    return Inst(t if kind == 'raw' else t, kind, [r for x in rd for r in regs_of(x)], [r for x in wr for r in regs_of(x)])
def nop(n): return Inst(f"s_nop {n}", 'nop')

def slots(i):
    if i.kind in ('label',): return 0
    if i.kind == 'nop': return int(i.text.split()[1]) + 1
    return 1

def resolve_waits(trace):
    vq = []
    lq = []
    for i in trace:
        if isinstance(i, Ghost) or getattr(i, 'optional', False): continue
        if i.kind in ('vmem_load', 'vmem_store', 'dma'): vq.append(i)
        elif i.kind in ('ds_read', 'ds_write'): lq.append(i)
        elif i.kind == 'waitv':
            if not i.wait: n = 0
            else:
                last = -1
                for k in range(len(vq) - 1, -1, -1):
                    if vq[k].tag in i.wait: last = k; break
                assert last >= 0, f"waitv: no op with tag {i.wait}"
                n = len(vq) - 1 - last
            i.waitN = n if i.waitN is None else min(i.waitN, n)
        elif i.kind == 'waitl':
            if not i.wait: n = 0
            else:
                last = -1; ws = set(i.wait)
                for k in range(len(lq) - 1, -1, -1):
                    if ws & set(lq[k].wr): last = k; break
                assert last >= 0, f"waitl: no ds op writing {i.wait[:4]}"
                n = len(lq) - 1 - last
            i.waitN = n if i.waitN is None else min(i.waitN, n)

def check_trace(trace, fix=True, verbose=False):
    nprob = 0
    pos = 0
    lastw = {}
    lastc = {}
    laststore = {}
    pend_v = []
    pend_l = []
    def need(i, have, req, why):
        nonlocal nprob
        if have < req:
            nprob += 1
            if verbose or not fix: print(f"HAZARD {why}: have {have} need {req} at '{i.render().strip()}'")
            if fix: i.pre_nop += (req - have)
    for i in trace:
        pos += i.pre_nop
        if i.kind == 'label': continue
        add = 0
        before = i.pre_nop
        touched = set(i.rd) | set(i.wr)
        for q, nm in ((pend_v, 'vmem'), (pend_l, 'lds')):
            for o in q:
                if set(o.wr) & touched:
                    print(f"ERROR: '{i.render().strip()}' touches regs of outstanding {nm} op '{o.render().strip()}'"); nprob += 1000
        for r in i.rd:
            if r in lastw:
                p, w = lastw[r]; have = pos - p + (i.pre_nop - before)
                if w.kind == 'mfma':
                    if i.kind == 'mfma':
                        if r in i.ab: need(i, have, 8, 'mfma D->AB')
                        elif r in i.srcc:
                            if set(i.srcc) == set(w.wr):
                                if w.passes == 2: need(i, have, 2, 'mfma2 D->C')
                            else: need(i, have, 6, 'mfma D->C overlap')
                    elif i.kind in ('valu', 'trans', 'ds_write', 'ds_read', 'vmem_store', 'vmem_load', 'dma'):
                        need(i, have, 8, 'mfma D->read')
                elif w.kind in ('valu', 'trans'):
                    if r[0] in 'va':
                        if i.kind == 'mfma': need(i, have, 2, 'valu->mfma')
                        if getattr(i, 'perm', False): need(i, have, 2, 'valu->permlane')
                        if w.kind == 'trans' and i.kind == 'valu': need(i, have, 1, 'trans->valu')
                        if 'readfirstlane' in i.text or 'readlane' in i.text: need(i, have, 1, 'valu->readlane')
                    else:
                        if i.kind in ('valu', 'trans'): need(i, have, 2, 'valu sgpr->valu')
                        if i.kind in ('vmem_load', 'vmem_store', 'dma'): need(i, have, 5, 'valu sgpr->vmem')
                        if i.kind in ('salu', 'branch'): need(i, have, 2, 'valu sgpr->salu(pad)')
                elif w.kind == 'salu':
                    if r == ('x', 'm0') and i.kind == 'dma': need(i, have, 1, 'm0->dma')
        for r in i.wr:
            if r in lastw:
                p, w = lastw[r]; have = pos - p + (i.pre_nop - before)
                if w.kind == 'mfma' and i.kind in ('valu', 'trans', 'ds_read', 'vmem_load'):
                    need(i, have, 8, 'mfma D->WAW')
                if w.kind == 'mfma' and i.kind == 'mfma' and not (set(i.srcc) == set(w.wr)) :
                    need(i, have, 6, 'mfma D->D WAW')
            if r in lastc and i.kind in ('valu', 'trans'):
                p, w = lastc[r]; have = pos - p + (i.pre_nop - before)
                need(i, have, 3, 'mfma C WAR')
            if r in laststore and i.kind != 'mfma':
                have = pos - laststore[r] + (i.pre_nop - before)
                need(i, have, 2, 'store data WAR')
        pos += (i.pre_nop - before)
        pos += slots(i)
        for r in i.wr: lastw[r] = (pos, i)
        if i.kind == 'mfma':
            for r in i.srcc: lastc[r] = (pos, i)
        if i.kind == 'vmem_store':
            for r in i.sdata: laststore[r] = pos
        if i.kind in ('vmem_load', 'vmem_store', 'dma'): pend_v.append(i)
        elif i.kind in ('ds_read', 'ds_write'): pend_l.append(i)
        elif i.kind == 'waitv':
            n = min(i.waitN or 0, 63); pend_v = pend_v[len(pend_v) - n:] if n else []
        elif i.kind == 'waitl':
            n = min(i.waitN or 0, 15); pend_l = pend_l[len(pend_l) - n:] if n else []
        elif i.kind == 'raw' and 's_waitcnt' in i.text:
            if 'vmcnt(0)' in i.text: pend_v = []
            if 'lgkmcnt(0)' in i.text: pend_l = []
    return nprob

def check_lds_protocol(trace):
    vq = []; lq = []
    state = {}
    ok = True
    for i in trace:
        if i.kind in ('vmem_load', 'vmem_store', 'dma'):
            ent = [i, None]
            if i.kind == 'dma' and i.tag and i.tag[0] == 't':
                key = i.tag[1:]
                st = state.setdefault(key, dict(gen=0, pieces=0, done=0, visible=False, rd_out=0, rd_unfenced=False))
                if i.piece == 0:
                    if st['rd_out'] or st['rd_unfenced']:
                        print(f"LDS WAR violation: DMA into {key} while reads not fenced"); ok = False
                    st.update(gen=st['gen'] + 1, pieces=0, done=0, visible=False)
                st['pieces'] += 1
                ent[1] = (key, st['gen'])
            vq.append(ent)
        elif i.kind in ('ds_read', 'ds_write'):
            ent = [i, None]
            if i.tag and i.tag[0] == 't':
                key = i.tag[1:]; st = state.get(key)
                if not st or not st['visible']:
                    print(f"LDS RAW violation: read of {key} not visible: {i.render().strip()}"); ok = False
                else:
                    st['rd_out'] += 1; ent[1] = key
            lq.append(ent)
        elif i.kind == 'waitv' or (i.kind == 'raw' and 'vmcnt(0)' in i.text):
            n = 0 if i.kind == 'raw' else min(i.waitN or 0, 63)
            done, vq = (vq[:len(vq) - n], vq[len(vq) - n:]) if n else (vq, [])
            for o, k in done:
                if k and state[k[0]]['gen'] == k[1]: state[k[0]]['done'] += 1
        if i.kind == 'waitl' or (i.kind == 'raw' and 'lgkmcnt(0)' in i.text):
            n = 0 if i.kind == 'raw' else min(i.waitN or 0, 15)
            done, lq = (lq[:len(lq) - n], lq[len(lq) - n:]) if n else (lq, [])
            for o, k in done:
                if k: state[k]['rd_out'] -= 1; state[k]['rd_unfenced'] = True
        if i.kind == 'barrier':
            for st in state.values():
                if st['pieces'] == 4 and st['done'] == 4: st['visible'] = True
                if st['rd_out'] == 0: st['rd_unfenced'] = False
    return ok
```

```python
import sys, math, struct
from asmlib import *

def f2u(f): return struct.unpack('<I', struct.pack('<f', f))[0]

class Cfg:
    dma_flags = " nt"
    q_flags = " nt"
    st_flags = ""
    dma_cost = 8
    thr = 2.0 ** 32
    stamps = 0
    otouch = 0
    nostore = 0
    rowsum = 'mfma'
    bt = 4
    q45late = 0
cfg = Cfg()
for a in sys.argv[2:]:
    k, v = a.split('=', 1)
    cur = getattr(cfg, k)
    setattr(cfg, k, type(cur)(v) if not isinstance(cur, str) else v.replace('_', ' '))

NWG = 256
QH = 98304
KH = 262144
Q_BYTES = 512 * QH
K_BYTES = 512 * KH
OOB = 0x10000000
LDS_RING = 131072
LDS_TOTAL = LDS_RING + 32768
SCALE = (128 ** -0.5) * math.log2(math.e)

vTID = V(0)
aK = [V(1 + j) for j in range(4)]
aV = [V(5 + d) for d in range(8)]
dK = [V(13 + i) for i in range(4)]
dV = [V(17 + i) for i in range(2)]
vQo, vOo = V(19), V(20)
vX = V(21)
RL = V(22, 2)
T4 = [V(24, 4), V(28, 4)]
Sb = [V(32, 8), V(40, 8)]
Pb = [V(48, 4), V(52, 4)]
NEGM = [V(56 + 4 * q, 4) for q in range(6)]
Qf = [[V(80 + (q * 4 + j) * 4, 4) for j in range(4)] for q in range(6)]
def Oblk(q, db):
    if q < 4: return A((q * 8 + db) * 4, 4)
    return V(176 + ((q - 4) * 8 + db) * 4, 4)
X8 = V(240, 8)
Y8 = V(248, 8)
KF = [[A(128 + (kb * 4 + j) * 4, 4) for j in range(4)] for kb in range(2)]
VF = [A(160 + db * 4, 4) for db in range(8)]
Lb = [A(192 + 4 * q, 4) for q in range(6)]
ONES = A(216, 4)
S0 = [Sb[0], Y8, Sb[1], Sb[0], Y8, Sb[1]]
QST = [[A(220 + (q * 4 + j) * 4, 4) for j in range(4)] for q in range(2)]
vQs = V(0)

srdQ, srdK, srdV, srdO = S(8, 4), S(12, 4), S(16, 4), S(20, 4)
sWG = S(2)
sW, sM0B, sHEAD, sNEXT, sDOFF, sNB, sPASS, sMODE, sFLAGS, sQO, sBIT, sTHR = [S(24 + i) for i in range(12)]
sARG = S(36, 8)
sC = S(44, 2)
sMASK, sFIRST, sT0, sT1, sIT, sOH, sQH, sQP = S(46), S(47), S(48), S(49), S(50), S(51), S(62), S(63)
M0 = 'm0'
sQO2, sM0Q, sBITN, M0S, sFIN, sMa, sMb, sQP1 = [S(64 + i) for i in range(8)]

def smov(d, x): return salu('s_mov_b32', d, x, scc_w=False)
srdW = S(56, 4); sST = S(52, 2); sSTO = S(54); sST2 = S(60, 2)
sSTI = S(55)
def stamp():
    if not cfg.stamps: return []
    t0, t1 = T4[0][0], T4[0][1]
    def acc_r(d, a): return Inst(f"v_accvgpr_read_b32 {d}, {a}", 'valu', regs_of(a), regs_of(d))
    def acc_w(a, d): return Inst(f"v_accvgpr_write_b32 {a}, {d}", 'valu', regs_of(d), regs_of(a))
    def wl(d, s): return Inst(f"v_writelane_b32 {d}, {s}, {sSTI}", 'valu', regs_of(d) + regs_of(s) + regs_of(sSTI), regs_of(d))
    return [raw(f"  s_memtime {sST}", wr=[sST]), raw(f"  s_memrealtime {sST2}", wr=[sST2]), acc_r(t0, A(252)), acc_r(t1, A(253)),
            raw("  s_waitcnt lgkmcnt(0)"), smov(M0S, M0), smov(M0, sSTI), nop(1),
            Inst(f"v_writelane_b32 {t0}, {sST[0]}, m0", 'valu', regs_of(t0), regs_of(t0)),
            Inst(f"v_writelane_b32 {t1}, {sST2[0]}, m0", 'valu', regs_of(t1), regs_of(t1)),
            smov(M0, M0S), acc_w(A(252), t0), acc_w(A(253), t1), salu('s_add_u32', sSTI, sSTI, 1)]
def stamp_dump():
    if not cfg.stamps: return []
    t = T4[0]
    st = Inst(f"buffer_store_dwordx2 {t[0:2]}, {t[2]}, {srdW}, {sSTO} offen", 'vmem_store', regs_of(t[0:3]) + regs_of(srdW) + regs_of(sSTO), [])
    st.sdata = regs_of(t[0:2])
    return [Inst(f"v_accvgpr_read_b32 {t[0]}, a252", 'valu', regs_of(A(252)), regs_of(t[0])),
            Inst(f"v_accvgpr_read_b32 {t[1]}, a253", 'valu', regs_of(A(253)), regs_of(t[1])),
            valu('v_mbcnt_lo_u32_b32', t[2], -1, 0), valu('v_mbcnt_hi_u32_b32', t[2], -1, t[2]), valu('v_lshlrev_b32', t[2], 3, t[2]), st]

def phase(pre, mf, fa, fb=(), fa_start=0):
    out = list(pre)
    fb = sorted(fb, key=lambda x: x[0])
    total = sum(i.cost for i in fa) + sum(i.cost for _, l in fb for i in l)
    ng = len(mf)
    budget = max(8, int(math.ceil(total / max(ng - fa_start, 1) / 4.0)) * 4)
    ia = 0
    fb = list(fb)
    for g, m in enumerate(mf):
        out.append(m)
        rem = budget
        while fb and fb[0][0] <= g:
            c = sum(i.cost for i in fb[0][1])
            if c <= rem or rem == budget:
                out += fb[0][1]; rem -= c; fb.pop(0)
            else: break
        while g >= fa_start and ia < len(fa) and fa[ia].cost <= rem:
            out.append(fa[ia]); rem -= fa[ia].cost; ia += 1
    for _, l in fb: out += l
    out += fa[ia:]
    return out

def qk_mfmas(q, Sdst, cinit):
    L = []
    for kb in range(2):
        d = Sdst[4 * kb:4 * kb + 4]
        for j in range(4):
            L.append(mfma16(d, KF[kb][j], Qf[q][j], (cinit if j == 0 else d)))
    return L
def pv_mfmas(q, P, first=False):
    L = [mfma16(Oblk(q, db), VF[db], P, 0 if first else Oblk(q, db)) for db in range(8)]
    if cfg.rowsum == 'mf4':
        L.insert(4, mfma4(Lb[q], ONES[0:2], P[0:2], 0 if first else Lb[q]))
        L.append(mfma4(Lb[q], ONES[0:2], P[2:4], Lb[q]))
    elif cfg.rowsum == 'mfma' or first: L.append(mfma16(Lb[q], ONES, P, 0 if first else Lb[q]))
    return L
def sm_valu(Ssrc, P, lacc=None):
    e = [valu('v_exp_f32', Ssrc[i], Ssrc[i], trans=True) for i in range(8)]
    c = [valu('v_cvt_pk_bf16_f32', P[i], Ssrc[2 * i], Ssrc[2 * i + 1]) for i in range(4)]
    if lacc is not None:
        a = [valu('v_add_f32', lacc, lacc, Ssrc[i]) for i in range(8)]
        return [e[0], e[1], a[0], c[0], e[2], a[1], a[2], e[3], e[4], a[3], c[1], e[5], a[4], a[5], e[6], e[7], c[2], a[6], a[7], c[3]]
    return [e[0], e[1], e[2], c[0], e[3], e[4], c[1], e[5], e[6], c[2], e[7], c[3]]
def k_read(kb, j, slot, sub):
    return ds_read('ds_read_b128', KF[kb][j], aK[j], slot * 16384 + sub * 8192 + kb * 4096, tag=('t', slot, 'K'))
def v_reads(db, slot, sub):
    return [ds_read('ds_read_b64_tr_b16', VF[db][2 * h:2 * h + 2], aV[db], slot * 16384 + sub * 8192 + h * 4096, tag=('t', slot, 'V'))
            for h in range(2)]
def dma_piece(part, slot, idx):
    if part == 'K': d = dma(dK[idx], srdK, sDOFF, idx * 1024, ('t', slot, 'K'), cfg.dma_flags, cfg.dma_cost)
    else: d = dma(dV[idx & 1], srdV, sDOFF, idx * 1024, ('t', slot, 'V'), cfg.dma_flags, cfg.dma_cost)
    d.piece = idx
    return d
def set_m0(part, slot):
    return salu('s_add_u32', M0, sM0B, (65536 if part == 'V' else 0) + slot * 16384)
ALLK = [KF[kb][j] for kb in range(2) for j in range(4)]

def q_loads():
    L = [salu('s_mul_i32', sQO, sHEADQ, QH, scc_w=False)]
    for q in range(6):
        for j in range(4):
            L.append(buf_load('buffer_load_dwordx4', Qf[q][j], vQo, srdQ, sQO, j * 64, tag=('q', q), flags=cfg.q_flags))
        if q < 5: L.append(salu('s_add_u32', sQO, sQO, 4096))
    return L
def q_scale():
    L = []
    for q in range(6):
        L.append(waitv(('q', q)))
        for j in range(4):
            x = Qf[q][j]; t = X8 if (j & 1) == 0 else Y8
            for i in range(4):
                L.append(valu('v_lshlrev_b32', t[2 * i], 16, x[i]))
                L.append(valu('v_and_b32', t[2 * i + 1], sMASK, x[i]))
            for i in range(4):
                L.append(valu('v_pk_mul_f32', t[2 * i:2 * i + 2], t[2 * i:2 * i + 2], sC))
            for i in range(4):
                L.append(valu('v_cvt_pk_bf16_f32', x[i], t[2 * i], t[2 * i + 1]))
    return L
def minit_reset():
    return [valu('v_mov_b32', NEGM[q][3], '0xff800000') for q in range(6)]

def max_valu(q):
    s = S0[q]; m = NEGM[q][3]; t = RL[q & 1]
    L = [valu('v_max3_f32', m, s[0], s[1], m), valu('v_max3_f32', m, s[2], s[3], m),
         valu('v_max3_f32', m, s[4], s[5], m), valu('v_max3_f32', m, s[6], s[7], m),
         valu('v_mov_b32', t, m), permswap('v_permlane32_swap_b32', t, m), valu('v_max_f32', m, t, m),
         valu('v_mov_b32', t, m), permswap('v_permlane16_swap_b32', t, m), valu('v_max_f32', t, t, m)]
    L += [valu('v_sub_f32', s[i], s[i], t) for i in range(8)]
    L += [valu('v_sub_f32', NEGM[q][i], 0, t) for i in range(4)]
    return L

blk = {}
E = []
E += [salu('s_cmp_ge_u32', None, sWG, NWG), branch('s_cbranch_scc1', 'L_exit')]
E += [raw(f"  s_load_dwordx8 {sARG}, s[0:1], 0", wr=[sARG])]
E += [valu('v_lshrrev_b32', vX, 6, vTID), valu('v_and_b32', vTID, 63, vTID)]
E += [Inst(f"v_readfirstlane_b32 {sW}, {vX}", 'valu', regs_of(vX), regs_of(sW))]
tA, tB, tC, tD = X8[0], X8[1], X8[2], X8[3]
tQ, tG = X8[4], X8[5]
E += [valu('v_and_b32', tQ, 15, vTID), valu('v_lshrrev_b32', tG, 4, vTID)]
E += [valu('v_xor_b32', tA, tG, tQ), valu('v_lshlrev_b32', tB, 8, tQ)]
for j in range(4):
    E += [valu('v_xor_b32', tC, 4 * j, tA), valu('v_lshl_add_u32', aK[j], tC, 4, tB)]
E += [valu('v_lshrrev_b32', tA, 2, vTID), valu('v_and_b32', tC, 7, tA), valu('v_lshlrev_b32', tA, 8, tA),
      valu('v_and_b32', tB, 3, vTID), valu('v_lshl_add_u32', tA, tB, 3, tA), valu('v_add_u32', tA, 65536, tA)]
for db in range(8):
    E += [valu('v_xor_b32', tB, db, tC), valu('v_lshl_add_u32', aV[db], tB, 5, tA)]
E += [salu('s_lshl_b32', sM0B, sW, 12)]
E += [valu('v_lshlrev_b32', tB, 8, tG), valu('v_add_u32', tB, sM0B, tB), valu('v_xor_b32', tA, tG, tQ)]
for i in range(4):
    E += [valu('v_xor_b32', tC, 4 * i, tA), valu('v_lshl_add_u32', dK[i], tC, 4, tB)]
E += [valu('v_lshlrev_b32', tA, 1, tG), valu('v_xor_b32', tA, tA, tQ)]
for i in range(2):
    E += [valu('v_xor_b32', tC, 8 * i, tA), valu('v_lshl_add_u32', dV[i], tC, 4, tB)]
E += [salu('s_mul_i32', sT0, sW, 96 * 256, scc_w=False)]
E += [valu('v_lshlrev_b32', tA, 8, tQ), valu('v_add_u32', tA, sT0, tA), valu('v_lshl_add_u32', vQo, tG, 4, tA),
      valu('v_lshlrev_b32', vOo, 4, vTID), valu('v_add_u32', vOo, sT0, vOo)]
E += [smov(sMa, sM0B), salu('s_add_u32', sMb, sM0B, 32768)]
E += [salu('s_lshl_b32', sM0Q, sW, 13), salu('s_add_u32', sM0Q, sM0Q, LDS_RING),
      valu('v_lshlrev_b32', vQs, 4, vTID), valu('v_add_u32', vQs, sM0Q, vQs)]
E += [valu('v_lshrrev_b32', tA, 1, tG), valu('v_xor_b32', tA, tA, tQ), valu('v_lshlrev_b32', tA, 4, tA), valu('v_lshl_add_u32', tA, tQ, 8, tA),
      valu('v_and_b32', tB, 1, tG), valu('v_lshl_add_u32', tA, tB, 3, tA), valu('v_add_u32', tA, sM0Q, tA),
      Inst("v_accvgpr_write_b32 a254, " + str(tA), 'valu', regs_of(tA), regs_of(A(254))),
      valu('v_xor_b32', tA, tQ, tG), valu('v_lshlrev_b32', tA, 4, tA), valu('v_lshl_add_u32', tA, tG, 8, tA), valu('v_add_u32', tA, sM0Q, tA),
      Inst("v_accvgpr_write_b32 a255, " + str(tA), 'valu', regs_of(tA), regs_of(A(255)))]
E += [valu('v_mov_b32', tA, '0x3f803f80')]
E += [Inst(f"v_accvgpr_write_b32 {ONES[i]}, {tA}", 'valu', regs_of(tA), regs_of(ONES[i])) for i in range(4)]
E += [smov(sC[0], hex(f2u(SCALE))), smov(sC[1], hex(f2u(SCALE))), smov(sMASK, '0xffff0000'), smov(sTHR, hex(f2u(cfg.thr)))]
E += [smov(sHEAD, sWG), salu('s_add_u32', sNEXT, sWG, NWG), smov(sMODE, 0), smov(sFLAGS, 0), smov(sBIT, 1), smov(sFIN, 0)]
E += minit_reset()
E += [raw("  s_waitcnt lgkmcnt(0)")]
for srd, k, nb in ((srdQ, 0, Q_BYTES), (srdK, 2, K_BYTES), (srdV, 4, K_BYTES), (srdO, 6, Q_BYTES)):
    E += [smov(srd[0], sARG[k]), salu('s_and_b32', srd[1], sARG[k + 1], '0xffff'), smov(srd[2], nb), smov(srd[3], '0x20000')]
if cfg.stamps:
    E += [raw(f"  s_load_dwordx2 {srdW[0:2]}, s[0:1], 40", wr=[srdW[0:2]]), raw("  s_waitcnt lgkmcnt(0)"),
          salu('s_and_b32', srdW[1], srdW[1], '0xffff'), smov(srdW[2], 1 << 20), smov(srdW[3], '0x20000'),
          salu('s_lshl_b32', sSTO, sWG, 2), salu('s_add_u32', sSTO, sSTO, sW), salu('s_lshl_b32', sSTO, sSTO, 9)]
    E += [smov(sSTI, 0), smov(M0, 0), Inst('v_accvgpr_write_b32 a252, 0', 'valu', [], regs_of(A(252))), Inst('v_accvgpr_write_b32 a253, 0', 'valu', [], regs_of(A(253)))]
    E += stamp()
blk['entry'] = E

def q_load_q(q, restore_m0=None):
    L = [salu('s_add_u32', sQO, sQH, q * 4096)]
    if q < 2:
        L += [buf_load('buffer_load_dwordx4', QST[q][j], vQo, srdQ, sQO, j * 64, tag=('q', q), flags=cfg.q_flags) for j in range(4)]
    elif q < 4:
        for j in range(4):
            L.append(salu('s_add_u32', M0, sM0Q, ((q - 2) * 4 + j) * 1024 - j * 64))
            d = dma(vQo, srdQ, sQO, j * 64, ('q', q), cfg.q_flags, cfg.dma_cost); d.piece = j; L.append(d)
        if restore_m0: L.append(restore_m0)
    else:
        L += [buf_load('buffer_load_dwordx4', Qf[q][j], vQo, srdQ, sQO, j * 64, tag=('q', q), flags=cfg.q_flags) for j in range(4)]
    return L
def q_unstage(q):
    if q < 2:
        return [Inst(f"v_accvgpr_read_b32 {Qf[q][j][i]}, {QST[q][j][i]}", 'valu', regs_of(QST[q][j][i]), regs_of(Qf[q][j][i]))
                for j in range(4) for i in range(4)]
    if q < 4:
        return [ds_read('ds_read_b128', Qf[q][j], vQs, ((q - 2) * 4 + j) * 1024) for j in range(4)]
    return []
def q_scale_q(q):
    L = []
    for j in range(4):
        x = Qf[q][j]; t = X8
        for i in range(4):
            L.append(valu('v_lshlrev_b32', t[2 * i], 16, x[i]))
            L.append(valu('v_and_b32', t[2 * i + 1], sMASK, x[i]))
        for i in range(4):
            L.append(valu('v_pk_mul_f32', t[2 * i:2 * i + 2], t[2 * i:2 * i + 2], sC))
        for i in range(4):
            L.append(valu('v_cvt_pk_bf16_f32', x[i], t[2 * i], t[2 * i + 1]))
    return L
_ti = [0]
def epi_q(q, tsets):
    D = [salu('s_add_u32', sQO2, sOH, q * 4096)]
    D += [Inst(f"v_accvgpr_read_b32 {RL[1]}, {Lb[q][0]}", 'valu', regs_of(Lb[q][0]), regs_of(RL[1]))]
    if cfg.rowsum == 'mf4':
        D += [valu('v_mov_b32', RL[0], RL[1]), permswap('v_permlane32_swap_b32', RL[0], RL[1]), valu('v_add_f32', RL[1], RL[0], RL[1]),
              valu('v_mov_b32', RL[0], RL[1]), permswap('v_permlane16_swap_b32', RL[0], RL[1]), valu('v_add_f32', RL[1], RL[0], RL[1])]
    D += [valu('v_rcp_f32', RL[0], RL[1], trans=True)]
    if q == 0: D += [valu('v_mov_b32', vX, RL[1])]
    else: D += [valu('v_add_f32', vX, vX, RL[1])]
    for dp in range(4):
        if q < 4:
            t = tsets[dp % len(tsets)]
            for bi in range(2):
                o = Oblk(q, 2 * dp + bi)
                D += [Inst(f"v_accvgpr_read_b32 {t[4*bi+i]}, {o[i]}", 'valu', regs_of(o[i]), regs_of(t[4 * bi + i])) for i in range(4)]
        else:
            o = Oblk(q, 2 * dp); t = V(o.n, 8)
        for i in range(4):
            D += [valu('v_pk_mul_f32', t[2 * i:2 * i + 2], t[2 * i:2 * i + 2], RL, extra="op_sel_hi:[1,0]")]
        T = T4[_ti[0] % 2]; _ti[0] += 1
        for i in range(4): D += [valu('v_cvt_pk_bf16_f32', T[i], t[2 * i], t[2 * i + 1])]
        D += [permswap('v_permlane16_swap_b32', T[0], T[2]), permswap('v_permlane16_swap_b32', T[1], T[3])]
        D += [buf_store('buffer_store_dwordx4', T, vOo, srdO, sQO2, dp * 64, flags=cfg.st_flags)]
    return D
aWA, aRA = A(254), A(255)
def acc_read(d, a): return Inst(f"v_accvgpr_read_b32 {d}, {a}", 'valu', regs_of(a), regs_of(d))
def oreg(q, t):
    return Oblk(q, t)
def epi_a(q):
    half = (q & 1) * 4096
    D = [acc_read(RL[1], Lb[q][0]), valu('v_rcp_f32', RL[0], RL[1], trans=True)]
    D += [valu('v_mov_b32', vX, RL[1]) if q == 0 else valu('v_add_f32', vX, vX, RL[1])]
    D += [acc_read(RL[1], aWA)]
    for dp in range(4):
        if q < 4:
            t = X8
            for bi in range(2):
                o = Oblk(q, 2 * dp + bi)
                D += [acc_read(t[4 * bi + i], o[i]) for i in range(4)]
        else:
            o = Oblk(q, 2 * dp); t = V(o.n, 8)
        mul = [Inst(f"v_pk_mul_f32 {t[2*i:2*i+2]}, {t[2*i:2*i+2]}, {RL} op_sel_hi:[1,0]", 'valu',
                    regs_of(t[2 * i:2 * i + 2]) + regs_of(RL[0]), regs_of(t[2 * i:2 * i + 2])) for i in range(4)]
        D += mul
        T = T4[dp % 2]
        D += [valu('v_cvt_pk_bf16_f32', T[i], t[2 * i], t[2 * i + 1]) for i in range(4)]
        for bi in range(2):
            db = 2 * dp + bi
            D += [ds_write('ds_write_b64', RL[1], T[2 * bi:2 * bi + 2], half)]
            if db < 7: D += [valu('v_xor_b32', RL[1], (db ^ (db + 1)) << 5, RL[1])]
    D += [acc_read(RL[1], aRA)]
    for t in range(4):
        D += [ds_read('ds_read_b128', oreg(q, t), RL[1], half + t * 1024)]
        if t < 3: D += [valu('v_xor_b32', RL[1], (t ^ (t + 1)) << 6, RL[1])]
    return D
def epi_b(q):
    D = [salu('s_add_u32', sQO2, sOH, q * 4096), waitl(*[oreg(q, t) for t in range(4)])]
    D += [buf_store('buffer_store_dwordx4', oreg(q, t), vOo, srdO, sQO2, t * 1024, flags=cfg.st_flags) for t in range(4)]
    return D
def fail_check():
    return [Inst(f"v_cmp_nge_f32 vcc, {sTHR}, {vX}", 'valu', regs_of(sTHR) + regs_of(vX), [('x', 'vcc')]),
            salu('s_cmp_lg_u64', None, 'vcc', 0), salu('s_cselect_b32', sT0, sBIT, 0, scc_w=False, scc_r=True),
            salu('s_or_b32', sFLAGS, sFLAGS, sT0)]

def is_pk(i): return 'v_pk_' in i.text
def vphase(mf, seq, start=0):
    n = len(seq); out = []
    if not mf: return list(seq)
    tot = sum(i.cost for i in seq if isinstance(i, Inst))
    step = (tot * (1.0 - start)) / len(mf)
    acc = 0.0; nxt = tot * start; k = 0
    for idx, i in enumerate(seq):
        if k < len(mf) and acc >= nxt:
            look = [x for x in seq[idx:idx + 3] if isinstance(x, Inst)]
            if not any(is_pk(x) for x in look):
                m = mf[k]; out += (m if isinstance(m, list) else [m]); k += 1; nxt += step
        out.append(i)
        if isinstance(i, Inst): acc += i.cost
    for m in mf[k:]: out += (m if isinstance(m, list) else [m])
    return out

class Cond:
    n = 0
    def __init__(self, first, body):
        self.first, self.body = first, body
        self.lab = f"L_c{Cond.n}"; Cond.n += 1
        self.head = [salu('s_cmp_eq_u32', None, sFIRST, 0), branch('s_cbranch_scc1' if first else 's_cbranch_scc0', self.lab)]
        self.tail = [label(self.lab)]
    def static(self): return self.head + self.body + self.tail
    def dyn(self, first): return self.head + (self.body if first == self.first else []) + self.tail
def flat_static(seq): return [y for x in seq for y in (x.static() if hasattr(x, 'static') else [x])]
def flat_dyn(seq, flag):
    out = []
    for x in seq:
        if hasattr(x, 'dyn'): out += x.dyn(flag)
        elif flag is True and getattr(x, 'nf_only', False): out.append(Ghost(x))
        else: out.append(x)
    return out
def waitv_nf(*tags):
    w = waitv(*tags); w.nf_only = True; return w

def tile_dma(part, t): return [set_m0(part, t)] + [dma_piece(part, t, i) for i in range(4)]
nxt_tile = lambda: [salu('s_add_u32', sDOFF, sDOFF, 16384)]

B = [label('L_stream')]
B += [salu('s_mul_i32', sQH, sHEAD, QH, scc_w=False), salu('s_mul_i32', sDOFF, sHEAD, KH, scc_w=False)]
B += q_load_q(0) + tile_dma('K', 0) + q_load_q(1)
B += [salu('s_mul_i32', sNB, sNEXT, KH, scc_w=False), salu('s_cmp_lt_u32', None, sNEXT, 512),
      salu('s_cselect_b32', sNB, sNB, OOB, scc_w=False, scc_r=True),
      salu('s_cselect_b32', sQP, 12 // cfg.bt, 99, scc_w=False, scc_r=True), salu('s_add_u32', sQP1, sQP, 1),
      smov(sFIRST, 1), smov(sOH, OOB), smov(sBITN, sBIT), smov(sBIT, 0)]
blk['stream'] = B

zero_init = [valu('v_mov_b32', Oblk(5, db)[i], 0) for db in range(8) for i in range(4)]
zero_init += [Inst(f"v_accvgpr_write_b32 {Lb[5][i]}, 0", 'valu', [], regs_of(Lb[5][i])) for i in range(4)]
first_issue = {0: q_load_q(2), 1: q_load_q(3), 2: q_load_q(4), 3: q_load_q(5),
               4: tile_dma('V', 1) + nxt_tile(), 5: tile_dma('K', 2)}
FU = [label('L_fuse'), smov(sPASS, 0)] + stamp()
def st2(): return stamp() if cfg.stamps >= 2 else []
GR = [('q', 0), ('t', 0, 'K'), ('q', 1), ('q', 2), ('q', 3), ('t', 0, 'V'), ('q', 4), ('q', 5),
      ('t', 1, 'K'), ('t', 1, 'V'), ('t', 2, 'K'), ('t', 2, 'V'), ('t', 3, 'K')]
def issue(k):
    t = GR[k]
    if t[0] == 'q': return q_load_q(t[1])
    if t[1] == 3: return [set_m0('K', 3), dma_piece('K', 3, 0)]
    return tile_dma(t[2], t[1]) + (nxt_tile() if t[2] == 'V' else [])
def top(k, extra=()): return [Cond(True, ([waitv(GR[k - 3])] if k <= 10 else []) + issue(k) + list(extra))]
def qfetch(q): return [waitv_nf(('q', q))] + q_unstage(q)
def qscale(q): return ([waitl(*Qf[q])] if 2 <= q <= 3 else []) + q_scale_q(q)
class EpiBlk:
    def __init__(self, n, body, last=False):
        self.head = [salu('s_cmp_eq_u32', None, sFIRST, 0), branch('s_cbranch_scc0', f'L_epx{n}')]
        self.body = [label(f'L_epi{n}')] + body
        self.chain = [salu('s_cmp_lg_u32', None, sFIN, 0), branch('s_cbranch_scc1', 'L_end' if last else f'L_epi{n+1}')]
        self.tail = [label(f'L_epx{n}')]
    def static(self): return self.head + self.body + self.chain + self.tail
    def dyn(self, first): return self.head + ([] if first else self.body + self.chain) + self.tail
    def fin(self): return self.body + self.chain
EPIS = [EpiBlk(0, epi_a(0) + epi_a(1) + epi_b(0)), EpiBlk(1, epi_a(2) + epi_b(1)), EpiBlk(2, epi_a(3) + epi_b(2)),
        EpiBlk(3, epi_a(4) + epi_b(3) + epi_a(5) + fail_check() + epi_b(4)), EpiBlk(4, epi_b(5), last=True)]
QK0 = lambda q: qk_mfmas(q, S0[q], 0)
PV0 = lambda q: pv_mfmas(q, Pb[q % 2], first=True)
SM0 = lambda q: sm_valu(S0[q], Pb[q % 2])
pv = pv_mfmas(5, Pb[1])
def pv_db(m):
    for db in range(8):
        if VF[db].regs()[0] in m.ab: return db
    return None
mf0 = [([m] + v_reads(pv_db(m), 0, 0)) if pv_db(m) is not None else [m] for m in pv]
for m in mf0:
    for r in m[1:]: r.tag = ('tx', 0, 'V')
FU += [Cond(False, q_load_q(4) + q_load_q(5))]
FU += vphase(mf0, top(3) + qfetch(0) + qscale(0)
             + top(4, [barrier()] + [k_read(kb, j, 0, 0) for kb in range(2) for j in range(4)])
             + top(5) + qfetch(1) + qscale(1)) + st2()
FU += [waitl(*ALLK)]
FU += vphase(QK0(0) + QK0(1), top(6) + qfetch(2) + top(7) + qfetch(3) + qscale(2)
             + top(8, [barrier()] + [r for db in range(8) for r in v_reads(db, 0, 0)]) + qscale(3)) + st2()
FU += vphase(QK0(2), max_valu(0) + SM0(0) + max_valu(1) + SM0(1)) + st2()
FU += [EPIS[0]] + st2()
FU += [waitl(*VF)]
FU += vphase(QK0(3) + PV0(0), max_valu(2) + top(9) + qfetch(4) + qscale(4)) + [EPIS[1]] + st2()
FU += vphase(QK0(4) + PV0(1), SM0(2) + top(10) + qfetch(5) + qscale(5) + max_valu(3)) + [EPIS[2]] + st2()
qk5 = QK0(5); qk5 = [[qk5[kb * 4 + j], k_read(kb, j, 0, 1)] for kb in range(2) for j in range(4)]
FU += vphase(qk5 + PV0(2), SM0(3) + max_valu(4) + top(11)) + [EPIS[3]] + st2()
FU += vphase(PV0(3), SM0(4) + max_valu(5) + top(12) + []) + [EPIS[4]] + st2()
FU += [waitl(*ALLK)]
FU += vphase(qk_mfmas(0, Sb[0], NEGM[0]) + PV0(4), [set_m0('K', 3), dma_piece('K', 3, 1)] + SM0(5) + [dma_piece('K', 3, 2)] + zero_init[:18] + [dma_piece('K', 3, 3)] + zero_init[18:] + [set_m0('V', 3), dma_piece('V', 3, 0)])
FU += [smov(sFIRST, 0), smov(sBIT, sBITN), salu('s_mul_i32', sQH, sNEXT, QH, scc_w=False)] + stamp() + [branch('s_branch', 'L_body1')]
blk['fuse'] = FU

class CondQ:
    n = 0
    def __init__(self, body, dp):
        self.body = body; self.lab = f"L_q{CondQ.n}"; CondQ.n += 1; self.dp = dp
        self.head = [salu('s_cmp_eq_u32', None, sPASS, sQP if dp == 0 else sQP1), branch('s_cbranch_scc0', self.lab)]
        self.tail = [label(self.lab)]
        self.cost = 8
    def static(self): return self.head + self.body + self.tail
    def dyn(self, flag): return self.head + (self.body if flag == self.dp else []) + self.tail

BT = cfg.bt
NIT = 16 // BT
def set_m0r(part, r):
    if BT == 4: return set_m0(part, r)
    return salu('s_add_u32', M0, sMa if r < 2 else sMb, (65536 if part == 'V' else 0) + (r & 1) * 16384)
def k_read_r(kb, j, r, sub):
    d = k_read(kb, j, r % BT if BT == 2 else r, sub); d.tag = ('t', r, 'K'); return d

def body_phase(k, lp):
    sub, q = divmod(lp, 6)
    qn = (q + 1) % 6; qp = (q - 1) % 6
    pre = []; fb = []
    mf = qk_mfmas(qn, Sb[(q + 1) % 2], NEGM[qn]) + pv_mfmas(qp, Pb[(q - 1) % 2])
    fa = sm_valu(Sb[q % 2], Pb[q % 2], X8[q] if cfg.rowsum == 'valu' else None)
    if q == 4:
        slot, s2 = (k, 1) if sub == 0 else ((k + 1) % 4, 0)
        if sub == 1: pre += [waitv(('t', slot, 'V')), barrier()]
        for kb in range(2):
            for j in range(4): fb.append((kb * 4 + j, [k_read_r(kb, j, slot, s2)]))
    if q == 5: pre += [waitl(*ALLK)]
    if q == 0:
        for gi, m in enumerate(mf):
            if gi >= 8 and pv_db(m) is not None: fb.append((gi, v_reads(pv_db(m), k, sub)))
    if q == 1: fb.append((7, [waitl(*VF)]))
    x3 = (k + 3) % 4
    if lp in (1, 2, 3): fb.append((2, [dma_piece('K', x3, lp)]))
    if lp == 5: fb.append((2, [set_m0r('V', x3), dma_piece('V', x3, 0)]))
    if lp in (7, 8, 9): fb.append((2, [dma_piece('V', x3, lp - 6)]))
    if lp == 8:
        if BT == 4: fb.append((12, [CondQ(q_load_q(k, restore_m0=set_m0r('V', x3)), 0)]))
        else:
            fb.append((12, [CondQ(q_load_q(k), 0)]))
            fb.append((14, [CondQ(q_load_q(k + 2, restore_m0=set_m0r('V', x3)), 1)]))
    if BT == 2 and k == 1:
        if lp == 7:
            for j in range(4): fb.append((11 + j, [valu('v_xor_b32', aK[j], 32768, aK[j])]))
        if lp in (8, 9):
            for d in range(4): fb.append((9 + 2 * d if lp == 9 else 9 + d // 2 + 6 * (d // 2), [valu('v_xor_b32', aV[4 * (lp - 8) + d], 32768, aV[4 * (lp - 8) + d])]))
    if lp == 11:
        upd = [salu('s_add_u32', sDOFF, sDOFF, 16384)]
        if k == 0:
            upd += [salu('s_cmp_eq_u32', None, sPASS, 12 // BT), salu('s_cselect_b32', sDOFF, sNB, sDOFF, scc_w=False, scc_r=True)]
        fb.append((0, upd[:2]))
        if len(upd) > 2: fb.append((1, upd[2:]))
        fb.append((2, [set_m0r('K', k), dma_piece('K', k, 0)]))
        if BT == 2 and k == 1:
            fb.append((13, [salu('s_xor_b32', sMa, sMa, 32768), salu('s_xor_b32', sMb, sMb, 32768)]))
    return phase(pre, mf, fa, fb)

BA = [raw(".p2align 6"), label('L_body0')]
for lp in range(6): BA += body_phase(0, lp)
blk['body_a'] = BA
BB = [label('L_body1')]
for lp in range(6, 12): BB += body_phase(0, lp)
for k in range(1, BT):
    for lp in range(12): BB += body_phase(k, lp)
BB += stamp() + [salu('s_add_u32', sPASS, sPASS, 1), salu('s_cmp_lt_u32', None, sPASS, NIT), branch('s_cbranch_scc1', 'L_body0')]
blk['body_b'] = BB

D1 = [salu('s_mul_i32', sOH, sHEAD, QH, scc_w=False) if not cfg.nostore else smov(sOH, OOB), salu('s_cmp_ge_u32', None, sNEXT, 512), branch('s_cbranch_scc1', 'L_drain')]
blk['bnd_chk'] = D1
N = [smov(sHEAD, sNEXT), smov(sNEXT, '0xffff'), smov(sNB, OOB), smov(sBITN, 2), smov(sQP, 99), smov(sQP1, 99)] + minit_reset() + [branch('s_branch', 'L_fuse')]
blk['bnd_next'] = N
D = [label('L_drain')] + pv_mfmas(5, Pb[1]) + [smov(sFIN, 1), branch('s_branch', 'L_epi0')]
blk['drain'] = D

F = [label('L_end')] + stamp() + [smov(sFIN, 0)]
F += [valu('v_mov_b32', tA, sFLAGS), valu('v_mov_b32', tB, sM0Q), valu('v_mov_b32', tC, LDS_RING),
      ds_write('ds_write_b32', tB, tA, 0), raw("  s_waitcnt lgkmcnt(0)"), barrier()] + [
      ds_read('ds_read_b32', Y8[i], tC, i * 8192) for i in range(4)] + [raw("  s_waitcnt lgkmcnt(0)"),
      valu('v_or_b32', tA, Y8[0], Y8[1]), valu('v_or3_b32', tA, tA, Y8[2], Y8[3]),
      Inst(f"v_readfirstlane_b32 {sFLAGS}, {tA}", 'valu', regs_of(tA), regs_of(sFLAGS)),
      ] + stamp() + stamp_dump() + [salu('s_cmp_eq_u32', None, sFLAGS, 0), branch('s_cbranch_scc1', 'L_exit')]
blk['end'] = F
M = [raw('  s_waitcnt vmcnt(0)'), barrier()]
M += [salu('s_and_b32', sT0, sFLAGS, 1), salu('s_add_u32', sT1, sWG, NWG), salu('s_cmp_lg_u32', None, sT0, 0),
      salu('s_cselect_b32', sHEAD, sWG, sT1, scc_w=False, scc_r=True),
      salu('s_cselect_b32', sT0, 1, 2, scc_w=False, scc_r=True), salu('s_andn2_b32', sFLAGS, sFLAGS, sT0),
      smov(sMODE, 1), smov(sBIT, 0), smov(sNEXT, '0xffff')]
M += [salu('s_mul_i32', sQO, sHEAD, QH, scc_w=False)]
for q in range(6):
    M += [buf_load('buffer_load_dwordx4', Qf[q][j], vQo, srdQ, sQO, j * 64, tag=('mq',)) for j in range(4)]
    M += [salu('s_add_u32', sQO, sQO, 4096)]
M += [waitv(('mq',))]
for q in range(6): M += q_scale_q(q)
M += minit_reset()
M += [valu('v_mbcnt_lo_u32_b32', tC, -1, 0), valu('v_mbcnt_hi_u32_b32', tC, -1, tC),
      valu('v_and_b32', tA, 15, tC), valu('v_lshrrev_b32', tB, 4, tC), valu('v_lshlrev_b32', tA, 8, tA),
      valu('v_lshl_add_u32', vX, tB, 4, tA)]
M += [salu('s_mul_i32', sT1, sHEAD, KH, scc_w=False), smov(sIT, 0)]
blk['max_pre'] = M
ML = [label('L_maxloop')]
ML += [buf_load('buffer_load_dwordx4', KF[0][j], vX, srdK, sT1, j * 64, tag=('mk',)) for j in range(4)]
ML += [waitv(('mk',))]
MS = [Sb[0][0:4], Sb[0][4:8], Sb[1][0:4], Sb[1][4:8], X8[0:4], X8[4:8]]
for q in range(6):
    for j in range(4): ML.append(mfma16(MS[q], KF[0][j], Qf[q][j], 0 if j == 0 else MS[q]))
for q in range(6):
    m = NEGM[q][3]
    ML += [valu('v_max3_f32', m, MS[q][0], MS[q][1], m), valu('v_max3_f32', m, MS[q][2], MS[q][3], m)]
ML += [salu('s_add_u32', sT1, sT1, 4096), salu('s_add_u32', sIT, sIT, 1), salu('s_cmp_lt_u32', None, sIT, 64),
       branch('s_cbranch_scc1', 'L_maxloop')]
blk['max_loop'] = ML
blk['max_post'] = [branch('s_branch', 'L_stream')]
blk['exit'] = [label('L_exit'), raw("  s_endpgm")]

def head_trace(first, has_next):
    t = flat_dyn(blk['fuse'], first)
    for p in range(NIT):
        qf = (p - 12 // BT) if (has_next and p >= 12 // BT) else None
        b = flat_dyn((blk['body_a'] if p else []) + blk['body_b'], qf)
        sh = (p * BT) % 4
        t += [Remap(i, sh) for i in b] if sh else b
    t += blk['bnd_chk'] + (blk['bnd_next'] if has_next else blk['drain'] + [i for e in EPIS for i in e.fin()] + blk['end'])
    return t
trace = blk['entry'] + blk['stream'] + head_trace(True, True) + head_trace(False, False)
for _ in range(2):
    trace += blk['max_pre'] + blk['max_loop'] * 3 + blk['max_post'] + blk['stream'] + head_trace(True, False)
trace += blk['exit']
for b in blk: blk[b] = flat_static(blk[b])

resolve_waits(trace)
for it in range(10):
    n = check_trace(trace, fix=True, verbose=False)
    if n == 0: break
    if n >= 1000: sys.exit("pending-load errors")
assert check_trace(trace, fix=False) == 0
assert check_lds_protocol(trace)

order = ['entry', 'stream', 'fuse', 'body_a', 'body_b', 'bnd_chk', 'bnd_next', 'drain', 'end',
         'max_pre', 'max_loop', 'max_post', 'exit']
NAME = "standalone__mha_softmax__near_ridge_kernel"
out = f"""; MHA forward (B16 H32 Sq384 Sk1024 D128, bf16) - generated by gen/gen.py (hand-written generator)
; @launch grid=({NWG},1,1) block=(256,1,1) lds={LDS_TOTAL}
.amdgcn_target "amdgcn-amd-amdhsa--gfx950"
.text
.globl {NAME}
.p2align 8
.type {NAME},@function
{NAME}:
"""
for b in order:
    out += f"; ---- {b}\n"
    for i in blk[b]: out += i.render()
out += f""".section .rodata,"a"
.p2align 6
.amdhsa_kernel {NAME}
  .amdhsa_next_free_vgpr 512
  .amdhsa_next_free_sgpr 80
  .amdhsa_accum_offset 256
  .amdhsa_group_segment_fixed_size 0
  .amdhsa_kernarg_size 48
  .amdhsa_user_sgpr_count 2
  .amdhsa_user_sgpr_kernarg_segment_ptr 1
  .amdhsa_system_sgpr_workgroup_id_x 1
.end_amdhsa_kernel
"""
open(sys.argv[1], 'w').write(out)
nn = sum(i.pre_nop for b in ('body_a', 'body_b') for i in blk[b])
print("emitted", sys.argv[1], "insts:", {b: len(blk[b]) for b in order}, "body nops:", nn)
```

```python
import sys, math, struct
from asmlib import *

def f2u(f): return struct.unpack('<I', struct.pack('<f', f))[0]

class Cfg:
    dma_flags = " nt"
    q_flags = " nt"
    st_flags = " nt"
    dma_cost = 8
    thr = 2.0 ** 32
    stamps = 0
    otouch = 0
    nostore = 0
    rowsum = 'mfma'
    bt = 4
    q45late = 0
cfg = Cfg()
for a in sys.argv[2:]:
    k, v = a.split('=', 1)
    cur = getattr(cfg, k)
    setattr(cfg, k, type(cur)(v) if not isinstance(cur, str) else v.replace('_', ' '))

NWG = 256
QH = 98304
KH = 262144
Q_BYTES = 512 * QH
K_BYTES = 512 * KH
OOB = 0x10000000
LDS_RING = 131072
LDS_TOTAL = LDS_RING + 32768
SCALE = (128 ** -0.5) * math.log2(math.e)

vTID = V(0)
aK = [V(1 + j) for j in range(4)]
aV = [V(5 + d) for d in range(8)]
dK = [V(13 + i) for i in range(4)]
dV = [V(17 + i) for i in range(2)]
vQo, vOo = V(19), V(20)
vX = V(21)
RL = V(22, 2)
T4 = [V(24, 4), V(28, 4)]
Sb = [V(32, 8), V(40, 8)]
Pb = [V(48, 4), V(52, 4)]
NEGM = [V(56 + 4 * q, 4) for q in range(6)]
Qf = [[V(80 + (q * 4 + j) * 4, 4) for j in range(4)] for q in range(6)]
def Oblk(q, db):
    if q < 4: return A((q * 8 + db) * 4, 4)
    return V(176 + ((q - 4) * 8 + db) * 4, 4)
X8 = V(240, 8)
Y8 = V(248, 8)
KF = [[A(128 + (kb * 4 + j) * 4, 4) for j in range(4)] for kb in range(2)]
VF = [A(160 + db * 4, 4) for db in range(8)]
Lb = [A(192 + 4 * q, 4) for q in range(6)]
ONES = A(216, 4)
S0 = [Sb[0], Y8, Sb[1], Sb[0], Y8, Sb[1]]
QST = [[A(220 + (q * 4 + j) * 4, 4) for j in range(4)] for q in range(2)]
vQs = V(0)

srdQ, srdK, srdV, srdO = S(8, 4), S(12, 4), S(16, 4), S(20, 4)
sWG = S(2)
sW, sM0B, sHEAD, sNEXT, sDOFF, sNB, sPASS, sMODE, sFLAGS, sQO, sBIT, sTHR = [S(24 + i) for i in range(12)]
sARG = S(36, 8)
sC = S(44, 2)
sMASK, sFIRST, sT0, sT1, sIT, sOH, sQH, sQP = S(46), S(47), S(48), S(49), S(50), S(51), S(62), S(63)
M0 = 'm0'
sQO2, sM0Q, sBITN, M0S, sFIN, sMa, sMb, sQP1 = [S(64 + i) for i in range(8)]

def smov(d, x): return salu('s_mov_b32', d, x, scc_w=False)
srdW = S(56, 4); sST = S(52, 2); sSTO = S(54); sST2 = S(60, 2)
sSTI = S(55)
def stamp():
    if not cfg.stamps: return []
    t0, t1 = T4[0][0], T4[0][1]
    def acc_r(d, a): return Inst(f"v_accvgpr_read_b32 {d}, {a}", 'valu', regs_of(a), regs_of(d))
    def acc_w(a, d): return Inst(f"v_accvgpr_write_b32 {a}, {d}", 'valu', regs_of(d), regs_of(a))
    def wl(d, s): return Inst(f"v_writelane_b32 {d}, {s}, {sSTI}", 'valu', regs_of(d) + regs_of(s) + regs_of(sSTI), regs_of(d))
    return [raw(f"  s_memtime {sST}", wr=[sST]), raw(f"  s_memrealtime {sST2}", wr=[sST2]), acc_r(t0, A(252)), acc_r(t1, A(253)),
            raw("  s_waitcnt lgkmcnt(0)"), smov(M0S, M0), smov(M0, sSTI), nop(1),
            Inst(f"v_writelane_b32 {t0}, {sST[0]}, m0", 'valu', regs_of(t0), regs_of(t0)),
            Inst(f"v_writelane_b32 {t1}, {sST2[0]}, m0", 'valu', regs_of(t1), regs_of(t1)),
            smov(M0, M0S), acc_w(A(252), t0), acc_w(A(253), t1), salu('s_add_u32', sSTI, sSTI, 1)]
def stamp_dump():
    if not cfg.stamps: return []
    t = T4[0]
    st = Inst(f"buffer_store_dwordx2 {t[0:2]}, {t[2]}, {srdW}, {sSTO} offen", 'vmem_store', regs_of(t[0:3]) + regs_of(srdW) + regs_of(sSTO), [])
    st.sdata = regs_of(t[0:2])
    return [Inst(f"v_accvgpr_read_b32 {t[0]}, a252", 'valu', regs_of(A(252)), regs_of(t[0])),
            Inst(f"v_accvgpr_read_b32 {t[1]}, a253", 'valu', regs_of(A(253)), regs_of(t[1])),
            valu('v_mbcnt_lo_u32_b32', t[2], -1, 0), valu('v_mbcnt_hi_u32_b32', t[2], -1, t[2]), valu('v_lshlrev_b32', t[2], 3, t[2]), st]

def phase(pre, mf, fa, fb=(), fa_start=0):
    out = list(pre)
    fb = sorted(fb, key=lambda x: x[0])
    total = sum(i.cost for i in fa) + sum(i.cost for _, l in fb for i in l)
    ng = len(mf)
    budget = max(8, int(math.ceil(total / max(ng - fa_start, 1) / 4.0)) * 4)
    ia = 0
    fb = list(fb)
    for g, m in enumerate(mf):
        out.append(m)
        rem = budget
        while fb and fb[0][0] <= g:
            c = sum(i.cost for i in fb[0][1])
            if c <= rem or rem == budget:
                out += fb[0][1]; rem -= c; fb.pop(0)
            else: break
        while g >= fa_start and ia < len(fa) and fa[ia].cost <= rem:
            out.append(fa[ia]); rem -= fa[ia].cost; ia += 1
    for _, l in fb: out += l
    out += fa[ia:]
    return out

def qk_mfmas(q, Sdst, cinit):
    L = []
    for kb in range(2):
        d = Sdst[4 * kb:4 * kb + 4]
        for j in range(4):
            L.append(mfma16(d, KF[kb][j], Qf[q][j], (cinit if j == 0 else d)))
    return L
def pv_mfmas(q, P, first=False):
    L = [mfma16(Oblk(q, db), VF[db], P, 0 if first else Oblk(q, db)) for db in range(8)]
    if cfg.rowsum == 'mf4':
        L.insert(4, mfma4(Lb[q], ONES[0:2], P[0:2], 0 if first else Lb[q]))
        L.append(mfma4(Lb[q], ONES[0:2], P[2:4], Lb[q]))
    elif cfg.rowsum == 'mfma' or first: L.append(mfma16(Lb[q], ONES, P, 0 if first else Lb[q]))
    return L
def sm_valu(Ssrc, P, lacc=None):
    e = [valu('v_exp_f32', Ssrc[i], Ssrc[i], trans=True) for i in range(8)]
    c = [valu('v_cvt_pk_bf16_f32', P[i], Ssrc[2 * i], Ssrc[2 * i + 1]) for i in range(4)]
    if lacc is not None:
        a = [valu('v_add_f32', lacc, lacc, Ssrc[i]) for i in range(8)]
        return [e[0], e[1], a[0], c[0], e[2], a[1], a[2], e[3], e[4], a[3], c[1], e[5], a[4], a[5], e[6], e[7], c[2], a[6], a[7], c[3]]
    return [e[0], e[1], e[2], c[0], e[3], e[4], c[1], e[5], e[6], c[2], e[7], c[3]]
def k_read(kb, j, slot, sub):
    return ds_read('ds_read_b128', KF[kb][j], aK[j], slot * 16384 + sub * 8192 + kb * 4096, tag=('t', slot, 'K'))
def v_reads(db, slot, sub):
    return [ds_read('ds_read_b64_tr_b16', VF[db][2 * h:2 * h + 2], aV[db], slot * 16384 + sub * 8192 + h * 4096, tag=('t', slot, 'V'))
            for h in range(2)]
def dma_piece(part, slot, idx):
    if part == 'K': d = dma(dK[idx], srdK, sDOFF, idx * 1024, ('t', slot, 'K'), cfg.dma_flags, cfg.dma_cost)
    else: d = dma(dV[idx & 1], srdV, sDOFF, idx * 1024, ('t', slot, 'V'), cfg.dma_flags, cfg.dma_cost)
    d.piece = idx
    return d
def set_m0(part, slot):
    return salu('s_add_u32', M0, sM0B, (65536 if part == 'V' else 0) + slot * 16384)
ALLK = [KF[kb][j] for kb in range(2) for j in range(4)]

def q_loads():
    L = [salu('s_mul_i32', sQO, sHEADQ, QH, scc_w=False)]
    for q in range(6):
        for j in range(4):
            L.append(buf_load('buffer_load_dwordx4', Qf[q][j], vQo, srdQ, sQO, j * 64, tag=('q', q), flags=cfg.q_flags))
        if q < 5: L.append(salu('s_add_u32', sQO, sQO, 4096))
    return L
def q_scale():
    L = []
    for q in range(6):
        L.append(waitv(('q', q)))
        for j in range(4):
            x = Qf[q][j]; t = X8 if (j & 1) == 0 else Y8
            for i in range(4):
                L.append(valu('v_lshlrev_b32', t[2 * i], 16, x[i]))
                L.append(valu('v_and_b32', t[2 * i + 1], sMASK, x[i]))
            for i in range(4):
                L.append(valu('v_pk_mul_f32', t[2 * i:2 * i + 2], t[2 * i:2 * i + 2], sC))
            for i in range(4):
                L.append(valu('v_cvt_pk_bf16_f32', x[i], t[2 * i], t[2 * i + 1]))
    return L
def minit_reset():
    return [valu('v_mov_b32', NEGM[q][3], '0xff800000') for q in range(6)]

def max_valu(q):
    s = S0[q]; m = NEGM[q][3]; t = RL[q & 1]
    L = [valu('v_max3_f32', m, s[0], s[1], m), valu('v_max3_f32', m, s[2], s[3], m),
         valu('v_max3_f32', m, s[4], s[5], m), valu('v_max3_f32', m, s[6], s[7], m),
         valu('v_mov_b32', t, m), permswap('v_permlane32_swap_b32', t, m), valu('v_max_f32', m, t, m),
         valu('v_mov_b32', t, m), permswap('v_permlane16_swap_b32', t, m), valu('v_max_f32', t, t, m)]
    L += [valu('v_sub_f32', s[i], s[i], t) for i in range(8)]
    L += [valu('v_sub_f32', NEGM[q][i], 0, t) for i in range(4)]
    return L

blk = {}
E = []
E += [salu('s_cmp_ge_u32', None, sWG, NWG), branch('s_cbranch_scc1', 'L_exit')]
E += [raw(f"  s_load_dwordx8 {sARG}, s[0:1], 0", wr=[sARG])]
E += [valu('v_lshrrev_b32', vX, 6, vTID), valu('v_and_b32', vTID, 63, vTID)]
E += [Inst(f"v_readfirstlane_b32 {sW}, {vX}", 'valu', regs_of(vX), regs_of(sW))]
tA, tB, tC, tD = X8[0], X8[1], X8[2], X8[3]
tQ, tG = X8[4], X8[5]
E += [valu('v_and_b32', tQ, 15, vTID), valu('v_lshrrev_b32', tG, 4, vTID)]
E += [smov(sHEAD, sWG), valu('v_lshlrev_b32', tA, 8, tQ), valu('v_xor_b32', tD, tG, tQ)]
E += [salu('s_mul_i32', sT0, sW, 96 * 256, scc_w=False), salu('s_lshl_b32', sM0B, sW, 12)]
E += [valu('v_add_u32', tA, sT0, tA), valu('v_lshl_add_u32', vQo, tG, 4, tA)]
E += [valu('v_lshlrev_b32', tB, 8, tG), valu('v_add_u32', tB, sM0B, tB)]
for i in range(4):
    E += [valu('v_xor_b32', tC, 4 * i, tD), valu('v_lshl_add_u32', dK[i], tC, 4, tB)]
def mk_srd(srd, k, nb): return [smov(srd[0], sARG[k]), salu('s_and_b32', srd[1], sARG[k + 1], '0xffff'), smov(srd[2], nb), smov(srd[3], '0x20000')]
E += [smov(srdQ[2], Q_BYTES), smov(srdQ[3], '0x20000'), smov(srdK[2], K_BYTES), smov(srdK[3], '0x20000')]
E += [raw("  s_waitcnt lgkmcnt(0)")]
E += [smov(srdQ[0], sARG[0]), salu('s_and_b32', srdQ[1], sARG[1], '0xffff'), smov(srdK[0], sARG[2]), salu('s_and_b32', srdK[1], sARG[3], '0xffff')]
blk['entry0'] = E
E = []
E += mk_srd(srdV, 4, K_BYTES) + mk_srd(srdO, 6, Q_BYTES)
E += [valu('v_lshlrev_b32', tA, 1, tG), valu('v_xor_b32', tA, tA, tQ)]
for i in range(2):
    E += [valu('v_xor_b32', tC, 8 * i, tA), valu('v_lshl_add_u32', dV[i], tC, 4, tB)]
E += [valu('v_lshlrev_b32', tB, 8, tQ)]
for j in range(4):
    E += [valu('v_xor_b32', tC, 4 * j, tD), valu('v_lshl_add_u32', aK[j], tC, 4, tB)]
E += [valu('v_lshrrev_b32', tA, 2, vTID), valu('v_and_b32', tC, 7, tA), valu('v_lshlrev_b32', tA, 8, tA),
      valu('v_and_b32', tB, 3, vTID), valu('v_lshl_add_u32', tA, tB, 3, tA), valu('v_add_u32', tA, 65536, tA)]
for db in range(8):
    E += [valu('v_xor_b32', tB, db, tC), valu('v_lshl_add_u32', aV[db], tB, 5, tA)]
E += [valu('v_lshlrev_b32', vOo, 4, vTID), valu('v_add_u32', vOo, sT0, vOo)]
E += [smov(sMa, sM0B), salu('s_add_u32', sMb, sM0B, 32768)]
E += [salu('s_lshl_b32', sM0Q, sW, 13), salu('s_add_u32', sM0Q, sM0Q, LDS_RING),
      valu('v_lshlrev_b32', vQs, 4, vTID), valu('v_add_u32', vQs, sM0Q, vQs)]
E += [valu('v_lshrrev_b32', tA, 1, tG), valu('v_xor_b32', tA, tA, tQ), valu('v_lshlrev_b32', tA, 4, tA), valu('v_lshl_add_u32', tA, tQ, 8, tA),
      valu('v_and_b32', tB, 1, tG), valu('v_lshl_add_u32', tA, tB, 3, tA), valu('v_add_u32', tA, sM0Q, tA),
      Inst("v_accvgpr_write_b32 a254, " + str(tA), 'valu', regs_of(tA), regs_of(A(254))),
      valu('v_lshlrev_b32', tA, 4, tD), valu('v_lshl_add_u32', tA, tG, 8, tA), valu('v_add_u32', tA, sM0Q, tA),
      Inst("v_accvgpr_write_b32 a255, " + str(tA), 'valu', regs_of(tA), regs_of(A(255)))]
E += [valu('v_mov_b32', tA, '0x3f803f80')]
E += [Inst(f"v_accvgpr_write_b32 {ONES[i]}, {tA}", 'valu', regs_of(tA), regs_of(ONES[i])) for i in range(4)]
E += [smov(sC[0], hex(f2u(SCALE))), smov(sC[1], hex(f2u(SCALE))), smov(sMASK, '0xffff0000'), smov(sTHR, hex(f2u(cfg.thr)))]
E += [salu('s_add_u32', sNEXT, sWG, NWG), smov(sMODE, 0), smov(sFLAGS, 0), smov(sBIT, 1), smov(sFIN, 0)]
E += minit_reset()
if cfg.stamps:
    E += [raw(f"  s_load_dwordx2 {srdW[0:2]}, s[0:1], 40", wr=[srdW[0:2]]), raw("  s_waitcnt lgkmcnt(0)"),
          salu('s_and_b32', srdW[1], srdW[1], '0xffff'), smov(srdW[2], 1 << 20), smov(srdW[3], '0x20000'),
          salu('s_lshl_b32', sSTO, sWG, 2), salu('s_add_u32', sSTO, sSTO, sW), salu('s_lshl_b32', sSTO, sSTO, 9)]
    E += [smov(sSTI, 0), smov(M0, 0), Inst('v_accvgpr_write_b32 a252, 0', 'valu', [], regs_of(A(252))), Inst('v_accvgpr_write_b32 a253, 0', 'valu', [], regs_of(A(253)))]
    E += stamp()
blk['entry'] = E

def q_load_q(q, restore_m0=None):
    L = [salu('s_add_u32', sQO, sQH, q * 4096)]
    if q < 2:
        L += [buf_load('buffer_load_dwordx4', QST[q][j], vQo, srdQ, sQO, j * 64, tag=('q', q), flags=cfg.q_flags) for j in range(4)]
    elif q < 4:
        for j in range(4):
            L.append(salu('s_add_u32', M0, sM0Q, ((q - 2) * 4 + j) * 1024 - j * 64))
            d = dma(vQo, srdQ, sQO, j * 64, ('q', q), cfg.q_flags, cfg.dma_cost); d.piece = j; L.append(d)
        if restore_m0: L.append(restore_m0)
    else:
        L += [buf_load('buffer_load_dwordx4', Qf[q][j], vQo, srdQ, sQO, j * 64, tag=('q', q), flags=cfg.q_flags) for j in range(4)]
    return L
def q_unstage(q):
    if q < 2:
        return [Inst(f"v_accvgpr_read_b32 {Qf[q][j][i]}, {QST[q][j][i]}", 'valu', regs_of(QST[q][j][i]), regs_of(Qf[q][j][i]))
                for j in range(4) for i in range(4)]
    if q < 4:
        return [ds_read('ds_read_b128', Qf[q][j], vQs, ((q - 2) * 4 + j) * 1024) for j in range(4)]
    return []
def q_scale_q(q):
    L = []
    for j in range(4):
        x = Qf[q][j]; t = X8
        for i in range(4):
            L.append(valu('v_lshlrev_b32', t[2 * i], 16, x[i]))
            L.append(valu('v_and_b32', t[2 * i + 1], sMASK, x[i]))
        for i in range(4):
            L.append(valu('v_pk_mul_f32', t[2 * i:2 * i + 2], t[2 * i:2 * i + 2], sC))
        for i in range(4):
            L.append(valu('v_cvt_pk_bf16_f32', x[i], t[2 * i], t[2 * i + 1]))
    return L
_ti = [0]
def epi_q(q, tsets):
    D = [salu('s_add_u32', sQO2, sOH, q * 4096)]
    D += [Inst(f"v_accvgpr_read_b32 {RL[1]}, {Lb[q][0]}", 'valu', regs_of(Lb[q][0]), regs_of(RL[1]))]
    if cfg.rowsum == 'mf4':
        D += [valu('v_mov_b32', RL[0], RL[1]), permswap('v_permlane32_swap_b32', RL[0], RL[1]), valu('v_add_f32', RL[1], RL[0], RL[1]),
              valu('v_mov_b32', RL[0], RL[1]), permswap('v_permlane16_swap_b32', RL[0], RL[1]), valu('v_add_f32', RL[1], RL[0], RL[1])]
    D += [valu('v_rcp_f32', RL[0], RL[1], trans=True)]
    if q == 0: D += [valu('v_mov_b32', vX, RL[1])]
    else: D += [valu('v_add_f32', vX, vX, RL[1])]
    for dp in range(4):
        if q < 4:
            t = tsets[dp % len(tsets)]
            for bi in range(2):
                o = Oblk(q, 2 * dp + bi)
                D += [Inst(f"v_accvgpr_read_b32 {t[4*bi+i]}, {o[i]}", 'valu', regs_of(o[i]), regs_of(t[4 * bi + i])) for i in range(4)]
        else:
            o = Oblk(q, 2 * dp); t = V(o.n, 8)
        for i in range(4):
            D += [valu('v_pk_mul_f32', t[2 * i:2 * i + 2], t[2 * i:2 * i + 2], RL, extra="op_sel_hi:[1,0]")]
        T = T4[_ti[0] % 2]; _ti[0] += 1
        for i in range(4): D += [valu('v_cvt_pk_bf16_f32', T[i], t[2 * i], t[2 * i + 1])]
        D += [permswap('v_permlane16_swap_b32', T[0], T[2]), permswap('v_permlane16_swap_b32', T[1], T[3])]
        D += [buf_store('buffer_store_dwordx4', T, vOo, srdO, sQO2, dp * 64, flags=cfg.st_flags)]
    return D
aWA, aRA = A(254), A(255)
def acc_read(d, a): return Inst(f"v_accvgpr_read_b32 {d}, {a}", 'valu', regs_of(a), regs_of(d))
def oreg(q, t):
    return Oblk(q, t)
def epi_a(q):
    half = (q & 1) * 4096
    D = [acc_read(RL[1], Lb[q][0]), valu('v_rcp_f32', RL[0], RL[1], trans=True)]
    D += [valu('v_mov_b32', vX, RL[1]) if q == 0 else valu('v_add_f32', vX, vX, RL[1])]
    D += [acc_read(RL[1], aWA)]
    for dp in range(4):
        if q < 4:
            t = X8
            for bi in range(2):
                o = Oblk(q, 2 * dp + bi)
                D += [acc_read(t[4 * bi + i], o[i]) for i in range(4)]
        else:
            o = Oblk(q, 2 * dp); t = V(o.n, 8)
        mul = [Inst(f"v_pk_mul_f32 {t[2*i:2*i+2]}, {t[2*i:2*i+2]}, {RL} op_sel_hi:[1,0]", 'valu',
                    regs_of(t[2 * i:2 * i + 2]) + regs_of(RL[0]), regs_of(t[2 * i:2 * i + 2])) for i in range(4)]
        D += mul
        T = T4[dp % 2]
        D += [valu('v_cvt_pk_bf16_f32', T[i], t[2 * i], t[2 * i + 1]) for i in range(4)]
        for bi in range(2):
            db = 2 * dp + bi
            D += [ds_write('ds_write_b64', RL[1], T[2 * bi:2 * bi + 2], half)]
            if db < 7: D += [valu('v_xor_b32', RL[1], (db ^ (db + 1)) << 5, RL[1])]
    D += [acc_read(RL[1], aRA)]
    for t in range(4):
        D += [ds_read('ds_read_b128', oreg(q, t), RL[1], half + t * 1024)]
        if t < 3: D += [valu('v_xor_b32', RL[1], (t ^ (t + 1)) << 6, RL[1])]
    return D
def epi_b(q):
    D = [salu('s_add_u32', sQO2, sOH, q * 4096), waitl(*[oreg(q, t) for t in range(4)])]
    D += [buf_store('buffer_store_dwordx4', oreg(q, t), vOo, srdO, sQO2, t * 1024, flags=cfg.st_flags) for t in range(4)]
    return D
def fail_check():
    return [Inst(f"v_cmp_nge_f32 vcc, {sTHR}, {vX}", 'valu', regs_of(sTHR) + regs_of(vX), [('x', 'vcc')]),
            salu('s_cmp_lg_u64', None, 'vcc', 0), salu('s_cselect_b32', sT0, sBIT, 0, scc_w=False, scc_r=True),
            salu('s_or_b32', sFLAGS, sFLAGS, sT0)]

def is_pk(i): return 'v_pk_' in i.text
def vphase(mf, seq, start=0):
    n = len(seq); out = []
    if not mf: return list(seq)
    tot = sum(i.cost for i in seq if isinstance(i, Inst))
    step = (tot * (1.0 - start)) / len(mf)
    acc = 0.0; nxt = tot * start; k = 0
    for idx, i in enumerate(seq):
        if k < len(mf) and acc >= nxt:
            look = [x for x in seq[idx:idx + 3] if isinstance(x, Inst)]
            if not any(is_pk(x) for x in look):
                m = mf[k]; out += (m if isinstance(m, list) else [m]); k += 1; nxt += step
        out.append(i)
        if isinstance(i, Inst): acc += i.cost
    for m in mf[k:]: out += (m if isinstance(m, list) else [m])
    return out

class Cond:
    n = 0
    def __init__(self, first, body):
        self.first, self.body = first, body
        self.lab = f"L_c{Cond.n}"; Cond.n += 1
        self.head = [salu('s_cmp_eq_u32', None, sFIRST, 0), branch('s_cbranch_scc1' if first else 's_cbranch_scc0', self.lab)]
        self.tail = [label(self.lab)]
    def static(self): return self.head + self.body + self.tail
    def dyn(self, first): return self.head + (self.body if first == self.first else []) + self.tail
def flat_static(seq): return [y for x in seq for y in (x.static() if hasattr(x, 'static') else [x])]
def flat_dyn(seq, flag):
    out = []
    for x in seq:
        if hasattr(x, 'dyn'): out += x.dyn(flag)
        elif flag is True and getattr(x, 'nf_only', False): out.append(Ghost(x))
        else: out.append(x)
    return out
def waitv_nf(*tags):
    w = waitv(*tags); w.nf_only = True; return w

def tile_dma(part, t): return [set_m0(part, t)] + [dma_piece(part, t, i) for i in range(4)]
nxt_tile = lambda: [salu('s_add_u32', sDOFF, sDOFF, 16384)]

def stream_head():
    return [salu('s_mul_i32', sQH, sHEAD, QH, scc_w=False), salu('s_mul_i32', sDOFF, sHEAD, KH, scc_w=False)] + \
           q_load_q(0) + tile_dma('K', 0) + q_load_q(1)
blk['entry1'] = stream_head()
B = [label('L_stream')]
B += [salu('s_mul_i32', sNB, sNEXT, KH, scc_w=False), salu('s_cmp_lt_u32', None, sNEXT, 512),
      salu('s_cselect_b32', sNB, sNB, OOB, scc_w=False, scc_r=True),
      salu('s_cselect_b32', sQP, 12 // cfg.bt, 99, scc_w=False, scc_r=True), salu('s_add_u32', sQP1, sQP, 1),
      smov(sFIRST, 1), smov(sOH, OOB), smov(sBITN, sBIT), smov(sBIT, 0)]
blk['stream'] = B

zero_init = [valu('v_mov_b32', Oblk(5, db)[i], 0) for db in range(8) for i in range(4)]
zero_init += [Inst(f"v_accvgpr_write_b32 {Lb[5][i]}, 0", 'valu', [], regs_of(Lb[5][i])) for i in range(4)]
first_issue = {0: q_load_q(2), 1: q_load_q(3), 2: q_load_q(4), 3: q_load_q(5),
               4: tile_dma('V', 1) + nxt_tile(), 5: tile_dma('K', 2)}
FU = [label('L_fuse'), smov(sPASS, 0)] + stamp()
def st2(): return stamp() if cfg.stamps >= 2 else []
GR = [('q', 0), ('t', 0, 'K'), ('q', 1), ('q', 2), ('q', 3), ('t', 0, 'V'), ('q', 4), ('q', 5),
      ('t', 1, 'K'), ('t', 1, 'V'), ('t', 2, 'K'), ('t', 2, 'V'), ('t', 3, 'K')]
def issue(k):
    t = GR[k]
    if t[0] == 'q': return q_load_q(t[1])
    if t[1] == 3: return [set_m0('K', 3), dma_piece('K', 3, 0)]
    return tile_dma(t[2], t[1]) + (nxt_tile() if t[2] == 'V' else [])
def top(k, extra=()): return [Cond(True, ([waitv(GR[k - 3])] if k <= 10 else []) + issue(k) + list(extra))]
def qfetch(q): return [waitv_nf(('q', q))] + q_unstage(q)
def qscale(q): return ([waitl(*Qf[q])] if 2 <= q <= 3 else []) + q_scale_q(q)
class EpiBlk:
    def __init__(self, n, body, last=False):
        self.head = [salu('s_cmp_eq_u32', None, sFIRST, 0), branch('s_cbranch_scc0', f'L_epx{n}')]
        self.body = [label(f'L_epi{n}')] + body
        self.chain = [salu('s_cmp_lg_u32', None, sFIN, 0), branch('s_cbranch_scc1', 'L_end' if last else f'L_epi{n+1}')]
        self.tail = [label(f'L_epx{n}')]
    def static(self): return self.head + self.body + self.chain + self.tail
    def dyn(self, first): return self.head + ([] if first else self.body + self.chain) + self.tail
    def fin(self): return self.body + self.chain
EPIS = [EpiBlk(0, epi_a(0) + epi_a(1) + epi_b(0)), EpiBlk(1, epi_a(2) + epi_b(1)), EpiBlk(2, epi_a(3) + epi_b(2)),
        EpiBlk(3, epi_a(4) + epi_b(3) + epi_a(5) + fail_check() + epi_b(4)), EpiBlk(4, epi_b(5), last=True)]
QK0 = lambda q: qk_mfmas(q, S0[q], 0)
PV0 = lambda q: pv_mfmas(q, Pb[q % 2], first=True)
SM0 = lambda q: sm_valu(S0[q], Pb[q % 2])
pv = pv_mfmas(5, Pb[1])
def pv_db(m):
    for db in range(8):
        if VF[db].regs()[0] in m.ab: return db
    return None
mf0 = [([m] + v_reads(pv_db(m), 0, 0)) if pv_db(m) is not None else [m] for m in pv]
for m in mf0:
    for r in m[1:]: r.tag = ('tx', 0, 'V')
FU += [Cond(False, q_load_q(4) + q_load_q(5))]
FU += vphase(mf0, top(3) + qfetch(0) + qscale(0)
             + top(4, [barrier()] + [k_read(kb, j, 0, 0) for kb in range(2) for j in range(4)])
             + top(5) + qfetch(1) + qscale(1)) + st2()
FU += [waitl(*ALLK)]
FU += vphase(QK0(0) + QK0(1), top(6) + qfetch(2) + top(7) + qfetch(3) + qscale(2)
             + top(8, [barrier()] + [r for db in range(8) for r in v_reads(db, 0, 0)]) + qscale(3)) + st2()
FU += vphase(QK0(2), max_valu(0) + SM0(0) + max_valu(1) + SM0(1)) + st2()
FU += [EPIS[0]] + st2()
FU += [waitl(*VF)]
FU += vphase(QK0(3) + PV0(0), max_valu(2) + top(9) + qfetch(4) + qscale(4)) + [EPIS[1]] + st2()
FU += vphase(QK0(4) + PV0(1), SM0(2) + top(10) + qfetch(5) + qscale(5) + max_valu(3)) + [EPIS[2]] + st2()
qk5 = QK0(5); qk5 = [[qk5[kb * 4 + j], k_read(kb, j, 0, 1)] for kb in range(2) for j in range(4)]
FU += vphase(qk5 + PV0(2), SM0(3) + max_valu(4) + top(11)) + [EPIS[3]] + st2()
FU += vphase(PV0(3), SM0(4) + max_valu(5) + top(12) + []) + [EPIS[4]] + st2()
FU += [waitl(*ALLK)]
FU += vphase(qk_mfmas(0, Sb[0], NEGM[0]) + PV0(4), [set_m0('K', 3), dma_piece('K', 3, 1)] + SM0(5) + [dma_piece('K', 3, 2)] + zero_init[:18] + [dma_piece('K', 3, 3)] + zero_init[18:] + [set_m0('V', 3), dma_piece('V', 3, 0)])
FU += [smov(sFIRST, 0), smov(sBIT, sBITN), salu('s_mul_i32', sQH, sNEXT, QH, scc_w=False)] + stamp() + [branch('s_branch', 'L_body1')]
blk['fuse'] = FU

class CondQ:
    n = 0
    def __init__(self, body, dp):
        self.body = body; self.lab = f"L_q{CondQ.n}"; CondQ.n += 1; self.dp = dp
        self.head = [salu('s_cmp_eq_u32', None, sPASS, sQP if dp == 0 else sQP1), branch('s_cbranch_scc0', self.lab)]
        self.tail = [label(self.lab)]
        self.cost = 8
    def static(self): return self.head + self.body + self.tail
    def dyn(self, flag): return self.head + (self.body if flag == self.dp else []) + self.tail

BT = cfg.bt
NIT = 16 // BT
def set_m0r(part, r):
    if BT == 4: return set_m0(part, r)
    return salu('s_add_u32', M0, sMa if r < 2 else sMb, (65536 if part == 'V' else 0) + (r & 1) * 16384)
def k_read_r(kb, j, r, sub):
    d = k_read(kb, j, r % BT if BT == 2 else r, sub); d.tag = ('t', r, 'K'); return d

def body_phase(k, lp):
    sub, q = divmod(lp, 6)
    qn = (q + 1) % 6; qp = (q - 1) % 6
    pre = []; fb = []
    mf = qk_mfmas(qn, Sb[(q + 1) % 2], NEGM[qn]) + pv_mfmas(qp, Pb[(q - 1) % 2])
    fa = sm_valu(Sb[q % 2], Pb[q % 2], X8[q] if cfg.rowsum == 'valu' else None)
    if q == 4:
        slot, s2 = (k, 1) if sub == 0 else ((k + 1) % 4, 0)
        if sub == 1: pre += [waitv(('t', slot, 'V')), barrier()]
        for kb in range(2):
            for j in range(4): fb.append((kb * 4 + j, [k_read_r(kb, j, slot, s2)]))
    if q == 5: pre += [waitl(*ALLK)]
    if q == 0:
        for gi, m in enumerate(mf):
            if gi >= 8 and pv_db(m) is not None: fb.append((gi, v_reads(pv_db(m), k, sub)))
    if q == 1: fb.append((7, [waitl(*VF)]))
    x3 = (k + 3) % 4
    if lp in (1, 2, 3): fb.append((2, [dma_piece('K', x3, lp)]))
    if lp == 5: fb.append((2, [set_m0r('V', x3), dma_piece('V', x3, 0)]))
    if lp in (7, 8, 9): fb.append((2, [dma_piece('V', x3, lp - 6)]))
    if lp == 8:
        if BT == 4: fb.append((12, [CondQ(q_load_q(k, restore_m0=set_m0r('V', x3)), 0)]))
        else:
            fb.append((12, [CondQ(q_load_q(k), 0)]))
            fb.append((14, [CondQ(q_load_q(k + 2, restore_m0=set_m0r('V', x3)), 1)]))
    if BT == 2 and k == 1:
        if lp == 7:
            for j in range(4): fb.append((11 + j, [valu('v_xor_b32', aK[j], 32768, aK[j])]))
        if lp in (8, 9):
            for d in range(4): fb.append((9 + 2 * d if lp == 9 else 9 + d // 2 + 6 * (d // 2), [valu('v_xor_b32', aV[4 * (lp - 8) + d], 32768, aV[4 * (lp - 8) + d])]))
    if lp == 11:
        upd = [salu('s_add_u32', sDOFF, sDOFF, 16384)]
        if k == 0:
            upd += [salu('s_cmp_eq_u32', None, sPASS, 12 // BT), salu('s_cselect_b32', sDOFF, sNB, sDOFF, scc_w=False, scc_r=True)]
        fb.append((0, upd[:2]))
        if len(upd) > 2: fb.append((1, upd[2:]))
        fb.append((2, [set_m0r('K', k), dma_piece('K', k, 0)]))
        if BT == 2 and k == 1:
            fb.append((13, [salu('s_xor_b32', sMa, sMa, 32768), salu('s_xor_b32', sMb, sMb, 32768)]))
    return phase(pre, mf, fa, fb)

BA = [raw(".p2align 6"), label('L_body0')]
for lp in range(6): BA += body_phase(0, lp)
blk['body_a'] = BA
BB = [label('L_body1')]
for lp in range(6, 12): BB += body_phase(0, lp)
for k in range(1, BT):
    for lp in range(12): BB += body_phase(k, lp)
BB += stamp() + [salu('s_add_u32', sPASS, sPASS, 1), salu('s_cmp_lt_u32', None, sPASS, NIT), branch('s_cbranch_scc1', 'L_body0')]
blk['body_b'] = BB

D1 = [salu('s_mul_i32', sOH, sHEAD, QH, scc_w=False) if not cfg.nostore else smov(sOH, OOB), salu('s_cmp_ge_u32', None, sNEXT, 512), branch('s_cbranch_scc1', 'L_drain')]
blk['bnd_chk'] = D1
N = [smov(sHEAD, sNEXT), smov(sNEXT, '0xffff'), smov(sNB, OOB), smov(sBITN, 2), smov(sQP, 99), smov(sQP1, 99)] + minit_reset() + [branch('s_branch', 'L_fuse')]
blk['bnd_next'] = N
D = [label('L_drain')] + pv_mfmas(5, Pb[1]) + [smov(sFIN, 1), branch('s_branch', 'L_epi0')]
blk['drain'] = D

F = [label('L_end')] + stamp() + [smov(sFIN, 0)]
F += [valu('v_mov_b32', tA, sFLAGS), valu('v_mov_b32', tB, sM0Q), valu('v_mov_b32', tC, LDS_RING),
      ds_write('ds_write_b32', tB, tA, 0), raw("  s_waitcnt lgkmcnt(0)"), barrier()] + [
      ds_read('ds_read_b32', Y8[i], tC, i * 8192) for i in range(4)] + [raw("  s_waitcnt lgkmcnt(0)"),
      valu('v_or_b32', tA, Y8[0], Y8[1]), valu('v_or3_b32', tA, tA, Y8[2], Y8[3]),
      Inst(f"v_readfirstlane_b32 {sFLAGS}, {tA}", 'valu', regs_of(tA), regs_of(sFLAGS)),
      ] + stamp() + stamp_dump() + [salu('s_cmp_eq_u32', None, sFLAGS, 0), branch('s_cbranch_scc1', 'L_exit')]
blk['end'] = F
M = [raw('  s_waitcnt vmcnt(0)'), barrier()]
M += [salu('s_and_b32', sT0, sFLAGS, 1), salu('s_add_u32', sT1, sWG, NWG), salu('s_cmp_lg_u32', None, sT0, 0),
      salu('s_cselect_b32', sHEAD, sWG, sT1, scc_w=False, scc_r=True),
      salu('s_cselect_b32', sT0, 1, 2, scc_w=False, scc_r=True), salu('s_andn2_b32', sFLAGS, sFLAGS, sT0),
      smov(sMODE, 1), smov(sBIT, 0), smov(sNEXT, '0xffff')]
M += [salu('s_mul_i32', sQO, sHEAD, QH, scc_w=False)]
for q in range(6):
    M += [buf_load('buffer_load_dwordx4', Qf[q][j], vQo, srdQ, sQO, j * 64, tag=('mq',)) for j in range(4)]
    M += [salu('s_add_u32', sQO, sQO, 4096)]
M += [waitv(('mq',))]
for q in range(6): M += q_scale_q(q)
M += minit_reset()
M += [valu('v_mbcnt_lo_u32_b32', tC, -1, 0), valu('v_mbcnt_hi_u32_b32', tC, -1, tC),
      valu('v_and_b32', tA, 15, tC), valu('v_lshrrev_b32', tB, 4, tC), valu('v_lshlrev_b32', tA, 8, tA),
      valu('v_lshl_add_u32', vX, tB, 4, tA)]
M += [salu('s_mul_i32', sT1, sHEAD, KH, scc_w=False), smov(sIT, 0)]
blk['max_pre'] = M
ML = [label('L_maxloop')]
ML += [buf_load('buffer_load_dwordx4', KF[0][j], vX, srdK, sT1, j * 64, tag=('mk',)) for j in range(4)]
ML += [waitv(('mk',))]
MS = [Sb[0][0:4], Sb[0][4:8], Sb[1][0:4], Sb[1][4:8], X8[0:4], X8[4:8]]
for q in range(6):
    for j in range(4): ML.append(mfma16(MS[q], KF[0][j], Qf[q][j], 0 if j == 0 else MS[q]))
for q in range(6):
    m = NEGM[q][3]
    ML += [valu('v_max3_f32', m, MS[q][0], MS[q][1], m), valu('v_max3_f32', m, MS[q][2], MS[q][3], m)]
ML += [salu('s_add_u32', sT1, sT1, 4096), salu('s_add_u32', sIT, sIT, 1), salu('s_cmp_lt_u32', None, sIT, 64),
       branch('s_cbranch_scc1', 'L_maxloop')]
blk['max_loop'] = ML
blk['max_post'] = stream_head() + [branch('s_branch', 'L_stream')]
blk['exit'] = [label('L_exit'), raw("  s_endpgm")]

def head_trace(first, has_next):
    t = flat_dyn(blk['fuse'], first)
    for p in range(NIT):
        qf = (p - 12 // BT) if (has_next and p >= 12 // BT) else None
        b = flat_dyn((blk['body_a'] if p else []) + blk['body_b'], qf)
        sh = (p * BT) % 4
        t += [Remap(i, sh) for i in b] if sh else b
    t += blk['bnd_chk'] + (blk['bnd_next'] if has_next else blk['drain'] + [i for e in EPIS for i in e.fin()] + blk['end'])
    return t
trace = blk['entry0'] + blk['entry1'] + blk['entry'] + blk['stream'] + head_trace(True, True) + head_trace(False, False)
for _ in range(2):
    trace += blk['max_pre'] + blk['max_loop'] * 3 + blk['max_post'] + blk['stream'] + head_trace(True, False)
trace += blk['exit']
for b in blk: blk[b] = flat_static(blk[b])

resolve_waits(trace)
for it in range(10):
    n = check_trace(trace, fix=True, verbose=False)
    if n == 0: break
    if n >= 1000: sys.exit("pending-load errors")
assert check_trace(trace, fix=False) == 0
assert check_lds_protocol(trace)

order = ['entry0', 'entry1', 'entry', 'stream', 'fuse', 'body_a', 'body_b', 'bnd_chk', 'bnd_next', 'drain', 'end',
         'max_pre', 'max_loop', 'max_post', 'exit']
NAME = "standalone__mha_softmax__near_ridge_kernel"
out = f"""; MHA forward (B16 H32 Sq384 Sk1024 D128, bf16) - generated by gen/gen.py (hand-written generator)
; @launch grid=({NWG},1,1) block=(256,1,1) lds={LDS_TOTAL}
.amdgcn_target "amdgcn-amd-amdhsa--gfx950"
.text
.globl {NAME}
.p2align 8
.type {NAME},@function
{NAME}:
"""
for b in order:
    out += f"; ---- {b}\n"
    for i in blk[b]: out += i.render()
out += f""".section .rodata,"a"
.p2align 6
.amdhsa_kernel {NAME}
  .amdhsa_next_free_vgpr 512
  .amdhsa_next_free_sgpr 80
  .amdhsa_accum_offset 256
  .amdhsa_group_segment_fixed_size 0
  .amdhsa_kernarg_size 48
  .amdhsa_user_sgpr_count 2
  .amdhsa_user_sgpr_kernarg_segment_ptr 1
  .amdhsa_system_sgpr_workgroup_id_x 1
.end_amdhsa_kernel
"""
open(sys.argv[1], 'w').write(out)
nn = sum(i.pre_nop for b in ('body_a', 'body_b') for i in blk[b])
print("emitted", sys.argv[1], "insts:", {b: len(blk[b]) for b in order}, "body nops:", nn)
```

```python
import sys, math, struct
from asmlib import *

def f2u(f): return struct.unpack('<I', struct.pack('<f', f))[0]

class Cfg:
    dma_flags = " nt"
    q_flags = " nt"
    st_flags = " nt"
    dma_cost = 8
    thr = 2.0 ** 32
    stamps = 0
    otouch = 0
    nostore = 0
    rowsum = 'mfma'
    bt = 4
    stampdbg = -1
    q45late = 0
cfg = Cfg()
for a in sys.argv[2:]:
    k, v = a.split('=', 1)
    cur = getattr(cfg, k)
    setattr(cfg, k, type(cur)(v) if not isinstance(cur, str) else v.replace('_', ' '))

NWG = 256
QH = 98304
KH = 262144
Q_BYTES = 512 * QH
K_BYTES = 512 * KH
OOB = 0x10000000
LDS_RING = 131072
LDS_TOTAL = LDS_RING + 32768
SCALE = (128 ** -0.5) * math.log2(math.e)

vTID = V(0)
aK = [V(1 + j) for j in range(4)]
aV = [V(5 + d) for d in range(8)]
dK = [V(13 + i) for i in range(4)]
dV = [V(17 + i) for i in range(2)]
vQo, vOo = V(19), V(20)
vX = V(21)
RL = V(22, 2)
T4 = [V(24, 4), V(28, 4)]
Sb = [V(32, 8), V(40, 8)]
Pb = [V(48, 4), V(52, 4)]
NEGM = [V(56 + 4 * q, 4) for q in range(6)]
Qf = [[V(80 + (q * 4 + j) * 4, 4) for j in range(4)] for q in range(6)]
def Oblk(q, db):
    if q < 4: return A((q * 8 + db) * 4, 4)
    return V(176 + ((q - 4) * 8 + db) * 4, 4)
X8 = V(240, 8)
Y8 = V(248, 8)
KF = [[A(128 + (kb * 4 + j) * 4, 4) for j in range(4)] for kb in range(2)]
VF = [A(160 + db * 4, 4) for db in range(8)]
Lb = [A(192 + 4 * q, 4) for q in range(6)]
ONES = A(216, 4)
S0 = [Sb[0], Y8, Sb[1], Sb[0], Y8, Sb[1]]
QST = [[A(220 + (q * 4 + j) * 4, 4) for j in range(4)] for q in range(2)]
vQs = V(0)

srdQ, srdK, srdV, srdO = S(8, 4), S(12, 4), S(16, 4), S(20, 4)
sWG = S(2)
sW, sM0B, sHEAD, sNEXT, sDOFF, sNB, sPASS, sMODE, sFLAGS, sQO, sBIT, sTHR = [S(24 + i) for i in range(12)]
sARG = S(36, 8)
sC = S(44, 2)
sMASK, sFIRST, sT0, sT1, sIT, sOH, sQH, sQP = S(46), S(47), S(48), S(49), S(50), S(51), S(62), S(63)
M0 = 'm0'
sQO2, sM0Q, sBITN, M0S, sFIN, sMa, sMb, sQP1 = [S(64 + i) for i in range(8)]

def smov(d, x): return salu('s_mov_b32', d, x, scc_w=False)
srdW = S(56, 4); sST = S(52, 2); sSTO = S(54); sST2 = S(60, 2)
sSTI = S(55)
def stamp():
    if not cfg.stamps: return []
    t0, t1 = T4[0][0], T4[0][1]
    def acc_r(d, a): return Inst(f"v_accvgpr_read_b32 {d}, {a}", 'valu', regs_of(a), regs_of(d))
    def acc_w(a, d): return Inst(f"v_accvgpr_write_b32 {a}, {d}", 'valu', regs_of(d), regs_of(a))
    def wl(d, s): return Inst(f"v_writelane_b32 {d}, {s}, {sSTI}", 'valu', regs_of(d) + regs_of(s) + regs_of(sSTI), regs_of(d))
    return [raw(f"  s_memtime {sST}", wr=[sST]), raw(f"  s_memrealtime {sST2}", wr=[sST2]), acc_r(t0, A(252)), acc_r(t1, A(253)),
            raw("  s_waitcnt lgkmcnt(0)"), smov(M0S, M0), smov(M0, sSTI), nop(1),
            Inst(f"v_writelane_b32 {t0}, {sST[0]}, m0", 'valu', regs_of(t0), regs_of(t0)),
            Inst(f"v_writelane_b32 {t1}, {sST2[0]}, m0", 'valu', regs_of(t1), regs_of(t1)),
            smov(M0, M0S), acc_w(A(252), t0), acc_w(A(253), t1), salu('s_add_u32', sSTI, sSTI, 1)]
def stamp_dump():
    if not cfg.stamps: return []
    t = T4[0]
    st = Inst(f"buffer_store_dwordx2 {t[0:2]}, {t[2]}, {srdW}, {sSTO} offen", 'vmem_store', regs_of(t[0:3]) + regs_of(srdW) + regs_of(sSTO), [])
    st.sdata = regs_of(t[0:2])
    if cfg.stampdbg >= 0:
        st = Inst(f"buffer_store_dword {t[1]}, {t[2]}, {srdW}, {sSTO} offen", 'vmem_store', regs_of(t[0:3]) + regs_of(srdW) + regs_of(sSTO), [])
        st.sdata = regs_of(t[1])
        return [Inst(f"v_accvgpr_read_b32 {t[1]}, a253", 'valu', regs_of(A(253)), regs_of(t[1])),
                valu('v_mbcnt_lo_u32_b32', t[2], -1, 0), valu('v_mbcnt_hi_u32_b32', t[2], -1, t[2]), valu('v_lshlrev_b32', t[2], 2, t[2]), st]
    return [Inst(f"v_accvgpr_read_b32 {t[0]}, a252", 'valu', regs_of(A(252)), regs_of(t[0])),
            Inst(f"v_accvgpr_read_b32 {t[1]}, a253", 'valu', regs_of(A(253)), regs_of(t[1])),
            valu('v_mbcnt_lo_u32_b32', t[2], -1, 0), valu('v_mbcnt_hi_u32_b32', t[2], -1, t[2]), valu('v_lshlrev_b32', t[2], 3, t[2]), st]

def phase(pre, mf, fa, fb=(), fa_start=0):
    out = list(pre)
    fb = sorted(fb, key=lambda x: x[0])
    total = sum(i.cost for i in fa) + sum(i.cost for _, l in fb for i in l)
    ng = len(mf)
    budget = max(8, int(math.ceil(total / max(ng - fa_start, 1) / 4.0)) * 4)
    ia = 0
    fb = list(fb)
    for g, m in enumerate(mf):
        out.append(m)
        rem = budget
        while fb and fb[0][0] <= g:
            c = sum(i.cost for i in fb[0][1])
            if c <= rem or rem == budget:
                out += fb[0][1]; rem -= c; fb.pop(0)
            else: break
        while g >= fa_start and ia < len(fa) and fa[ia].cost <= rem:
            out.append(fa[ia]); rem -= fa[ia].cost; ia += 1
    for _, l in fb: out += l
    out += fa[ia:]
    return out

def qk_mfmas(q, Sdst, cinit):
    L = []
    for kb in range(2):
        d = Sdst[4 * kb:4 * kb + 4]
        for j in range(4):
            L.append(mfma16(d, KF[kb][j], Qf[q][j], (cinit if j == 0 else d)))
    return L
def pv_mfmas(q, P, first=False):
    L = [mfma16(Oblk(q, db), VF[db], P, 0 if first else Oblk(q, db)) for db in range(8)]
    if cfg.rowsum == 'mf4':
        L.insert(4, mfma4(Lb[q], ONES[0:2], P[0:2], 0 if first else Lb[q]))
        L.append(mfma4(Lb[q], ONES[0:2], P[2:4], Lb[q]))
    elif cfg.rowsum == 'mfma' or first: L.append(mfma16(Lb[q], ONES, P, 0 if first else Lb[q]))
    return L
def sm_valu(Ssrc, P, lacc=None):
    e = [valu('v_exp_f32', Ssrc[i], Ssrc[i], trans=True) for i in range(8)]
    c = [valu('v_cvt_pk_bf16_f32', P[i], Ssrc[2 * i], Ssrc[2 * i + 1]) for i in range(4)]
    if lacc is not None:
        a = [valu('v_add_f32', lacc, lacc, Ssrc[i]) for i in range(8)]
        return [e[0], e[1], a[0], c[0], e[2], a[1], a[2], e[3], e[4], a[3], c[1], e[5], a[4], a[5], e[6], e[7], c[2], a[6], a[7], c[3]]
    return [e[0], e[1], e[2], c[0], e[3], e[4], c[1], e[5], e[6], c[2], e[7], c[3]]
def k_read(kb, j, slot, sub):
    return ds_read('ds_read_b128', KF[kb][j], aK[j], slot * 16384 + sub * 8192 + kb * 4096, tag=('t', slot, 'K'))
def v_reads(db, slot, sub):
    return [ds_read('ds_read_b64_tr_b16', VF[db][2 * h:2 * h + 2], aV[db], slot * 16384 + sub * 8192 + h * 4096, tag=('t', slot, 'V'))
            for h in range(2)]
def dma_piece(part, slot, idx):
    if part == 'K': d = dma(dK[idx], srdK, sDOFF, idx * 1024, ('t', slot, 'K'), cfg.dma_flags, cfg.dma_cost)
    else: d = dma(dV[idx & 1], srdV, sDOFF, idx * 1024, ('t', slot, 'V'), cfg.dma_flags, cfg.dma_cost)
    d.piece = idx
    return d
def set_m0(part, slot):
    return salu('s_add_u32', M0, sM0B, (65536 if part == 'V' else 0) + slot * 16384)
ALLK = [KF[kb][j] for kb in range(2) for j in range(4)]

def q_loads():
    L = [salu('s_mul_i32', sQO, sHEADQ, QH, scc_w=False)]
    for q in range(6):
        for j in range(4):
            L.append(buf_load('buffer_load_dwordx4', Qf[q][j], vQo, srdQ, sQO, j * 64, tag=('q', q), flags=cfg.q_flags))
        if q < 5: L.append(salu('s_add_u32', sQO, sQO, 4096))
    return L
def q_scale():
    L = []
    for q in range(6):
        L.append(waitv(('q', q)))
        for j in range(4):
            x = Qf[q][j]; t = X8 if (j & 1) == 0 else Y8
            for i in range(4):
                L.append(valu('v_lshlrev_b32', t[2 * i], 16, x[i]))
                L.append(valu('v_and_b32', t[2 * i + 1], sMASK, x[i]))
            for i in range(4):
                L.append(valu('v_pk_mul_f32', t[2 * i:2 * i + 2], t[2 * i:2 * i + 2], sC))
            for i in range(4):
                L.append(valu('v_cvt_pk_bf16_f32', x[i], t[2 * i], t[2 * i + 1]))
    return L
def minit_reset():
    return [valu('v_mov_b32', NEGM[q][3], '0xff800000') for q in range(6)]

def max_valu(q):
    s = S0[q]; m = NEGM[q][3]; t = RL[q & 1]
    L = [valu('v_max3_f32', m, s[0], s[1], m), valu('v_max3_f32', m, s[2], s[3], m),
         valu('v_max3_f32', m, s[4], s[5], m), valu('v_max3_f32', m, s[6], s[7], m),
         valu('v_mov_b32', t, m), permswap('v_permlane32_swap_b32', t, m), valu('v_max_f32', m, t, m),
         valu('v_mov_b32', t, m), permswap('v_permlane16_swap_b32', t, m), valu('v_max_f32', t, t, m)]
    L += [valu('v_sub_f32', s[i], s[i], t) for i in range(8)]
    L += [valu('v_sub_f32', NEGM[q][i], 0, t) for i in range(4)]
    return L

blk = {}
E = []
E += [salu('s_cmp_ge_u32', None, sWG, NWG), branch('s_cbranch_scc1', 'L_exit')]
E += [raw(f"  s_load_dwordx8 {sARG}, s[0:1], 0", wr=[sARG])]
E += [valu('v_lshrrev_b32', vX, 6, vTID), valu('v_and_b32', vTID, 63, vTID)]
E += [Inst(f"v_readfirstlane_b32 {sW}, {vX}", 'valu', regs_of(vX), regs_of(sW))]
tA, tB, tC, tD = X8[0], X8[1], X8[2], X8[3]
tQ, tG = X8[4], X8[5]
E += [valu('v_and_b32', tQ, 15, vTID), valu('v_lshrrev_b32', tG, 4, vTID)]
E += [smov(sHEAD, sWG), valu('v_lshlrev_b32', tA, 8, tQ), valu('v_xor_b32', tD, tG, tQ)]
E += [salu('s_mul_i32', sT0, sW, 96 * 256, scc_w=False), salu('s_lshl_b32', sM0B, sW, 12)]
E += [valu('v_add_u32', tA, sT0, tA), valu('v_lshl_add_u32', vQo, tG, 4, tA)]
E += [valu('v_lshlrev_b32', tB, 8, tG), valu('v_add_u32', tB, sM0B, tB)]
for i in range(4):
    E += [valu('v_xor_b32', tC, 4 * i, tD), valu('v_lshl_add_u32', dK[i], tC, 4, tB)]
def mk_srd(srd, k, nb): return [smov(srd[0], sARG[k]), salu('s_and_b32', srd[1], sARG[k + 1], '0xffff'), smov(srd[2], nb), smov(srd[3], '0x20000')]
E += [smov(srdQ[2], Q_BYTES), smov(srdQ[3], '0x20000'), smov(srdK[2], K_BYTES), smov(srdK[3], '0x20000')]
E += [raw("  s_waitcnt lgkmcnt(0)")]
E += [smov(srdQ[0], sARG[0]), salu('s_and_b32', srdQ[1], sARG[1], '0xffff'), smov(srdK[0], sARG[2]), salu('s_and_b32', srdK[1], sARG[3], '0xffff')]
blk['entry0'] = E
E = []
E += mk_srd(srdV, 4, K_BYTES) + mk_srd(srdO, 6, Q_BYTES)
E += [valu('v_lshlrev_b32', tA, 1, tG), valu('v_xor_b32', tA, tA, tQ)]
for i in range(2):
    E += [valu('v_xor_b32', tC, 8 * i, tA), valu('v_lshl_add_u32', dV[i], tC, 4, tB)]
E += [valu('v_lshlrev_b32', tB, 8, tQ)]
for j in range(4):
    E += [valu('v_xor_b32', tC, 4 * j, tD), valu('v_lshl_add_u32', aK[j], tC, 4, tB)]
E += [valu('v_lshrrev_b32', tA, 2, vTID), valu('v_and_b32', tC, 7, tA), valu('v_lshlrev_b32', tA, 8, tA),
      valu('v_and_b32', tB, 3, vTID), valu('v_lshl_add_u32', tA, tB, 3, tA), valu('v_add_u32', tA, 65536, tA)]
for db in range(8):
    E += [valu('v_xor_b32', tB, db, tC), valu('v_lshl_add_u32', aV[db], tB, 5, tA)]
E += [valu('v_lshlrev_b32', vOo, 4, vTID), valu('v_add_u32', vOo, sT0, vOo)]
E += [smov(sMa, sM0B), salu('s_add_u32', sMb, sM0B, 32768)]
E += [salu('s_lshl_b32', sM0Q, sW, 13), salu('s_add_u32', sM0Q, sM0Q, LDS_RING),
      valu('v_lshlrev_b32', vQs, 4, vTID), valu('v_add_u32', vQs, sM0Q, vQs)]
E += [valu('v_lshrrev_b32', tA, 1, tG), valu('v_xor_b32', tA, tA, tQ), valu('v_lshlrev_b32', tA, 4, tA), valu('v_lshl_add_u32', tA, tQ, 8, tA),
      valu('v_and_b32', tB, 1, tG), valu('v_lshl_add_u32', tA, tB, 3, tA), valu('v_add_u32', tA, sM0Q, tA),
      Inst("v_accvgpr_write_b32 a254, " + str(tA), 'valu', regs_of(tA), regs_of(A(254))),
      valu('v_lshlrev_b32', tA, 4, tD), valu('v_lshl_add_u32', tA, tG, 8, tA), valu('v_add_u32', tA, sM0Q, tA),
      Inst("v_accvgpr_write_b32 a255, " + str(tA), 'valu', regs_of(tA), regs_of(A(255)))]
E += [valu('v_mov_b32', tA, '0x3f803f80')]
E += [Inst(f"v_accvgpr_write_b32 {ONES[i]}, {tA}", 'valu', regs_of(tA), regs_of(ONES[i])) for i in range(4)]
E += [smov(sC[0], hex(f2u(SCALE))), smov(sC[1], hex(f2u(SCALE))), smov(sMASK, '0xffff0000'), smov(sTHR, hex(f2u(cfg.thr)))]
E += [salu('s_add_u32', sNEXT, sWG, NWG), smov(sMODE, 0), smov(sFLAGS, 0), smov(sBIT, 1), smov(sFIN, 0)]
E += minit_reset()
if cfg.stamps:
    E += [raw(f"  s_load_dwordx2 {srdW[0:2]}, s[0:1], {32 if cfg.stampdbg >= 0 else 40}", wr=[srdW[0:2]]), raw("  s_waitcnt lgkmcnt(0)"),
          salu('s_and_b32', srdW[1], srdW[1], '0xffff'), smov(srdW[2], 1 << 20), smov(srdW[3], '0x20000'),
          salu('s_lshl_b32', sSTO, sWG, 2), salu('s_add_u32', sSTO, sSTO, sW)]
    if cfg.stampdbg >= 0:
        E += [salu('s_cmp_eq_u32', None, sSTO, cfg.stampdbg), salu('s_cselect_b32', srdW[2], 64, 0, scc_w=False, scc_r=True), smov(sSTO, 0)]
    else: E += [salu('s_lshl_b32', sSTO, sSTO, 9)]
    E += [smov(sSTI, 0), smov(M0, 0), Inst('v_accvgpr_write_b32 a252, 0', 'valu', [], regs_of(A(252))), Inst('v_accvgpr_write_b32 a253, 0', 'valu', [], regs_of(A(253)))]
    E += stamp()
blk['entry'] = E

def q_load_q(q, restore_m0=None):
    L = [salu('s_add_u32', sQO, sQH, q * 4096)]
    if q < 2:
        L += [buf_load('buffer_load_dwordx4', QST[q][j], vQo, srdQ, sQO, j * 64, tag=('q', q), flags=cfg.q_flags) for j in range(4)]
    elif q < 4:
        for j in range(4):
            L.append(salu('s_add_u32', M0, sM0Q, ((q - 2) * 4 + j) * 1024 - j * 64))
            d = dma(vQo, srdQ, sQO, j * 64, ('q', q), cfg.q_flags, cfg.dma_cost); d.piece = j; L.append(d)
        if restore_m0: L.append(restore_m0)
    else:
        L += [buf_load('buffer_load_dwordx4', Qf[q][j], vQo, srdQ, sQO, j * 64, tag=('q', q), flags=cfg.q_flags) for j in range(4)]
    return L
def q_unstage(q):
    if q < 2:
        return [Inst(f"v_accvgpr_read_b32 {Qf[q][j][i]}, {QST[q][j][i]}", 'valu', regs_of(QST[q][j][i]), regs_of(Qf[q][j][i]))
                for j in range(4) for i in range(4)]
    if q < 4:
        return [ds_read('ds_read_b128', Qf[q][j], vQs, ((q - 2) * 4 + j) * 1024) for j in range(4)]
    return []
def q_scale_q(q):
    L = []
    for j in range(4):
        x = Qf[q][j]; t = X8
        for i in range(4):
            L.append(valu('v_lshlrev_b32', t[2 * i], 16, x[i]))
            L.append(valu('v_and_b32', t[2 * i + 1], sMASK, x[i]))
        for i in range(4):
            L.append(valu('v_pk_mul_f32', t[2 * i:2 * i + 2], t[2 * i:2 * i + 2], sC))
        for i in range(4):
            L.append(valu('v_cvt_pk_bf16_f32', x[i], t[2 * i], t[2 * i + 1]))
    return L
_ti = [0]
def epi_q(q, tsets):
    D = [salu('s_add_u32', sQO2, sOH, q * 4096)]
    D += [Inst(f"v_accvgpr_read_b32 {RL[1]}, {Lb[q][0]}", 'valu', regs_of(Lb[q][0]), regs_of(RL[1]))]
    if cfg.rowsum == 'mf4':
        D += [valu('v_mov_b32', RL[0], RL[1]), permswap('v_permlane32_swap_b32', RL[0], RL[1]), valu('v_add_f32', RL[1], RL[0], RL[1]),
              valu('v_mov_b32', RL[0], RL[1]), permswap('v_permlane16_swap_b32', RL[0], RL[1]), valu('v_add_f32', RL[1], RL[0], RL[1])]
    D += [valu('v_rcp_f32', RL[0], RL[1], trans=True)]
    if q == 0: D += [valu('v_mov_b32', vX, RL[1])]
    else: D += [valu('v_add_f32', vX, vX, RL[1])]
    for dp in range(4):
        if q < 4:
            t = tsets[dp % len(tsets)]
            for bi in range(2):
                o = Oblk(q, 2 * dp + bi)
                D += [Inst(f"v_accvgpr_read_b32 {t[4*bi+i]}, {o[i]}", 'valu', regs_of(o[i]), regs_of(t[4 * bi + i])) for i in range(4)]
        else:
            o = Oblk(q, 2 * dp); t = V(o.n, 8)
        for i in range(4):
            D += [valu('v_pk_mul_f32', t[2 * i:2 * i + 2], t[2 * i:2 * i + 2], RL, extra="op_sel_hi:[1,0]")]
        T = T4[_ti[0] % 2]; _ti[0] += 1
        for i in range(4): D += [valu('v_cvt_pk_bf16_f32', T[i], t[2 * i], t[2 * i + 1])]
        D += [permswap('v_permlane16_swap_b32', T[0], T[2]), permswap('v_permlane16_swap_b32', T[1], T[3])]
        D += [buf_store('buffer_store_dwordx4', T, vOo, srdO, sQO2, dp * 64, flags=cfg.st_flags)]
    return D
aWA, aRA = A(254), A(255)
def acc_read(d, a): return Inst(f"v_accvgpr_read_b32 {d}, {a}", 'valu', regs_of(a), regs_of(d))
def oreg(q, t):
    return Oblk(q, t)
def epi_a(q):
    half = (q & 1) * 4096
    D = [acc_read(RL[1], Lb[q][0]), valu('v_rcp_f32', RL[0], RL[1], trans=True)]
    D += [valu('v_mov_b32', vX, RL[1]) if q == 0 else valu('v_add_f32', vX, vX, RL[1])]
    D += [acc_read(RL[1], aWA)]
    for dp in range(4):
        if q < 4:
            t = X8
            for bi in range(2):
                o = Oblk(q, 2 * dp + bi)
                D += [acc_read(t[4 * bi + i], o[i]) for i in range(4)]
        else:
            o = Oblk(q, 2 * dp); t = V(o.n, 8)
        mul = [Inst(f"v_pk_mul_f32 {t[2*i:2*i+2]}, {t[2*i:2*i+2]}, {RL} op_sel_hi:[1,0]", 'valu',
                    regs_of(t[2 * i:2 * i + 2]) + regs_of(RL[0]), regs_of(t[2 * i:2 * i + 2])) for i in range(4)]
        D += mul
        T = T4[dp % 2]
        D += [valu('v_cvt_pk_bf16_f32', T[i], t[2 * i], t[2 * i + 1]) for i in range(4)]
        for bi in range(2):
            db = 2 * dp + bi
            D += [ds_write('ds_write_b64', RL[1], T[2 * bi:2 * bi + 2], half)]
            if db < 7: D += [valu('v_xor_b32', RL[1], (db ^ (db + 1)) << 5, RL[1])]
    D += [acc_read(RL[1], aRA)]
    for t in range(4):
        D += [ds_read('ds_read_b128', oreg(q, t), RL[1], half + t * 1024)]
        if t < 3: D += [valu('v_xor_b32', RL[1], (t ^ (t + 1)) << 6, RL[1])]
    return D
def epi_b(q):
    D = [salu('s_add_u32', sQO2, sOH, q * 4096), waitl(*[oreg(q, t) for t in range(4)])]
    D += [buf_store('buffer_store_dwordx4', oreg(q, t), vOo, srdO, sQO2, t * 1024, flags=cfg.st_flags) for t in range(4)]
    return D
def fail_check():
    return [Inst(f"v_cmp_nge_f32 vcc, {sTHR}, {vX}", 'valu', regs_of(sTHR) + regs_of(vX), [('x', 'vcc')]),
            salu('s_cmp_lg_u64', None, 'vcc', 0), salu('s_cselect_b32', sT0, sBIT, 0, scc_w=False, scc_r=True),
            salu('s_or_b32', sFLAGS, sFLAGS, sT0)]

def is_pk(i): return 'v_pk_' in i.text
def vphase(mf, seq, start=0):
    n = len(seq); out = []
    if not mf: return list(seq)
    tot = sum(i.cost for i in seq if isinstance(i, Inst))
    step = (tot * (1.0 - start)) / len(mf)
    acc = 0.0; nxt = tot * start; k = 0
    for idx, i in enumerate(seq):
        if k < len(mf) and acc >= nxt:
            look = [x for x in seq[idx:idx + 3] if isinstance(x, Inst)]
            if not any(is_pk(x) for x in look):
                m = mf[k]; out += (m if isinstance(m, list) else [m]); k += 1; nxt += step
        out.append(i)
        if isinstance(i, Inst): acc += i.cost
    for m in mf[k:]: out += (m if isinstance(m, list) else [m])
    return out

class Cond:
    n = 0
    def __init__(self, first, body):
        self.first, self.body = first, body
        self.lab = f"L_c{Cond.n}"; Cond.n += 1
        self.head = [salu('s_cmp_eq_u32', None, sFIRST, 0), branch('s_cbranch_scc1' if first else 's_cbranch_scc0', self.lab)]
        self.tail = [label(self.lab)]
    def static(self): return self.head + self.body + self.tail
    def dyn(self, first): return self.head + (self.body if first == self.first else []) + self.tail
def flat_static(seq): return [y for x in seq for y in (x.static() if hasattr(x, 'static') else [x])]
def flat_dyn(seq, flag):
    out = []
    for x in seq:
        if hasattr(x, 'dyn'): out += x.dyn(flag)
        elif flag is True and getattr(x, 'nf_only', False): out.append(Ghost(x))
        else: out.append(x)
    return out
def waitv_nf(*tags):
    w = waitv(*tags); w.nf_only = True; return w

def tile_dma(part, t): return [set_m0(part, t)] + [dma_piece(part, t, i) for i in range(4)]
nxt_tile = lambda: [salu('s_add_u32', sDOFF, sDOFF, 16384)]

def stream_head():
    return [salu('s_mul_i32', sQH, sHEAD, QH, scc_w=False), salu('s_mul_i32', sDOFF, sHEAD, KH, scc_w=False)] + \
           q_load_q(0) + tile_dma('K', 0) + q_load_q(1)
blk['entry1'] = stream_head()
B = [label('L_stream')]
B += [salu('s_mul_i32', sNB, sNEXT, KH, scc_w=False), salu('s_cmp_lt_u32', None, sNEXT, 512),
      salu('s_cselect_b32', sNB, sNB, OOB, scc_w=False, scc_r=True),
      salu('s_cselect_b32', sQP, 12 // cfg.bt, 99, scc_w=False, scc_r=True), salu('s_add_u32', sQP1, sQP, 1),
      smov(sFIRST, 1), smov(sOH, OOB), smov(sBITN, sBIT), smov(sBIT, 0)]
blk['stream'] = B

zero_init = [valu('v_mov_b32', Oblk(5, db)[i], 0) for db in range(8) for i in range(4)]
zero_init += [Inst(f"v_accvgpr_write_b32 {Lb[5][i]}, 0", 'valu', [], regs_of(Lb[5][i])) for i in range(4)]
first_issue = {0: q_load_q(2), 1: q_load_q(3), 2: q_load_q(4), 3: q_load_q(5),
               4: tile_dma('V', 1) + nxt_tile(), 5: tile_dma('K', 2)}
FU = [label('L_fuse'), smov(sPASS, 0)] + stamp()
def st2(): return stamp() if cfg.stamps >= 2 else []
GR = [('q', 0), ('t', 0, 'K'), ('q', 1), ('q', 2), ('q', 3), ('t', 0, 'V'), ('q', 4), ('q', 5),
      ('t', 1, 'K'), ('t', 1, 'V'), ('t', 2, 'K'), ('t', 2, 'V'), ('t', 3, 'K')]
def issue(k):
    t = GR[k]
    if t[0] == 'q': return q_load_q(t[1])
    if t[1] == 3: return [set_m0('K', 3), dma_piece('K', 3, 0)]
    return tile_dma(t[2], t[1]) + (nxt_tile() if t[2] == 'V' else [])
def top(k, extra=()): return [Cond(True, ([waitv(GR[k - 3])] if k <= 10 else []) + issue(k) + list(extra))]
def qfetch(q): return [waitv_nf(('q', q))] + q_unstage(q)
def qscale(q): return ([waitl(*Qf[q])] if 2 <= q <= 3 else []) + q_scale_q(q)
class EpiBlk:
    def __init__(self, n, body, last=False):
        self.head = [salu('s_cmp_eq_u32', None, sFIRST, 0), branch('s_cbranch_scc0', f'L_epx{n}')]
        self.body = [label(f'L_epi{n}')] + body
        self.chain = [salu('s_cmp_lg_u32', None, sFIN, 0), branch('s_cbranch_scc1', 'L_end' if last else f'L_epi{n+1}')]
        self.tail = [label(f'L_epx{n}')]
    def static(self): return self.head + self.body + self.chain + self.tail
    def dyn(self, first): return self.head + ([] if first else self.body + self.chain) + self.tail
    def fin(self): return self.body + self.chain
EPIS = [EpiBlk(0, epi_a(0) + epi_a(1) + epi_b(0)), EpiBlk(1, epi_a(2) + epi_b(1)), EpiBlk(2, epi_a(3) + epi_b(2)),
        EpiBlk(3, epi_a(4) + epi_b(3) + epi_a(5) + fail_check() + epi_b(4)), EpiBlk(4, epi_b(5), last=True)]
QK0 = lambda q: qk_mfmas(q, S0[q], 0)
PV0 = lambda q: pv_mfmas(q, Pb[q % 2], first=True)
SM0 = lambda q: sm_valu(S0[q], Pb[q % 2])
pv = pv_mfmas(5, Pb[1])
def pv_db(m):
    for db in range(8):
        if VF[db].regs()[0] in m.ab: return db
    return None
mf0 = [([m] + v_reads(pv_db(m), 0, 0)) if pv_db(m) is not None else [m] for m in pv]
for m in mf0:
    for r in m[1:]: r.tag = ('tx', 0, 'V')
FU += [Cond(False, q_load_q(4) + q_load_q(5))]
FU += vphase(mf0, top(3) + qfetch(0) + qscale(0)
             + top(4, [barrier()] + [k_read(kb, j, 0, 0) for kb in range(2) for j in range(4)])
             + top(5) + qfetch(1) + qscale(1)) + st2()
FU += [waitl(*ALLK)]
FU += vphase(QK0(0) + QK0(1), top(6) + qfetch(2) + top(7) + qfetch(3) + qscale(2)
             + top(8, [barrier()] + [r for db in range(8) for r in v_reads(db, 0, 0)]) + qscale(3)) + st2()
FU += vphase(QK0(2), max_valu(0) + SM0(0) + max_valu(1) + SM0(1)) + st2()
FU += [EPIS[0]] + st2()
FU += [waitl(*VF)]
FU += vphase(QK0(3) + PV0(0), max_valu(2) + top(9) + qfetch(4) + qscale(4)) + [EPIS[1]] + st2()
FU += vphase(QK0(4) + PV0(1), SM0(2) + top(10) + qfetch(5) + qscale(5) + max_valu(3)) + [EPIS[2]] + st2()
qk5 = QK0(5); qk5 = [[qk5[kb * 4 + j], k_read(kb, j, 0, 1)] for kb in range(2) for j in range(4)]
FU += vphase(qk5 + PV0(2), SM0(3) + max_valu(4) + top(11)) + [EPIS[3]] + st2()
FU += vphase(PV0(3), SM0(4) + max_valu(5) + top(12) + []) + [EPIS[4]] + st2()
FU += [waitl(*ALLK)]
FU += vphase(qk_mfmas(0, Sb[0], NEGM[0]) + PV0(4), [set_m0('K', 3), dma_piece('K', 3, 1)] + SM0(5) + [dma_piece('K', 3, 2)] + zero_init[:18] + [dma_piece('K', 3, 3)] + zero_init[18:] + [set_m0('V', 3), dma_piece('V', 3, 0)])
FU += [smov(sFIRST, 0), smov(sBIT, sBITN), salu('s_mul_i32', sQH, sNEXT, QH, scc_w=False)] + stamp() + [branch('s_branch', 'L_body1')]
blk['fuse'] = FU

class CondQ:
    n = 0
    def __init__(self, body, dp):
        self.body = body; self.lab = f"L_q{CondQ.n}"; CondQ.n += 1; self.dp = dp
        self.head = [salu('s_cmp_eq_u32', None, sPASS, sQP if dp == 0 else sQP1), branch('s_cbranch_scc0', self.lab)]
        self.tail = [label(self.lab)]
        self.cost = 8
    def static(self): return self.head + self.body + self.tail
    def dyn(self, flag): return self.head + (self.body if flag == self.dp else []) + self.tail

BT = cfg.bt
NIT = 16 // BT
def set_m0r(part, r):
    if BT == 4: return set_m0(part, r)
    return salu('s_add_u32', M0, sMa if r < 2 else sMb, (65536 if part == 'V' else 0) + (r & 1) * 16384)
def k_read_r(kb, j, r, sub):
    d = k_read(kb, j, r % BT if BT == 2 else r, sub); d.tag = ('t', r, 'K'); return d

def body_phase(k, lp):
    sub, q = divmod(lp, 6)
    qn = (q + 1) % 6; qp = (q - 1) % 6
    pre = []; fb = []
    mf = qk_mfmas(qn, Sb[(q + 1) % 2], NEGM[qn]) + pv_mfmas(qp, Pb[(q - 1) % 2])
    fa = sm_valu(Sb[q % 2], Pb[q % 2], X8[q] if cfg.rowsum == 'valu' else None)
    if q == 4:
        slot, s2 = (k, 1) if sub == 0 else ((k + 1) % 4, 0)
        if sub == 1: pre += [waitv(('t', slot, 'V')), barrier()]
        for kb in range(2):
            for j in range(4): fb.append((kb * 4 + j, [k_read_r(kb, j, slot, s2)]))
    if q == 5: pre += [waitl(*ALLK)]
    if q == 0:
        for gi, m in enumerate(mf):
            if gi >= 8 and pv_db(m) is not None: fb.append((gi, v_reads(pv_db(m), k, sub)))
    if q == 1: fb.append((7, [waitl(*VF)]))
    x3 = (k + 3) % 4
    if lp in (1, 2, 3): fb.append((2, [dma_piece('K', x3, lp)]))
    if lp == 5: fb.append((2, [set_m0r('V', x3), dma_piece('V', x3, 0)]))
    if lp in (7, 8, 9): fb.append((2, [dma_piece('V', x3, lp - 6)]))
    if lp == 8:
        if BT == 4: fb.append((12, [CondQ(q_load_q(k, restore_m0=set_m0r('V', x3)), 0)]))
        else:
            fb.append((12, [CondQ(q_load_q(k), 0)]))
            fb.append((14, [CondQ(q_load_q(k + 2, restore_m0=set_m0r('V', x3)), 1)]))
    if BT == 2 and k == 1:
        if lp == 7:
            for j in range(4): fb.append((11 + j, [valu('v_xor_b32', aK[j], 32768, aK[j])]))
        if lp in (8, 9):
            for d in range(4): fb.append((9 + 2 * d if lp == 9 else 9 + d // 2 + 6 * (d // 2), [valu('v_xor_b32', aV[4 * (lp - 8) + d], 32768, aV[4 * (lp - 8) + d])]))
    if lp == 11:
        upd = [salu('s_add_u32', sDOFF, sDOFF, 16384)]
        if k == 0:
            upd += [salu('s_cmp_eq_u32', None, sPASS, 12 // BT), salu('s_cselect_b32', sDOFF, sNB, sDOFF, scc_w=False, scc_r=True)]
        fb.append((0, upd[:2]))
        if len(upd) > 2: fb.append((1, upd[2:]))
        fb.append((2, [set_m0r('K', k), dma_piece('K', k, 0)]))
        if BT == 2 and k == 1:
            fb.append((13, [salu('s_xor_b32', sMa, sMa, 32768), salu('s_xor_b32', sMb, sMb, 32768)]))
    return phase(pre, mf, fa, fb)

BA = [raw(".p2align 6"), label('L_body0')]
for lp in range(6): BA += body_phase(0, lp)
blk['body_a'] = BA
BB = [label('L_body1')]
for lp in range(6, 12): BB += body_phase(0, lp)
for k in range(1, BT):
    for lp in range(12): BB += body_phase(k, lp)
BB += stamp() + [salu('s_add_u32', sPASS, sPASS, 1), salu('s_cmp_lt_u32', None, sPASS, NIT), branch('s_cbranch_scc1', 'L_body0')]
blk['body_b'] = BB

D1 = [salu('s_mul_i32', sOH, sHEAD, QH, scc_w=False) if not cfg.nostore else smov(sOH, OOB), salu('s_cmp_ge_u32', None, sNEXT, 512), branch('s_cbranch_scc1', 'L_drain')]
blk['bnd_chk'] = D1
N = [smov(sHEAD, sNEXT), smov(sNEXT, '0xffff'), smov(sNB, OOB), smov(sBITN, 2), smov(sQP, 99), smov(sQP1, 99)] + minit_reset() + [branch('s_branch', 'L_fuse')]
blk['bnd_next'] = N
D = [label('L_drain')] + pv_mfmas(5, Pb[1]) + [smov(sFIN, 1), branch('s_branch', 'L_epi0')]
blk['drain'] = D

F = [label('L_end')] + stamp() + [smov(sFIN, 0)]
F += [valu('v_mov_b32', tA, sFLAGS), valu('v_mov_b32', tB, sM0Q), valu('v_mov_b32', tC, LDS_RING),
      ds_write('ds_write_b32', tB, tA, 0), raw("  s_waitcnt lgkmcnt(0)"), barrier()] + [
      ds_read('ds_read_b32', Y8[i], tC, i * 8192) for i in range(4)] + [raw("  s_waitcnt lgkmcnt(0)"),
      valu('v_or_b32', tA, Y8[0], Y8[1]), valu('v_or3_b32', tA, tA, Y8[2], Y8[3]),
      Inst(f"v_readfirstlane_b32 {sFLAGS}, {tA}", 'valu', regs_of(tA), regs_of(sFLAGS)),
      ] + stamp() + stamp_dump() + [salu('s_cmp_eq_u32', None, sFLAGS, 0), branch('s_cbranch_scc1', 'L_exit')]
blk['end'] = F
M = [raw('  s_waitcnt vmcnt(0)'), barrier()]
M += [salu('s_and_b32', sT0, sFLAGS, 1), salu('s_add_u32', sT1, sWG, NWG), salu('s_cmp_lg_u32', None, sT0, 0),
      salu('s_cselect_b32', sHEAD, sWG, sT1, scc_w=False, scc_r=True),
      salu('s_cselect_b32', sT0, 1, 2, scc_w=False, scc_r=True), salu('s_andn2_b32', sFLAGS, sFLAGS, sT0),
      smov(sMODE, 1), smov(sBIT, 0), smov(sNEXT, '0xffff')]
M += [salu('s_mul_i32', sQO, sHEAD, QH, scc_w=False)]
for q in range(6):
    M += [buf_load('buffer_load_dwordx4', Qf[q][j], vQo, srdQ, sQO, j * 64, tag=('mq',)) for j in range(4)]
    M += [salu('s_add_u32', sQO, sQO, 4096)]
M += [waitv(('mq',))]
for q in range(6): M += q_scale_q(q)
M += minit_reset()
M += [valu('v_mbcnt_lo_u32_b32', tC, -1, 0), valu('v_mbcnt_hi_u32_b32', tC, -1, tC),
      valu('v_and_b32', tA, 15, tC), valu('v_lshrrev_b32', tB, 4, tC), valu('v_lshlrev_b32', tA, 8, tA),
      valu('v_lshl_add_u32', vX, tB, 4, tA)]
M += [salu('s_mul_i32', sT1, sHEAD, KH, scc_w=False), smov(sIT, 0)]
blk['max_pre'] = M
ML = [label('L_maxloop')]
ML += [buf_load('buffer_load_dwordx4', KF[0][j], vX, srdK, sT1, j * 64, tag=('mk',)) for j in range(4)]
ML += [waitv(('mk',))]
MS = [Sb[0][0:4], Sb[0][4:8], Sb[1][0:4], Sb[1][4:8], X8[0:4], X8[4:8]]
for q in range(6):
    for j in range(4): ML.append(mfma16(MS[q], KF[0][j], Qf[q][j], 0 if j == 0 else MS[q]))
for q in range(6):
    m = NEGM[q][3]
    ML += [valu('v_max3_f32', m, MS[q][0], MS[q][1], m), valu('v_max3_f32', m, MS[q][2], MS[q][3], m)]
ML += [salu('s_add_u32', sT1, sT1, 4096), salu('s_add_u32', sIT, sIT, 1), salu('s_cmp_lt_u32', None, sIT, 64),
       branch('s_cbranch_scc1', 'L_maxloop')]
blk['max_loop'] = ML
blk['max_post'] = stream_head() + [branch('s_branch', 'L_stream')]
blk['exit'] = [label('L_exit'), raw("  s_endpgm")]

def head_trace(first, has_next):
    t = flat_dyn(blk['fuse'], first)
    for p in range(NIT):
        qf = (p - 12 // BT) if (has_next and p >= 12 // BT) else None
        b = flat_dyn((blk['body_a'] if p else []) + blk['body_b'], qf)
        sh = (p * BT) % 4
        t += [Remap(i, sh) for i in b] if sh else b
    t += blk['bnd_chk'] + (blk['bnd_next'] if has_next else blk['drain'] + [i for e in EPIS for i in e.fin()] + blk['end'])
    return t
trace = blk['entry0'] + blk['entry1'] + blk['entry'] + blk['stream'] + head_trace(True, True) + head_trace(False, False)
for _ in range(2):
    trace += blk['max_pre'] + blk['max_loop'] * 3 + blk['max_post'] + blk['stream'] + head_trace(True, False)
trace += blk['exit']
for b in blk: blk[b] = flat_static(blk[b])

resolve_waits(trace)
for it in range(10):
    n = check_trace(trace, fix=True, verbose=False)
    if n == 0: break
    if n >= 1000: sys.exit("pending-load errors")
assert check_trace(trace, fix=False) == 0
assert check_lds_protocol(trace)

order = ['entry0', 'entry1', 'entry', 'stream', 'fuse', 'body_a', 'body_b', 'bnd_chk', 'bnd_next', 'drain', 'end',
         'max_pre', 'max_loop', 'max_post', 'exit']
NAME = "standalone__mha_softmax__near_ridge_kernel"
out = f"""; MHA forward (B16 H32 Sq384 Sk1024 D128, bf16) - generated by gen/gen.py (hand-written generator)
; @launch grid=({NWG},1,1) block=(256,1,1) lds={LDS_TOTAL}
.amdgcn_target "amdgcn-amd-amdhsa--gfx950"
.text
.globl {NAME}
.p2align 8
.type {NAME},@function
{NAME}:
"""
for b in order:
    out += f"; ---- {b}\n"
    for i in blk[b]: out += i.render()
out += f""".section .rodata,"a"
.p2align 6
.amdhsa_kernel {NAME}
  .amdhsa_next_free_vgpr 512
  .amdhsa_next_free_sgpr 80
  .amdhsa_accum_offset 256
  .amdhsa_group_segment_fixed_size 0
  .amdhsa_kernarg_size 48
  .amdhsa_user_sgpr_count 2
  .amdhsa_user_sgpr_kernarg_segment_ptr 1
  .amdhsa_system_sgpr_workgroup_id_x 1
.end_amdhsa_kernel
"""
open(sys.argv[1], 'w').write(out)
nn = sum(i.pre_nop for b in ('body_a', 'body_b') for i in blk[b])
print("emitted", sys.argv[1], "insts:", {b: len(blk[b]) for b in order}, "body nops:", nn)
```

```python
import sys, math, struct
from asmlib import *

def f2u(f): return struct.unpack('<I', struct.pack('<f', f))[0]

class Cfg:
    dma_flags = " nt"
    q_flags = " nt"
    st_flags = " nt"
    dma_cost = 8
    thr = 2.0 ** 32
    stamps = 0
    otouch = 0
    nostore = 0
    rowsum = 'mfma'
    bt = 4
    stampdbg = -1
    q45late = 0
cfg = Cfg()
for a in sys.argv[2:]:
    k, v = a.split('=', 1)
    cur = getattr(cfg, k)
    setattr(cfg, k, type(cur)(v) if not isinstance(cur, str) else v.replace('_', ' '))

NWG = 256
QH = 98304
KH = 262144
Q_BYTES = 512 * QH
K_BYTES = 512 * KH
OOB = 0x10000000
LDS_RING = 131072
LDS_TOTAL = LDS_RING + 32768
SCALE = (128 ** -0.5) * math.log2(math.e)

vTID = V(0)
aK = [V(1 + j) for j in range(4)]
aV = [V(5 + d) for d in range(8)]
dK = [V(13 + i) for i in range(4)]
dV = [V(17 + i) for i in range(2)]
vQo, vOo = V(19), V(20)
vX = V(21)
RL = V(22, 2)
T4 = [V(24, 4), V(28, 4)]
Sb = [V(32, 8), V(40, 8)]
Pb = [V(48, 4), V(52, 4)]
NEGM = [V(56 + 4 * q, 4) for q in range(6)]
Qf = [[V(80 + (q * 4 + j) * 4, 4) for j in range(4)] for q in range(6)]
def Oblk(q, db):
    if q < 4: return A((q * 8 + db) * 4, 4)
    return V(176 + ((q - 4) * 8 + db) * 4, 4)
X8 = V(240, 8)
Y8 = V(248, 8)
KF = [[A(128 + (kb * 4 + j) * 4, 4) for j in range(4)] for kb in range(2)]
VF = [A(160 + db * 4, 4) for db in range(8)]
Lb = [A(192 + 4 * q, 4) for q in range(6)]
ONES = A(216, 4)
S0 = [Sb[0], Y8, Sb[1], Sb[0], Y8, Sb[1]]
QST = [[A(220 + (q * 4 + j) * 4, 4) for j in range(4)] for q in range(2)]
vQs = V(0)

srdQ, srdK, srdV, srdO = S(8, 4), S(12, 4), S(16, 4), S(20, 4)
sWG = S(2)
sW, sM0B, sHEAD, sNEXT, sDOFF, sNB, sPASS, sMODE, sFLAGS, sQO, sBIT, sTHR = [S(24 + i) for i in range(12)]
sARG = S(36, 8)
sC = S(44, 2)
sMASK, sFIRST, sT0, sT1, sIT, sOH, sQH, sQP = S(46), S(47), S(48), S(49), S(50), S(51), S(62), S(63)
M0 = 'm0'
sQO2, sM0Q, sBITN, M0S, sFIN, sMa, sMb, sQP1 = [S(64 + i) for i in range(8)]

def smov(d, x): return salu('s_mov_b32', d, x, scc_w=False)
srdW = S(56, 4); sST = S(52, 2); sSTO = S(54); sST2 = S(60, 2)
sSTI = S(55)
def stamp():
    if not cfg.stamps: return []
    t0, t1 = T4[0][0], T4[0][1]
    def acc_r(d, a): return Inst(f"v_accvgpr_read_b32 {d}, {a}", 'valu', regs_of(a), regs_of(d))
    def acc_w(a, d): return Inst(f"v_accvgpr_write_b32 {a}, {d}", 'valu', regs_of(d), regs_of(a))
    def wl(d, s): return Inst(f"v_writelane_b32 {d}, {s}, {sSTI}", 'valu', regs_of(d) + regs_of(s) + regs_of(sSTI), regs_of(d))
    return [raw(f"  s_memtime {sST}", wr=[sST]), raw(f"  s_memrealtime {sST2}", wr=[sST2]), acc_r(t0, A(252)), acc_r(t1, A(253)),
            raw("  s_waitcnt lgkmcnt(0)"), smov(M0S, M0), smov(M0, sSTI), nop(1),
            Inst(f"v_writelane_b32 {t0}, {sST[0]}, m0", 'valu', regs_of(t0), regs_of(t0)),
            Inst(f"v_writelane_b32 {t1}, {sST2[0]}, m0", 'valu', regs_of(t1), regs_of(t1)),
            smov(M0, M0S), acc_w(A(252), t0), acc_w(A(253), t1), salu('s_add_u32', sSTI, sSTI, 1)]
def stamp_dump():
    if not cfg.stamps: return []
    t = T4[0]
    st = Inst(f"buffer_store_dwordx2 {t[0:2]}, {t[2]}, {srdW}, {sSTO} offen", 'vmem_store', regs_of(t[0:3]) + regs_of(srdW) + regs_of(sSTO), [])
    st.sdata = regs_of(t[0:2])
    if cfg.stampdbg >= 0:
        st = Inst(f"buffer_store_dword {t[1]}, {t[2]}, {srdW}, {sSTO} offen", 'vmem_store', regs_of(t[0:3]) + regs_of(srdW) + regs_of(sSTO), [])
        st.sdata = regs_of(t[1])
        return [Inst(f"v_accvgpr_read_b32 {t[1]}, a253", 'valu', regs_of(A(253)), regs_of(t[1])),
                valu('v_mbcnt_lo_u32_b32', t[2], -1, 0), valu('v_mbcnt_hi_u32_b32', t[2], -1, t[2]), valu('v_lshlrev_b32', t[2], 2, t[2]), st]
    return [Inst(f"v_accvgpr_read_b32 {t[0]}, a252", 'valu', regs_of(A(252)), regs_of(t[0])),
            Inst(f"v_accvgpr_read_b32 {t[1]}, a253", 'valu', regs_of(A(253)), regs_of(t[1])),
            valu('v_mbcnt_lo_u32_b32', t[2], -1, 0), valu('v_mbcnt_hi_u32_b32', t[2], -1, t[2]), valu('v_lshlrev_b32', t[2], 3, t[2]), st]

def phase(pre, mf, fa, fb=(), fa_start=0):
    out = list(pre)
    fb = sorted(fb, key=lambda x: x[0])
    total = sum(i.cost for i in fa) + sum(i.cost for _, l in fb for i in l)
    ng = len(mf)
    budget = max(8, int(math.ceil(total / max(ng - fa_start, 1) / 4.0)) * 4)
    ia = 0
    fb = list(fb)
    for g, m in enumerate(mf):
        out.append(m)
        rem = budget
        while fb and fb[0][0] <= g:
            c = sum(i.cost for i in fb[0][1])
            if c <= rem or rem == budget:
                out += fb[0][1]; rem -= c; fb.pop(0)
            else: break
        while g >= fa_start and ia < len(fa) and fa[ia].cost <= rem:
            out.append(fa[ia]); rem -= fa[ia].cost; ia += 1
    for _, l in fb: out += l
    out += fa[ia:]
    return out

def qk_mfmas(q, Sdst, cinit):
    L = []
    for kb in range(2):
        d = Sdst[4 * kb:4 * kb + 4]
        for j in range(4):
            L.append(mfma16(d, KF[kb][j], Qf[q][j], (cinit if j == 0 else d)))
    return L
def pv_mfmas(q, P, first=False):
    L = [mfma16(Oblk(q, db), VF[db], P, 0 if first else Oblk(q, db)) for db in range(8)]
    if cfg.rowsum == 'mf4':
        L.insert(4, mfma4(Lb[q], ONES[0:2], P[0:2], 0 if first else Lb[q]))
        L.append(mfma4(Lb[q], ONES[0:2], P[2:4], Lb[q]))
    elif cfg.rowsum == 'mfma' or first: L.append(mfma16(Lb[q], ONES, P, 0 if first else Lb[q]))
    return L
def sm_valu(Ssrc, P, lacc=None):
    e = [valu('v_exp_f32', Ssrc[i], Ssrc[i], trans=True) for i in range(8)]
    c = [valu('v_cvt_pk_bf16_f32', P[i], Ssrc[2 * i], Ssrc[2 * i + 1]) for i in range(4)]
    if lacc is not None:
        a = [valu('v_add_f32', lacc, lacc, Ssrc[i]) for i in range(8)]
        return [e[0], e[1], a[0], c[0], e[2], a[1], a[2], e[3], e[4], a[3], c[1], e[5], a[4], a[5], e[6], e[7], c[2], a[6], a[7], c[3]]
    return [e[0], e[1], e[2], c[0], e[3], e[4], c[1], e[5], e[6], c[2], e[7], c[3]]
def k_read(kb, j, slot, sub):
    return ds_read('ds_read_b128', KF[kb][j], aK[j], slot * 16384 + sub * 8192 + kb * 4096, tag=('t', slot, 'K'))
def v_reads(db, slot, sub):
    return [ds_read('ds_read_b64_tr_b16', VF[db][2 * h:2 * h + 2], aV[db], slot * 16384 + sub * 8192 + h * 4096, tag=('t', slot, 'V'))
            for h in range(2)]
def dma_piece(part, slot, idx):
    if part == 'K': d = dma(dK[idx], srdK, sDOFF, idx * 1024, ('t', slot, 'K'), cfg.dma_flags, cfg.dma_cost)
    else: d = dma(dV[idx & 1], srdV, sDOFF, idx * 1024, ('t', slot, 'V'), cfg.dma_flags, cfg.dma_cost)
    d.piece = idx
    return d
def set_m0(part, slot):
    return salu('s_add_u32', M0, sM0B, (65536 if part == 'V' else 0) + slot * 16384)
ALLK = [KF[kb][j] for kb in range(2) for j in range(4)]

def q_loads():
    L = [salu('s_mul_i32', sQO, sHEADQ, QH, scc_w=False)]
    for q in range(6):
        for j in range(4):
            L.append(buf_load('buffer_load_dwordx4', Qf[q][j], vQo, srdQ, sQO, j * 64, tag=('q', q), flags=cfg.q_flags))
        if q < 5: L.append(salu('s_add_u32', sQO, sQO, 4096))
    return L
def q_scale():
    L = []
    for q in range(6):
        L.append(waitv(('q', q)))
        for j in range(4):
            x = Qf[q][j]; t = X8 if (j & 1) == 0 else Y8
            for i in range(4):
                L.append(valu('v_lshlrev_b32', t[2 * i], 16, x[i]))
                L.append(valu('v_and_b32', t[2 * i + 1], sMASK, x[i]))
            for i in range(4):
                L.append(valu('v_pk_mul_f32', t[2 * i:2 * i + 2], t[2 * i:2 * i + 2], sC))
            for i in range(4):
                L.append(valu('v_cvt_pk_bf16_f32', x[i], t[2 * i], t[2 * i + 1]))
    return L
def minit_reset():
    return [valu('v_mov_b32', NEGM[q][3], '0xff800000') for q in range(6)]

def max_valu(q):
    s = S0[q]; m = NEGM[q][3]; t = RL[q & 1]
    L = [valu('v_max3_f32', m, s[0], s[1], m), valu('v_max3_f32', m, s[2], s[3], m),
         valu('v_max3_f32', m, s[4], s[5], m), valu('v_max3_f32', m, s[6], s[7], m),
         valu('v_mov_b32', t, m), permswap('v_permlane32_swap_b32', t, m), valu('v_max_f32', m, t, m),
         valu('v_mov_b32', t, m), permswap('v_permlane16_swap_b32', t, m), valu('v_max_f32', t, t, m)]
    L += [valu('v_sub_f32', s[i], s[i], t) for i in range(8)]
    L += [valu('v_sub_f32', NEGM[q][i], 0, t) for i in range(4)]
    return L

blk = {}
E = []
E += [salu('s_cmp_ge_u32', None, sWG, NWG), branch('s_cbranch_scc1', 'L_exit')]
E += [raw(f"  s_load_dwordx8 {sARG}, s[0:1], 0", wr=[sARG])]
E += [valu('v_lshrrev_b32', vX, 6, vTID), valu('v_and_b32', vTID, 63, vTID)]
E += [Inst(f"v_readfirstlane_b32 {sW}, {vX}", 'valu', regs_of(vX), regs_of(sW))]
tA, tB, tC, tD = X8[0], X8[1], X8[2], X8[3]
tQ, tG = X8[4], X8[5]
E += [valu('v_and_b32', tQ, 15, vTID), valu('v_lshrrev_b32', tG, 4, vTID)]
E += [smov(sHEAD, sWG), valu('v_lshlrev_b32', tA, 8, tQ), valu('v_xor_b32', tD, tG, tQ)]
E += [salu('s_mul_i32', sT0, sW, 96 * 256, scc_w=False), salu('s_lshl_b32', sM0B, sW, 12)]
E += [valu('v_add_u32', tA, sT0, tA), valu('v_lshl_add_u32', vQo, tG, 4, tA)]
E += [valu('v_lshlrev_b32', tB, 8, tG), valu('v_add_u32', tB, sM0B, tB)]
for i in range(4):
    E += [valu('v_xor_b32', tC, 4 * i, tD), valu('v_lshl_add_u32', dK[i], tC, 4, tB)]
def mk_srd(srd, k, nb): return [smov(srd[0], sARG[k]), salu('s_and_b32', srd[1], sARG[k + 1], '0xffff'), smov(srd[2], nb), smov(srd[3], '0x20000')]
E += [smov(srdQ[2], Q_BYTES), smov(srdQ[3], '0x20000'), smov(srdK[2], K_BYTES), smov(srdK[3], '0x20000')]
E += [raw("  s_waitcnt lgkmcnt(0)")]
E += [smov(srdQ[0], sARG[0]), salu('s_and_b32', srdQ[1], sARG[1], '0xffff'), smov(srdK[0], sARG[2]), salu('s_and_b32', srdK[1], sARG[3], '0xffff')]
blk['entry0'] = E
E = []
E += mk_srd(srdV, 4, K_BYTES) + mk_srd(srdO, 6, Q_BYTES)
E += [valu('v_lshlrev_b32', tA, 1, tG), valu('v_xor_b32', tA, tA, tQ)]
for i in range(2):
    E += [valu('v_xor_b32', tC, 8 * i, tA), valu('v_lshl_add_u32', dV[i], tC, 4, tB)]
E += [valu('v_lshlrev_b32', tB, 8, tQ)]
for j in range(4):
    E += [valu('v_xor_b32', tC, 4 * j, tD), valu('v_lshl_add_u32', aK[j], tC, 4, tB)]
E += [valu('v_lshrrev_b32', tA, 2, vTID), valu('v_and_b32', tC, 7, tA), valu('v_lshlrev_b32', tA, 8, tA),
      valu('v_and_b32', tB, 3, vTID), valu('v_lshl_add_u32', tA, tB, 3, tA), valu('v_add_u32', tA, 65536, tA)]
for db in range(8):
    E += [valu('v_xor_b32', tB, db, tC), valu('v_lshl_add_u32', aV[db], tB, 5, tA)]
E += [valu('v_lshlrev_b32', vOo, 4, vTID), valu('v_add_u32', vOo, sT0, vOo)]
E += [smov(sMa, sM0B), salu('s_add_u32', sMb, sM0B, 32768)]
E += [salu('s_lshl_b32', sM0Q, sW, 13), salu('s_add_u32', sM0Q, sM0Q, LDS_RING),
      valu('v_lshlrev_b32', vQs, 4, vTID), valu('v_add_u32', vQs, sM0Q, vQs)]
E += [valu('v_lshrrev_b32', tA, 1, tG), valu('v_xor_b32', tA, tA, tQ), valu('v_lshlrev_b32', tA, 4, tA), valu('v_lshl_add_u32', tA, tQ, 8, tA),
      valu('v_and_b32', tB, 1, tG), valu('v_lshl_add_u32', tA, tB, 3, tA), valu('v_add_u32', tA, sM0Q, tA),
      Inst("v_accvgpr_write_b32 a254, " + str(tA), 'valu', regs_of(tA), regs_of(A(254))),
      valu('v_lshlrev_b32', tA, 4, tD), valu('v_lshl_add_u32', tA, tG, 8, tA), valu('v_add_u32', tA, sM0Q, tA),
      Inst("v_accvgpr_write_b32 a255, " + str(tA), 'valu', regs_of(tA), regs_of(A(255)))]
E += [valu('v_mov_b32', tA, '0x3f803f80')]
E += [Inst(f"v_accvgpr_write_b32 {ONES[i]}, {tA}", 'valu', regs_of(tA), regs_of(ONES[i])) for i in range(4)]
E += [smov(sC[0], hex(f2u(SCALE))), smov(sC[1], hex(f2u(SCALE))), smov(sMASK, '0xffff0000'), smov(sTHR, hex(f2u(cfg.thr)))]
E += [salu('s_add_u32', sNEXT, sWG, NWG), smov(sMODE, 0), smov(sFLAGS, 0), smov(sBIT, 1), smov(sFIN, 0)]
E += minit_reset()
if cfg.stamps:
    E += [raw(f"  s_load_dwordx2 {srdW[0:2]}, s[0:1], {32 if cfg.stampdbg >= 0 else 40}", wr=[srdW[0:2]]), raw("  s_waitcnt lgkmcnt(0)"),
          salu('s_and_b32', srdW[1], srdW[1], '0xffff'), smov(srdW[2], 1 << 20), smov(srdW[3], '0x20000'),
          salu('s_lshl_b32', sSTO, sWG, 2), salu('s_add_u32', sSTO, sSTO, sW)]
    if cfg.stampdbg >= 0:
        E += [salu('s_cmp_eq_u32', None, sSTO, cfg.stampdbg), salu('s_cselect_b32', srdW[2], 64, 0, scc_w=False, scc_r=True), smov(sSTO, 0)]
    else: E += [salu('s_lshl_b32', sSTO, sSTO, 9)]
    E += [smov(sSTI, 0), smov(M0, 0), Inst('v_accvgpr_write_b32 a252, 0', 'valu', [], regs_of(A(252))), Inst('v_accvgpr_write_b32 a253, 0', 'valu', [], regs_of(A(253)))]
    E += stamp()
blk['entry'] = E

def q_place(q, early=False):
    if q < 2: return (sM0Q, q * 4096) if early else (sM0B, 16384 * (q + 1))
    if q < 4: return (sM0Q, (q - 2) * 4096)
    return (sM0B, 65536 + 49152) if q == 4 else (sM0B, 49152)
def q_load_q(q, restore_m0=None, early=False):
    b, c = q_place(q, early)
    L = [salu('s_add_u32', sQO, sQH, q * 4096), salu('s_add_u32', M0, b, c)]
    for i in range(4):
        d = dma(dK[i], srdQ, sQO, i * 1024, ('q', q), cfg.q_flags, cfg.dma_cost); d.piece = i; L.append(d)
    if restore_m0: L.append(restore_m0)
    return L
def q_lds_read(dsts, q, early=False):
    b, c = q_place(q, early)
    L = [salu('s_add_u32', sT0, b, c)] + [valu('v_add_u32', X8[j], sT0, aK[j]) for j in range(4)]
    for n, d in enumerate(dsts):
        L += [ds_read('ds_read_b128', d[j], X8[j], n * 4096) for j in range(4)]
    return L
def q_unstage_acc(q):
    return [Inst(f"v_accvgpr_read_b32 {Qf[q][j][i]}, {QST[q][j][i]}", 'valu', regs_of(QST[q][j][i]), regs_of(Qf[q][j][i]))
            for j in range(4) for i in range(4)]
def q_scale_q(q):
    L = []
    for j in range(4):
        x = Qf[q][j]; t = X8
        for i in range(4):
            L.append(valu('v_lshlrev_b32', t[2 * i], 16, x[i]))
            L.append(valu('v_and_b32', t[2 * i + 1], sMASK, x[i]))
        for i in range(4):
            L.append(valu('v_pk_mul_f32', t[2 * i:2 * i + 2], t[2 * i:2 * i + 2], sC))
        for i in range(4):
            L.append(valu('v_cvt_pk_bf16_f32', x[i], t[2 * i], t[2 * i + 1]))
    return L
_ti = [0]
def epi_q(q, tsets):
    D = [salu('s_add_u32', sQO2, sOH, q * 4096)]
    D += [Inst(f"v_accvgpr_read_b32 {RL[1]}, {Lb[q][0]}", 'valu', regs_of(Lb[q][0]), regs_of(RL[1]))]
    if cfg.rowsum == 'mf4':
        D += [valu('v_mov_b32', RL[0], RL[1]), permswap('v_permlane32_swap_b32', RL[0], RL[1]), valu('v_add_f32', RL[1], RL[0], RL[1]),
              valu('v_mov_b32', RL[0], RL[1]), permswap('v_permlane16_swap_b32', RL[0], RL[1]), valu('v_add_f32', RL[1], RL[0], RL[1])]
    D += [valu('v_rcp_f32', RL[0], RL[1], trans=True)]
    if q == 0: D += [valu('v_mov_b32', vX, RL[1])]
    else: D += [valu('v_add_f32', vX, vX, RL[1])]
    for dp in range(4):
        if q < 4:
            t = tsets[dp % len(tsets)]
            for bi in range(2):
                o = Oblk(q, 2 * dp + bi)
                D += [Inst(f"v_accvgpr_read_b32 {t[4*bi+i]}, {o[i]}", 'valu', regs_of(o[i]), regs_of(t[4 * bi + i])) for i in range(4)]
        else:
            o = Oblk(q, 2 * dp); t = V(o.n, 8)
        for i in range(4):
            D += [valu('v_pk_mul_f32', t[2 * i:2 * i + 2], t[2 * i:2 * i + 2], RL, extra="op_sel_hi:[1,0]")]
        T = T4[_ti[0] % 2]; _ti[0] += 1
        for i in range(4): D += [valu('v_cvt_pk_bf16_f32', T[i], t[2 * i], t[2 * i + 1])]
        D += [permswap('v_permlane16_swap_b32', T[0], T[2]), permswap('v_permlane16_swap_b32', T[1], T[3])]
        D += [buf_store('buffer_store_dwordx4', T, vOo, srdO, sQO2, dp * 64, flags=cfg.st_flags)]
    return D
aWA, aRA = A(254), A(255)
def acc_read(d, a): return Inst(f"v_accvgpr_read_b32 {d}, {a}", 'valu', regs_of(a), regs_of(d))
def oreg(q, t):
    return Oblk(q, t)
def epi_a(q):
    half = (q & 1) * 4096
    D = [acc_read(RL[1], Lb[q][0]), valu('v_rcp_f32', RL[0], RL[1], trans=True)]
    D += [valu('v_mov_b32', vX, RL[1]) if q == 0 else valu('v_add_f32', vX, vX, RL[1])]
    D += [acc_read(RL[1], aWA)]
    for dp in range(4):
        if q < 4:
            t = X8
            for bi in range(2):
                o = Oblk(q, 2 * dp + bi)
                D += [acc_read(t[4 * bi + i], o[i]) for i in range(4)]
        else:
            o = Oblk(q, 2 * dp); t = V(o.n, 8)
        mul = [Inst(f"v_pk_mul_f32 {t[2*i:2*i+2]}, {t[2*i:2*i+2]}, {RL} op_sel_hi:[1,0]", 'valu',
                    regs_of(t[2 * i:2 * i + 2]) + regs_of(RL[0]), regs_of(t[2 * i:2 * i + 2])) for i in range(4)]
        D += mul
        T = T4[dp % 2]
        D += [valu('v_cvt_pk_bf16_f32', T[i], t[2 * i], t[2 * i + 1]) for i in range(4)]
        for bi in range(2):
            db = 2 * dp + bi
            D += [ds_write('ds_write_b64', RL[1], T[2 * bi:2 * bi + 2], half)]
            if db < 7: D += [valu('v_xor_b32', RL[1], (db ^ (db + 1)) << 5, RL[1])]
    D += [acc_read(RL[1], aRA)]
    for t in range(4):
        D += [ds_read('ds_read_b128', oreg(q, t), RL[1], half + t * 1024)]
        if t < 3: D += [valu('v_xor_b32', RL[1], (t ^ (t + 1)) << 6, RL[1])]
    return D
def epi_b(q):
    D = [salu('s_add_u32', sQO2, sOH, q * 4096), waitl(*[oreg(q, t) for t in range(4)])]
    D += [buf_store('buffer_store_dwordx4', oreg(q, t), vOo, srdO, sQO2, t * 1024, flags=cfg.st_flags) for t in range(4)]
    return D
def fail_check():
    return [Inst(f"v_cmp_nge_f32 vcc, {sTHR}, {vX}", 'valu', regs_of(sTHR) + regs_of(vX), [('x', 'vcc')]),
            salu('s_cmp_lg_u64', None, 'vcc', 0), salu('s_cselect_b32', sT0, sBIT, 0, scc_w=False, scc_r=True),
            salu('s_or_b32', sFLAGS, sFLAGS, sT0)]

def is_pk(i): return 'v_pk_' in i.text
def vphase(mf, seq, start=0):
    n = len(seq); out = []
    if not mf: return list(seq)
    tot = sum(i.cost for i in seq if isinstance(i, Inst))
    step = (tot * (1.0 - start)) / len(mf)
    acc = 0.0; nxt = tot * start; k = 0
    for idx, i in enumerate(seq):
        if k < len(mf) and acc >= nxt:
            look = [x for x in seq[idx:idx + 3] if isinstance(x, Inst)]
            if not any(is_pk(x) for x in look):
                m = mf[k]; out += (m if isinstance(m, list) else [m]); k += 1; nxt += step
        out.append(i)
        if isinstance(i, Inst): acc += i.cost
    for m in mf[k:]: out += (m if isinstance(m, list) else [m])
    return out

class Cond:
    n = 0
    def __init__(self, first, body):
        self.first, self.body = first, body
        self.lab = f"L_c{Cond.n}"; Cond.n += 1
        self.head = [salu('s_cmp_eq_u32', None, sFIRST, 0), branch('s_cbranch_scc1' if first else 's_cbranch_scc0', self.lab)]
        self.tail = [label(self.lab)]
    def static(self): return self.head + self.body + self.tail
    def dyn(self, first): return self.head + (self.body if first == self.first else []) + self.tail
def flat_static(seq): return [y for x in seq for y in (x.static() if hasattr(x, 'static') else [x])]
def flat_dyn(seq, flag):
    out = []
    for x in seq:
        if hasattr(x, 'dyn'): out += x.dyn(flag)
        elif flag is True and getattr(x, 'nf_only', False): out.append(Ghost(x))
        else: out.append(x)
    return out
def waitv_nf(*tags):
    w = waitv(*tags); w.nf_only = True; return w

def tile_dma(part, t): return [set_m0(part, t)] + [dma_piece(part, t, i) for i in range(4)]
nxt_tile = lambda: [salu('s_add_u32', sDOFF, sDOFF, 16384)]

def stream_head():
    return [salu('s_mul_i32', sQH, sHEAD, QH, scc_w=False), salu('s_mul_i32', sT1, sW, 20480, scc_w=False), salu('s_add_u32', sQH, sQH, sT1),
            salu('s_mul_i32', sDOFF, sHEAD, KH, scc_w=False)] + q_load_q(0) + tile_dma('K', 0) + q_load_q(1)
blk['entry1'] = stream_head()
B = [label('L_stream')]
B += [salu('s_mul_i32', sNB, sNEXT, KH, scc_w=False), salu('s_cmp_lt_u32', None, sNEXT, 512),
      salu('s_cselect_b32', sNB, sNB, OOB, scc_w=False, scc_r=True),
      salu('s_cselect_b32', sQP, 12 // cfg.bt, 99, scc_w=False, scc_r=True), salu('s_add_u32', sQP1, sQP, 1),
      smov(sFIRST, 1), smov(sOH, OOB), smov(sBITN, sBIT), smov(sBIT, 0)]
blk['stream'] = B

zero_init = [valu('v_mov_b32', Oblk(5, db)[i], 0) for db in range(8) for i in range(4)]
zero_init += [Inst(f"v_accvgpr_write_b32 {Lb[5][i]}, 0", 'valu', [], regs_of(Lb[5][i])) for i in range(4)]
FU = [label('L_fuse'), smov(sPASS, 0)] + stamp()
def st2(): return stamp() if cfg.stamps >= 2 else []
GR = [('q', 0), ('t', 0, 'K'), ('q', 1), ('q', 2), ('q', 3), ('t', 0, 'V'), ('q', 4), ('q', 5),
      ('t', 1, 'K'), ('t', 1, 'V'), ('t', 2, 'K'), ('t', 2, 'V')]
def issue(k):
    t = GR[k]
    if t[0] == 'q': return q_load_q(t[1])
    return tile_dma(t[2], t[1]) + (nxt_tile() if t[2] == 'V' else [])
def top(k, extra=()): return [Cond(True, ([waitv(GR[k - 3])] if k <= 10 else []) + issue(k) + list(extra))]
def qscale(q): return [waitl(*Qf[q])] + q_scale_q(q)
class EpiBlk:
    def __init__(self, n, body, last=False):
        self.head = [salu('s_cmp_eq_u32', None, sFIRST, 0), branch('s_cbranch_scc0', f'L_epx{n}')]
        self.body = [label(f'L_epi{n}')] + body
        self.chain = [salu('s_cmp_lg_u32', None, sFIN, 0), branch('s_cbranch_scc1', 'L_end' if last else f'L_epi{n+1}')]
        self.tail = [label(f'L_epx{n}')]
    def static(self): return self.head + self.body + self.chain + self.tail
    def dyn(self, first): return self.head + ([] if first else self.body + self.chain) + self.tail
    def fin(self): return self.body + self.chain
EPIS = [EpiBlk(0, epi_a(0) + epi_a(1) + epi_b(0)), EpiBlk(1, epi_a(2) + epi_b(1)), EpiBlk(2, epi_a(3) + epi_b(2)),
        EpiBlk(3, epi_a(4) + epi_b(3) + epi_a(5) + fail_check() + epi_b(4)), EpiBlk(4, epi_b(5), last=True)]
QK0 = lambda q: qk_mfmas(q, S0[q], 0)
PV0 = lambda q: pv_mfmas(q, Pb[q % 2], first=True)
SM0 = lambda q: sm_valu(S0[q], Pb[q % 2])
pv = pv_mfmas(5, Pb[1])
def pv_db(m):
    for db in range(8):
        if VF[db].regs()[0] in m.ab: return db
    return None
mf0 = [([m] + v_reads(pv_db(m), 0, 0)) if pv_db(m) is not None else [m] for m in pv]
for m in mf0:
    for r in m[1:]: r.tag = ('tx', 0, 'V')
def qs01(q): return [Cond(False, q_unstage_acc(q)), Cond(True, [waitl(*Qf[q])])] + q_scale_q(q)
FU += vphase(mf0, top(3, q_lds_read([Qf[0]], 0)) + qs01(0)
             + top(4, [barrier()] + [k_read(kb, j, 0, 0) for kb in range(2) for j in range(4)])
             + top(5, q_lds_read([Qf[1]], 1)) + qs01(1)) + st2()
FU += [waitl(*ALLK)]
FU += vphase(QK0(0) + QK0(1), top(6) + top(7) + [waitv_nf(('q', 3))] + q_lds_read([Qf[2], Qf[3]], 2) + qscale(2)
             + top(8, [barrier()] + [r for db in range(8) for r in v_reads(db, 0, 0)]) + qscale(3)) + st2()
FU += vphase(QK0(2), max_valu(0) + SM0(0) + max_valu(1) + SM0(1)) + st2()
FU += [EPIS[0]] + st2()
FU += [waitl(*VF)]
FU += vphase(QK0(3) + PV0(0), top(9) + [waitv_nf(('q', 4))] + q_lds_read([Qf[4]], 4) + max_valu(2) + qscale(4)) + [EPIS[1]] + st2()
FU += vphase(QK0(4) + PV0(1), top(10) + [waitv_nf(('q', 5))] + q_lds_read([Qf[5]], 5) + SM0(2) + qscale(5) + max_valu(3)) + [EPIS[2]] + st2()
qk5 = QK0(5); qk5 = [[qk5[kb * 4 + j], k_read(kb, j, 0, 1)] for kb in range(2) for j in range(4)]
FU += vphase(qk5 + PV0(2), SM0(3) + max_valu(4) + top(11)) + [EPIS[3]] + st2()
FU += vphase(PV0(3), SM0(4) + max_valu(5)) + [EPIS[4]] + st2()
FU += [waitl(*ALLK)]
FU += vphase(qk_mfmas(0, Sb[0], NEGM[0]) + PV0(4),
             [set_m0('K', 3), dma_piece('K', 3, 0)] + SM0(5) + [dma_piece('K', 3, 1)] + zero_init[:12] + [dma_piece('K', 3, 2)] + zero_init[12:24]
             + [dma_piece('K', 3, 3)] + zero_init[24:] + [set_m0('V', 3), dma_piece('V', 3, 0)])
FU += [smov(sFIRST, 0), smov(sBIT, sBITN), salu('s_mul_i32', sQH, sNEXT, QH, scc_w=False), salu('s_mul_i32', sT1, sW, 20480, scc_w=False), salu('s_add_u32', sQH, sQH, sT1)] + stamp() + [branch('s_branch', 'L_body1')]
blk['fuse'] = FU

class CondQ:
    n = 0
    def __init__(self, body, dp):
        self.body = body; self.lab = f"L_q{CondQ.n}"; CondQ.n += 1; self.dp = dp
        self.head = [salu('s_cmp_eq_u32', None, sPASS, sQP if dp == 0 else sQP1), branch('s_cbranch_scc0', self.lab)]
        self.tail = [label(self.lab)]
        self.cost = 8
    def static(self): return self.head + self.body + self.tail
    def dyn(self, flag): return self.head + (self.body if flag == self.dp else []) + self.tail

class CondL:
    def __init__(self, body):
        self.body = body; self.lab = "L_nl"
        self.head = [salu('s_cmp_eq_u32', None, sPASS, 3), branch('s_cbranch_scc1', self.lab)]
        self.tail = [label(self.lab)]
        self.cost = 16
    def static(self): return self.head + self.body + self.tail
    def dyn(self, flag): return self.head + ([] if LASTPASS[0] else self.body) + self.tail
LASTPASS = [False]
BT = cfg.bt
NIT = 16 // BT
def set_m0r(part, r):
    if BT == 4: return set_m0(part, r)
    return salu('s_add_u32', M0, sMa if r < 2 else sMb, (65536 if part == 'V' else 0) + (r & 1) * 16384)
def k_read_r(kb, j, r, sub):
    d = k_read(kb, j, r % BT if BT == 2 else r, sub); d.tag = ('t', r, 'K'); return d

def body_phase(k, lp):
    sub, q = divmod(lp, 6)
    qn = (q + 1) % 6; qp = (q - 1) % 6
    pre = []; fb = []
    mf = qk_mfmas(qn, Sb[(q + 1) % 2], NEGM[qn]) + pv_mfmas(qp, Pb[(q - 1) % 2])
    fa = sm_valu(Sb[q % 2], Pb[q % 2], X8[q] if cfg.rowsum == 'valu' else None)
    if q == 4:
        slot, s2 = (k, 1) if sub == 0 else ((k + 1) % 4, 0)
        if sub == 1: pre += [waitv(('t', slot, 'V')), barrier()]
        for kb in range(2):
            for j in range(4): fb.append((kb * 4 + j, [k_read_r(kb, j, slot, s2)]))
    if q == 5: pre += [waitl(*ALLK)]
    if q == 0:
        for gi, m in enumerate(mf):
            if gi >= 8 and pv_db(m) is not None: fb.append((gi, v_reads(pv_db(m), k, sub)))
    if q == 1: fb.append((7, [waitl(*VF)]))
    x3 = (k + 3) % 4
    if lp in (1, 2, 3): fb.append((2, [dma_piece('K', x3, lp)]))
    if lp == 5: fb.append((2, [set_m0r('V', x3), dma_piece('V', x3, 0)]))
    if lp in (7, 8, 9): fb.append((2, [dma_piece('V', x3, lp - 6)]))
    assert BT == 4
    cur_m0 = set_m0r('K', x3) if lp < 5 else set_m0r('V', x3)
    if (k, lp) == (0, 8): fb.append((12, [CondQ(q_load_q(0, cur_m0, early=True), 0)]))
    if (k, lp) == (1, 2): fb.append((12, [CondQ(q_load_q(1, cur_m0, early=True), 0)]))
    if (k, lp) == (1, 9): fb.append((12, [CondQ([waitv(('q', 1))] + q_lds_read([QST[0], QST[1]], 0, early=True), 0)]))
    if (k, lp) == (2, 2): fb.append((12, [CondQ([waitl(*QST[0], *QST[1])] + q_load_q(2, cur_m0), 0)]))
    if (k, lp) == (2, 8): fb.append((12, [CondQ(q_load_q(3, cur_m0), 0)]))
    if (k, lp) == (3, 10): fb.append((12, [CondQ(q_load_q(4), 0)]))
    if BT == 2 and k == 1:
        if lp == 7:
            for j in range(4): fb.append((11 + j, [valu('v_xor_b32', aK[j], 32768, aK[j])]))
        if lp in (8, 9):
            for d in range(4): fb.append((9 + 2 * d if lp == 9 else 9 + d // 2 + 6 * (d // 2), [valu('v_xor_b32', aV[4 * (lp - 8) + d], 32768, aV[4 * (lp - 8) + d])]))
    if lp == 11:
        upd = [salu('s_add_u32', sDOFF, sDOFF, 16384)]
        if k == 0:
            upd += [salu('s_cmp_eq_u32', None, sPASS, 12 // BT), salu('s_cselect_b32', sDOFF, sNB, sDOFF, scc_w=False, scc_r=True)]
        fb.append((0, upd[:2]))
        if len(upd) > 2: fb.append((1, upd[2:]))
        if k == 3:
            fb.append((2, [CondL([set_m0r('K', k), dma_piece('K', k, 0)])]))
            fb.append((12, [CondQ(q_load_q(5), 0)]))
        else: fb.append((2, [set_m0r('K', k), dma_piece('K', k, 0)]))
        if BT == 2 and k == 1:
            fb.append((13, [salu('s_xor_b32', sMa, sMa, 32768), salu('s_xor_b32', sMb, sMb, 32768)]))
    return phase(pre, mf, fa, fb)

BA = [raw(".p2align 6"), label('L_body0')]
for lp in range(6): BA += body_phase(0, lp)
blk['body_a'] = BA
BB = [label('L_body1')]
for lp in range(6, 12): BB += body_phase(0, lp)
for k in range(1, BT):
    for lp in range(12): BB += body_phase(k, lp)
BB += stamp() + [salu('s_add_u32', sPASS, sPASS, 1), salu('s_cmp_lt_u32', None, sPASS, NIT), branch('s_cbranch_scc1', 'L_body0')]
blk['body_b'] = BB

D1 = [salu('s_mul_i32', sOH, sHEAD, QH, scc_w=False) if not cfg.nostore else smov(sOH, OOB), salu('s_cmp_ge_u32', None, sNEXT, 512), branch('s_cbranch_scc1', 'L_drain')]
blk['bnd_chk'] = D1
N = [smov(sHEAD, sNEXT), smov(sNEXT, '0xffff'), smov(sNB, OOB), smov(sBITN, 2), smov(sQP, 99), smov(sQP1, 99)] + minit_reset() + [branch('s_branch', 'L_fuse')]
blk['bnd_next'] = N
D = [label('L_drain')] + pv_mfmas(5, Pb[1]) + [smov(sFIN, 1), branch('s_branch', 'L_epi0')]
blk['drain'] = D

F = [label('L_end')] + stamp() + [smov(sFIN, 0)]
F += [valu('v_mov_b32', tA, sFLAGS), valu('v_mov_b32', tB, sM0Q), valu('v_mov_b32', tC, LDS_RING),
      ds_write('ds_write_b32', tB, tA, 0), raw("  s_waitcnt lgkmcnt(0)"), barrier()] + [
      ds_read('ds_read_b32', Y8[i], tC, i * 8192) for i in range(4)] + [raw("  s_waitcnt lgkmcnt(0)"),
      valu('v_or_b32', tA, Y8[0], Y8[1]), valu('v_or3_b32', tA, tA, Y8[2], Y8[3]),
      Inst(f"v_readfirstlane_b32 {sFLAGS}, {tA}", 'valu', regs_of(tA), regs_of(sFLAGS)),
      ] + stamp() + stamp_dump() + [salu('s_cmp_eq_u32', None, sFLAGS, 0), branch('s_cbranch_scc1', 'L_exit')]
blk['end'] = F
M = [raw('  s_waitcnt vmcnt(0)'), barrier()]
M += [salu('s_and_b32', sT0, sFLAGS, 1), salu('s_add_u32', sT1, sWG, NWG), salu('s_cmp_lg_u32', None, sT0, 0),
      salu('s_cselect_b32', sHEAD, sWG, sT1, scc_w=False, scc_r=True),
      salu('s_cselect_b32', sT0, 1, 2, scc_w=False, scc_r=True), salu('s_andn2_b32', sFLAGS, sFLAGS, sT0),
      smov(sMODE, 1), smov(sBIT, 0), smov(sNEXT, '0xffff')]
M += [salu('s_mul_i32', sQO, sHEAD, QH, scc_w=False)]
for q in range(6):
    M += [buf_load('buffer_load_dwordx4', Qf[q][j], vQo, srdQ, sQO, j * 64, tag=('mq',)) for j in range(4)]
    M += [salu('s_add_u32', sQO, sQO, 4096)]
M += [waitv(('mq',))]
for q in range(6): M += q_scale_q(q)
M += minit_reset()
M += [valu('v_mbcnt_lo_u32_b32', tC, -1, 0), valu('v_mbcnt_hi_u32_b32', tC, -1, tC),
      valu('v_and_b32', tA, 15, tC), valu('v_lshrrev_b32', tB, 4, tC), valu('v_lshlrev_b32', tA, 8, tA),
      valu('v_lshl_add_u32', vX, tB, 4, tA)]
M += [salu('s_mul_i32', sT1, sHEAD, KH, scc_w=False), smov(sIT, 0)]
blk['max_pre'] = M
ML = [label('L_maxloop')]
ML += [buf_load('buffer_load_dwordx4', KF[0][j], vX, srdK, sT1, j * 64, tag=('mk',)) for j in range(4)]
ML += [waitv(('mk',))]
MS = [Sb[0][0:4], Sb[0][4:8], Sb[1][0:4], Sb[1][4:8], X8[0:4], X8[4:8]]
for q in range(6):
    for j in range(4): ML.append(mfma16(MS[q], KF[0][j], Qf[q][j], 0 if j == 0 else MS[q]))
for q in range(6):
    m = NEGM[q][3]
    ML += [valu('v_max3_f32', m, MS[q][0], MS[q][1], m), valu('v_max3_f32', m, MS[q][2], MS[q][3], m)]
ML += [salu('s_add_u32', sT1, sT1, 4096), salu('s_add_u32', sIT, sIT, 1), salu('s_cmp_lt_u32', None, sIT, 64),
       branch('s_cbranch_scc1', 'L_maxloop')]
blk['max_loop'] = ML
blk['max_post'] = stream_head() + [branch('s_branch', 'L_stream')]
blk['exit'] = [label('L_exit'), raw("  s_endpgm")]

def head_trace(first, has_next):
    t = flat_dyn(blk['fuse'], first)
    for p in range(NIT):
        qf = (p - 12 // BT) if (has_next and p >= 12 // BT) else None
        LASTPASS[0] = (p == NIT - 1)
        b = flat_dyn((blk['body_a'] if p else []) + blk['body_b'], qf)
        sh = (p * BT) % 4
        t += [Remap(i, sh) for i in b] if sh else b
    t += blk['bnd_chk'] + (blk['bnd_next'] if has_next else blk['drain'] + [i for e in EPIS for i in e.fin()] + blk['end'])
    return t
trace = blk['entry0'] + blk['entry1'] + blk['entry'] + blk['stream'] + head_trace(True, True) + head_trace(False, False)
for _ in range(2):
    trace += blk['max_pre'] + blk['max_loop'] * 3 + blk['max_post'] + blk['stream'] + head_trace(True, False)
trace += blk['exit']
for b in blk: blk[b] = flat_static(blk[b])

resolve_waits(trace)
for it in range(10):
    n = check_trace(trace, fix=True, verbose=False)
    if n == 0: break
    if n >= 1000: sys.exit("pending-load errors")
assert check_trace(trace, fix=False) == 0
assert check_lds_protocol(trace)

order = ['entry0', 'entry1', 'entry', 'stream', 'fuse', 'body_a', 'body_b', 'bnd_chk', 'bnd_next', 'drain', 'end',
         'max_pre', 'max_loop', 'max_post', 'exit']
NAME = "standalone__mha_softmax__near_ridge_kernel"
out = f"""; MHA forward (B16 H32 Sq384 Sk1024 D128, bf16) - generated by gen/gen.py (hand-written generator)
; @launch grid=({NWG},1,1) block=(256,1,1) lds={LDS_TOTAL}
.amdgcn_target "amdgcn-amd-amdhsa--gfx950"
.text
.globl {NAME}
.p2align 8
.type {NAME},@function
{NAME}:
"""
for b in order:
    out += f"; ---- {b}\n"
    for i in blk[b]: out += i.render()
out += f""".section .rodata,"a"
.p2align 6
.amdhsa_kernel {NAME}
  .amdhsa_next_free_vgpr 512
  .amdhsa_next_free_sgpr 80
  .amdhsa_accum_offset 256
  .amdhsa_group_segment_fixed_size 0
  .amdhsa_kernarg_size 48
  .amdhsa_user_sgpr_count 2
  .amdhsa_user_sgpr_kernarg_segment_ptr 1
  .amdhsa_system_sgpr_workgroup_id_x 1
.end_amdhsa_kernel
"""
open(sys.argv[1], 'w').write(out)
nn = sum(i.pre_nop for b in ('body_a', 'body_b') for i in blk[b])
print("emitted", sys.argv[1], "insts:", {b: len(blk[b]) for b in order}, "body nops:", nn)
```

```python
import sys, math, struct
from asmlib import *

def f2u(f): return struct.unpack('<I', struct.pack('<f', f))[0]

class Cfg:
    dma_flags = " nt"
    q_flags = " nt"
    st_flags = " nt"
    dma_cost = 8
    thr = 2.0 ** 32
    stamps = 0
    otouch = 0
    nostore = 0
    rowsum = 'mfma'
    bt = 4
    stampdbg = -1
    sched = 2
    hv = 3
    hk = 4
    q45late = 0
cfg = Cfg()
for a in sys.argv[2:]:
    k, v = a.split('=', 1)
    cur = getattr(cfg, k)
    setattr(cfg, k, type(cur)(v) if not isinstance(cur, str) else v.replace('_', ' '))

NWG = 256
QH = 98304
KH = 262144
Q_BYTES = 512 * QH
K_BYTES = 512 * KH
OOB = 0x10000000
LDS_RING = 131072
LDS_TOTAL = LDS_RING + 32768
SCALE = (128 ** -0.5) * math.log2(math.e)

vTID = V(0)
aK = [V(1 + j) for j in range(4)]
aV = [V(5 + d) for d in range(8)]
dK = [V(13 + i) for i in range(4)]
dV = [V(17 + i) for i in range(2)]
vQo, vOo = V(19), V(20)
vX = V(21)
RL = V(22, 2)
T4 = [V(24, 4), V(28, 4)]
Sb = [V(32, 8), V(40, 8)]
Pb = [V(48, 4), V(52, 4)]
NEGM = [V(56 + 4 * q, 4) for q in range(6)]
Qf = [[V(80 + (q * 4 + j) * 4, 4) for j in range(4)] for q in range(6)]
def Oblk(q, db):
    if q < 4: return A((q * 8 + db) * 4, 4)
    return V(176 + ((q - 4) * 8 + db) * 4, 4)
X8 = V(240, 8)
Y8 = V(248, 8)
KF = [[A(128 + (kb * 4 + j) * 4, 4) for j in range(4)] for kb in range(2)]
VF = [A(160 + db * 4, 4) for db in range(8)]
Lb = [A(192 + 4 * q, 4) for q in range(6)]
ONES = A(216, 4)
S0 = [Sb[0], Y8, Sb[1], Sb[0], Y8, Sb[1]]
QST = [[A(220 + (q * 4 + j) * 4, 4) for j in range(4)] for q in range(2)]
vQs = V(0)

srdQ, srdK, srdV, srdO = S(8, 4), S(12, 4), S(16, 4), S(20, 4)
sWG = S(2)
sW, sM0B, sHEAD, sNEXT, sDOFF, sNB, sPASS, sMODE, sFLAGS, sQO, sBIT, sTHR = [S(24 + i) for i in range(12)]
sARG = S(36, 8)
sC = S(44, 2)
sMASK, sFIRST, sT0, sT1, sIT, sOH, sQH, sQP = S(46), S(47), S(48), S(49), S(50), S(51), S(62), S(63)
M0 = 'm0'
sQO2, sM0Q, sBITN, M0S, sFIN, sMa, sMb, sQP1 = [S(64 + i) for i in range(8)]

def smov(d, x): return salu('s_mov_b32', d, x, scc_w=False)
srdW = S(56, 4); sST = S(52, 2); sSTO = S(54); sST2 = S(60, 2)
sSTI = S(55)
def stamp():
    if not cfg.stamps: return []
    t0, t1 = T4[0][0], T4[0][1]
    def acc_r(d, a): return Inst(f"v_accvgpr_read_b32 {d}, {a}", 'valu', regs_of(a), regs_of(d))
    def acc_w(a, d): return Inst(f"v_accvgpr_write_b32 {a}, {d}", 'valu', regs_of(d), regs_of(a))
    def wl(d, s): return Inst(f"v_writelane_b32 {d}, {s}, {sSTI}", 'valu', regs_of(d) + regs_of(s) + regs_of(sSTI), regs_of(d))
    return [raw(f"  s_memtime {sST}", wr=[sST]), raw(f"  s_memrealtime {sST2}", wr=[sST2]), acc_r(t0, A(252)), acc_r(t1, A(253)),
            raw("  s_waitcnt lgkmcnt(0)"), smov(M0S, M0), smov(M0, sSTI), nop(1),
            Inst(f"v_writelane_b32 {t0}, {sST[0]}, m0", 'valu', regs_of(t0), regs_of(t0)),
            Inst(f"v_writelane_b32 {t1}, {sST2[0]}, m0", 'valu', regs_of(t1), regs_of(t1)),
            smov(M0, M0S), acc_w(A(252), t0), acc_w(A(253), t1), salu('s_add_u32', sSTI, sSTI, 1)]
def stamp_dump():
    if not cfg.stamps: return []
    t = T4[0]
    st = Inst(f"buffer_store_dwordx2 {t[0:2]}, {t[2]}, {srdW}, {sSTO} offen", 'vmem_store', regs_of(t[0:3]) + regs_of(srdW) + regs_of(sSTO), [])
    st.sdata = regs_of(t[0:2])
    if cfg.stampdbg >= 0:
        st = Inst(f"buffer_store_dword {t[1]}, {t[2]}, {srdW}, {sSTO} offen", 'vmem_store', regs_of(t[0:3]) + regs_of(srdW) + regs_of(sSTO), [])
        st.sdata = regs_of(t[1])
        return [Inst(f"v_accvgpr_read_b32 {t[1]}, a253", 'valu', regs_of(A(253)), regs_of(t[1])),
                valu('v_mbcnt_lo_u32_b32', t[2], -1, 0), valu('v_mbcnt_hi_u32_b32', t[2], -1, t[2]), valu('v_lshlrev_b32', t[2], 2, t[2]), st]
    return [Inst(f"v_accvgpr_read_b32 {t[0]}, a252", 'valu', regs_of(A(252)), regs_of(t[0])),
            Inst(f"v_accvgpr_read_b32 {t[1]}, a253", 'valu', regs_of(A(253)), regs_of(t[1])),
            valu('v_mbcnt_lo_u32_b32', t[2], -1, 0), valu('v_mbcnt_hi_u32_b32', t[2], -1, t[2]), valu('v_lshlrev_b32', t[2], 3, t[2]), st]

def phase(pre, mf, fa, fb=(), fa_start=0):
    out = list(pre)
    fb = sorted(fb, key=lambda x: x[0])
    total = sum(i.cost for i in fa) + sum(i.cost for _, l in fb for i in l)
    ng = len(mf)
    budget = max(8, int(math.ceil(total / max(ng - fa_start, 1) / 4.0)) * 4)
    ia = 0
    fb = list(fb)
    for g, m in enumerate(mf):
        out.append(m)
        rem = budget
        while fb and fb[0][0] <= g:
            c = sum(i.cost for i in fb[0][1])
            if c <= rem or rem == budget:
                out += fb[0][1]; rem -= c; fb.pop(0)
            else: break
        while g >= fa_start and ia < len(fa) and fa[ia].cost <= rem:
            out.append(fa[ia]); rem -= fa[ia].cost; ia += 1
    for _, l in fb: out += l
    out += fa[ia:]
    return out

def phase2(pre, mf, exps, cvts, fb, hoist):
    out = list(pre)
    fb = sorted(fb, key=lambda x: x[0])
    exps = list(exps); cvts = list(cvts); hoist = list(hoist)
    done = {i: -1 for i in range(8)}
    for i, _ in exps: done.pop(i)
    ng = len(mf)
    for g, m in enumerate(mf):
        out.append(m)
        rem = 8
        while fb and fb[0][0] <= g:
            c = sum(i.cost for i in fb[0][1])
            if c <= rem or rem == 8:
                out += fb[0][1]; rem -= c; fb.pop(0)
            else: break
        def ready_cvt():
            for n, (i, c) in enumerate(cvts):
                if done.get(2 * i, g) < g and done.get(2 * i + 1, g) < g: return n
            return None
        while rem > 0:
            rc = ready_cvt()
            nready = sum(1 for (i, c) in cvts if done.get(2 * i, g) < g and done.get(2 * i + 1, g) < g)
            if rem == 8 and exps and not (nready >= 2 and len(exps) <= cfg_tail(g, ng, exps, cvts)):
                i, e = exps.pop(0); out.append(e); done[i] = g; rem -= 8
            elif rc is not None:
                out.append(cvts.pop(rc)[1]); rem -= 4
            elif rem == 8 and hoist and g >= (9 if hoist[0][0] < 4 else 12):
                out.append(hoist.pop(0)[1]); rem -= 8
            else: break
    for _, l in fb: out += l
    out += [e for _, e in exps] + [c for _, c in cvts] + [e for _, e in hoist]
    return out
def cfg_tail(g, ng, exps, cvts): return 4

def qk_mfmas(q, Sdst, cinit):
    L = []
    for kb in range(2):
        d = Sdst[4 * kb:4 * kb + 4]
        for j in range(4):
            L.append(mfma16(d, KF[kb][j], Qf[q][j], (cinit if j == 0 else d)))
    return L
def pv_mfmas(q, P, first=False):
    L = [mfma16(Oblk(q, db), VF[db], P, 0 if first else Oblk(q, db)) for db in range(8)]
    if cfg.rowsum == 'mf4':
        L.insert(4, mfma4(Lb[q], ONES[0:2], P[0:2], 0 if first else Lb[q]))
        L.append(mfma4(Lb[q], ONES[0:2], P[2:4], Lb[q]))
    elif cfg.rowsum == 'mfma' or first: L.append(mfma16(Lb[q], ONES, P, 0 if first else Lb[q]))
    return L
def sm_valu(Ssrc, P, lacc=None):
    e = [valu('v_exp_f32', Ssrc[i], Ssrc[i], trans=True) for i in range(8)]
    c = [valu('v_cvt_pk_bf16_f32', P[i], Ssrc[2 * i], Ssrc[2 * i + 1]) for i in range(4)]
    if lacc is not None:
        a = [valu('v_add_f32', lacc, lacc, Ssrc[i]) for i in range(8)]
        return [e[0], e[1], a[0], c[0], e[2], a[1], a[2], e[3], e[4], a[3], c[1], e[5], a[4], a[5], e[6], e[7], c[2], a[6], a[7], c[3]]
    return [e[0], e[1], e[2], c[0], e[3], e[4], c[1], e[5], e[6], c[2], e[7], c[3]]
def k_read(kb, j, slot, sub):
    return ds_read('ds_read_b128', KF[kb][j], aK[j], slot * 16384 + sub * 8192 + kb * 4096, tag=('t', slot, 'K'))
def v_reads(db, slot, sub):
    return [ds_read('ds_read_b64_tr_b16', VF[db][2 * h:2 * h + 2], aV[db], slot * 16384 + sub * 8192 + h * 4096, tag=('t', slot, 'V'))
            for h in range(2)]
def dma_piece(part, slot, idx):
    if part == 'K': d = dma(dK[idx], srdK, sDOFF, idx * 1024, ('t', slot, 'K'), cfg.dma_flags, cfg.dma_cost)
    else: d = dma(dV[idx & 1], srdV, sDOFF, idx * 1024, ('t', slot, 'V'), cfg.dma_flags, cfg.dma_cost)
    d.piece = idx
    return d
def set_m0(part, slot):
    return salu('s_add_u32', M0, sM0B, (65536 if part == 'V' else 0) + slot * 16384)
ALLK = [KF[kb][j] for kb in range(2) for j in range(4)]

def q_loads():
    L = [salu('s_mul_i32', sQO, sHEADQ, QH, scc_w=False)]
    for q in range(6):
        for j in range(4):
            L.append(buf_load('buffer_load_dwordx4', Qf[q][j], vQo, srdQ, sQO, j * 64, tag=('q', q), flags=cfg.q_flags))
        if q < 5: L.append(salu('s_add_u32', sQO, sQO, 4096))
    return L
def q_scale():
    L = []
    for q in range(6):
        L.append(waitv(('q', q)))
        for j in range(4):
            x = Qf[q][j]; t = X8 if (j & 1) == 0 else Y8
            for i in range(4):
                L.append(valu('v_lshlrev_b32', t[2 * i], 16, x[i]))
                L.append(valu('v_and_b32', t[2 * i + 1], sMASK, x[i]))
            for i in range(4):
                L.append(valu('v_pk_mul_f32', t[2 * i:2 * i + 2], t[2 * i:2 * i + 2], sC))
            for i in range(4):
                L.append(valu('v_cvt_pk_bf16_f32', x[i], t[2 * i], t[2 * i + 1]))
    return L
def minit_reset():
    return [valu('v_mov_b32', NEGM[q][3], '0xff800000') for q in range(6)]

def max_valu(q):
    s = S0[q]; m = NEGM[q][3]; t = RL[q & 1]
    L = [valu('v_max3_f32', m, s[0], s[1], m), valu('v_max3_f32', m, s[2], s[3], m),
         valu('v_max3_f32', m, s[4], s[5], m), valu('v_max3_f32', m, s[6], s[7], m),
         valu('v_mov_b32', t, m), permswap('v_permlane32_swap_b32', t, m), valu('v_max_f32', m, t, m),
         valu('v_mov_b32', t, m), permswap('v_permlane16_swap_b32', t, m), valu('v_max_f32', t, t, m)]
    L += [valu('v_sub_f32', s[i], s[i], t) for i in range(8)]
    L += [valu('v_sub_f32', NEGM[q][i], 0, t) for i in range(4)]
    return L

blk = {}
E = []
E += [salu('s_cmp_ge_u32', None, sWG, NWG), branch('s_cbranch_scc1', 'L_exit')]
E += [raw(f"  s_load_dwordx8 {sARG}, s[0:1], 0", wr=[sARG])]
E += [valu('v_lshrrev_b32', vX, 6, vTID), valu('v_and_b32', vTID, 63, vTID)]
E += [Inst(f"v_readfirstlane_b32 {sW}, {vX}", 'valu', regs_of(vX), regs_of(sW))]
tA, tB, tC, tD = X8[0], X8[1], X8[2], X8[3]
tQ, tG = X8[4], X8[5]
E += [valu('v_and_b32', tQ, 15, vTID), valu('v_lshrrev_b32', tG, 4, vTID)]
E += [smov(sHEAD, sWG), valu('v_lshlrev_b32', tA, 8, tQ), valu('v_xor_b32', tD, tG, tQ)]
E += [salu('s_mul_i32', sT0, sW, 96 * 256, scc_w=False), salu('s_lshl_b32', sM0B, sW, 12)]
E += [valu('v_add_u32', tA, sT0, tA), valu('v_lshl_add_u32', vQo, tG, 4, tA)]
E += [valu('v_lshlrev_b32', tB, 8, tG), valu('v_add_u32', tB, sM0B, tB)]
for i in range(4):
    E += [valu('v_xor_b32', tC, 4 * i, tD), valu('v_lshl_add_u32', dK[i], tC, 4, tB)]
def mk_srd(srd, k, nb): return [smov(srd[0], sARG[k]), salu('s_and_b32', srd[1], sARG[k + 1], '0xffff'), smov(srd[2], nb), smov(srd[3], '0x20000')]
E += [smov(srdQ[2], Q_BYTES), smov(srdQ[3], '0x20000'), smov(srdK[2], K_BYTES), smov(srdK[3], '0x20000')]
E += [raw("  s_waitcnt lgkmcnt(0)")]
E += [smov(srdQ[0], sARG[0]), salu('s_and_b32', srdQ[1], sARG[1], '0xffff'), smov(srdK[0], sARG[2]), salu('s_and_b32', srdK[1], sARG[3], '0xffff')]
blk['entry0'] = E
E = []
E += mk_srd(srdV, 4, K_BYTES) + mk_srd(srdO, 6, Q_BYTES)
E += [valu('v_lshlrev_b32', tA, 1, tG), valu('v_xor_b32', tA, tA, tQ)]
for i in range(2):
    E += [valu('v_xor_b32', tC, 8 * i, tA), valu('v_lshl_add_u32', dV[i], tC, 4, tB)]
E += [valu('v_lshlrev_b32', tB, 8, tQ)]
for j in range(4):
    E += [valu('v_xor_b32', tC, 4 * j, tD), valu('v_lshl_add_u32', aK[j], tC, 4, tB)]
E += [valu('v_lshrrev_b32', tA, 2, vTID), valu('v_and_b32', tC, 7, tA), valu('v_lshlrev_b32', tA, 8, tA),
      valu('v_and_b32', tB, 3, vTID), valu('v_lshl_add_u32', tA, tB, 3, tA), valu('v_add_u32', tA, 65536, tA)]
for db in range(8):
    E += [valu('v_xor_b32', tB, db, tC), valu('v_lshl_add_u32', aV[db], tB, 5, tA)]
E += [valu('v_lshlrev_b32', vOo, 4, vTID), valu('v_add_u32', vOo, sT0, vOo)]
E += [smov(sMa, sM0B), salu('s_add_u32', sMb, sM0B, 32768)]
E += [salu('s_lshl_b32', sM0Q, sW, 13), salu('s_add_u32', sM0Q, sM0Q, LDS_RING),
      valu('v_lshlrev_b32', vQs, 4, vTID), valu('v_add_u32', vQs, sM0Q, vQs)]
E += [valu('v_lshrrev_b32', tA, 1, tG), valu('v_xor_b32', tA, tA, tQ), valu('v_lshlrev_b32', tA, 4, tA), valu('v_lshl_add_u32', tA, tQ, 8, tA),
      valu('v_and_b32', tB, 1, tG), valu('v_lshl_add_u32', tA, tB, 3, tA), valu('v_add_u32', tA, sM0Q, tA),
      Inst("v_accvgpr_write_b32 a254, " + str(tA), 'valu', regs_of(tA), regs_of(A(254))),
      valu('v_lshlrev_b32', tA, 4, tD), valu('v_lshl_add_u32', tA, tG, 8, tA), valu('v_add_u32', tA, sM0Q, tA),
      Inst("v_accvgpr_write_b32 a255, " + str(tA), 'valu', regs_of(tA), regs_of(A(255)))]
E += [valu('v_mov_b32', tA, '0x3f803f80')]
E += [Inst(f"v_accvgpr_write_b32 {ONES[i]}, {tA}", 'valu', regs_of(tA), regs_of(ONES[i])) for i in range(4)]
E += [smov(sC[0], hex(f2u(SCALE))), smov(sC[1], hex(f2u(SCALE))), smov(sMASK, '0xffff0000'), smov(sTHR, hex(f2u(cfg.thr)))]
E += [salu('s_add_u32', sNEXT, sWG, NWG), smov(sMODE, 0), smov(sFLAGS, 0), smov(sBIT, 1), smov(sFIN, 0)]
E += minit_reset()
if cfg.stamps:
    E += [raw(f"  s_load_dwordx2 {srdW[0:2]}, s[0:1], {32 if cfg.stampdbg >= 0 else 40}", wr=[srdW[0:2]]), raw("  s_waitcnt lgkmcnt(0)"),
          salu('s_and_b32', srdW[1], srdW[1], '0xffff'), smov(srdW[2], 1 << 20), smov(srdW[3], '0x20000'),
          salu('s_lshl_b32', sSTO, sWG, 2), salu('s_add_u32', sSTO, sSTO, sW)]
    if cfg.stampdbg >= 0:
        E += [salu('s_cmp_eq_u32', None, sSTO, cfg.stampdbg), salu('s_cselect_b32', srdW[2], 64, 0, scc_w=False, scc_r=True), smov(sSTO, 0)]
    else: E += [salu('s_lshl_b32', sSTO, sSTO, 9)]
    E += [smov(sSTI, 0), smov(M0, 0), Inst('v_accvgpr_write_b32 a252, 0', 'valu', [], regs_of(A(252))), Inst('v_accvgpr_write_b32 a253, 0', 'valu', [], regs_of(A(253)))]
    E += stamp()
blk['entry'] = E

def q_place(q, early=False):
    if q < 2: return (sM0Q, q * 4096) if early else (sM0B, 16384 * (q + 1))
    if q < 4: return (sM0Q, (q - 2) * 4096)
    return (sM0B, 65536 + 49152) if q == 4 else (sM0B, 49152)
def q_load_q(q, restore_m0=None, early=False):
    b, c = q_place(q, early)
    L = [salu('s_add_u32', sQO, sQH, q * 4096), salu('s_add_u32', M0, b, c)]
    for i in range(4):
        d = dma(dK[i], srdQ, sQO, i * 1024, ('q', q), cfg.q_flags, cfg.dma_cost); d.piece = i; L.append(d)
    if restore_m0: L.append(restore_m0)
    return L
def q_lds_read(dsts, q, early=False):
    b, c = q_place(q, early)
    L = [salu('s_add_u32', sT0, b, c)] + [valu('v_add_u32', X8[j], sT0, aK[j]) for j in range(4)]
    for n, d in enumerate(dsts):
        L += [ds_read('ds_read_b128', d[j], X8[j], n * 4096) for j in range(4)]
    return L
def q_unstage_acc(q):
    return [Inst(f"v_accvgpr_read_b32 {Qf[q][j][i]}, {QST[q][j][i]}", 'valu', regs_of(QST[q][j][i]), regs_of(Qf[q][j][i]))
            for j in range(4) for i in range(4)]
def q_scale_q(q):
    L = []
    for j in range(4):
        x = Qf[q][j]; t = X8
        for i in range(4):
            L.append(valu('v_lshlrev_b32', t[2 * i], 16, x[i]))
            L.append(valu('v_and_b32', t[2 * i + 1], sMASK, x[i]))
        for i in range(4):
            L.append(valu('v_pk_mul_f32', t[2 * i:2 * i + 2], t[2 * i:2 * i + 2], sC))
        for i in range(4):
            L.append(valu('v_cvt_pk_bf16_f32', x[i], t[2 * i], t[2 * i + 1]))
    return L
_ti = [0]
def epi_q(q, tsets):
    D = [salu('s_add_u32', sQO2, sOH, q * 4096)]
    D += [Inst(f"v_accvgpr_read_b32 {RL[1]}, {Lb[q][0]}", 'valu', regs_of(Lb[q][0]), regs_of(RL[1]))]
    if cfg.rowsum == 'mf4':
        D += [valu('v_mov_b32', RL[0], RL[1]), permswap('v_permlane32_swap_b32', RL[0], RL[1]), valu('v_add_f32', RL[1], RL[0], RL[1]),
              valu('v_mov_b32', RL[0], RL[1]), permswap('v_permlane16_swap_b32', RL[0], RL[1]), valu('v_add_f32', RL[1], RL[0], RL[1])]
    D += [valu('v_rcp_f32', RL[0], RL[1], trans=True)]
    if q == 0: D += [valu('v_mov_b32', vX, RL[1])]
    else: D += [valu('v_add_f32', vX, vX, RL[1])]
    for dp in range(4):
        if q < 4:
            t = tsets[dp % len(tsets)]
            for bi in range(2):
                o = Oblk(q, 2 * dp + bi)
                D += [Inst(f"v_accvgpr_read_b32 {t[4*bi+i]}, {o[i]}", 'valu', regs_of(o[i]), regs_of(t[4 * bi + i])) for i in range(4)]
        else:
            o = Oblk(q, 2 * dp); t = V(o.n, 8)
        for i in range(4):
            D += [valu('v_pk_mul_f32', t[2 * i:2 * i + 2], t[2 * i:2 * i + 2], RL, extra="op_sel_hi:[1,0]")]
        T = T4[_ti[0] % 2]; _ti[0] += 1
        for i in range(4): D += [valu('v_cvt_pk_bf16_f32', T[i], t[2 * i], t[2 * i + 1])]
        D += [permswap('v_permlane16_swap_b32', T[0], T[2]), permswap('v_permlane16_swap_b32', T[1], T[3])]
        D += [buf_store('buffer_store_dwordx4', T, vOo, srdO, sQO2, dp * 64, flags=cfg.st_flags)]
    return D
aWA, aRA = A(254), A(255)
def acc_read(d, a): return Inst(f"v_accvgpr_read_b32 {d}, {a}", 'valu', regs_of(a), regs_of(d))
def oreg(q, t):
    return Oblk(q, t)
def epi_a(q):
    half = (q & 1) * 4096
    D = [acc_read(RL[1], Lb[q][0]), valu('v_rcp_f32', RL[0], RL[1], trans=True)]
    D += [valu('v_mov_b32', vX, RL[1]) if q == 0 else valu('v_add_f32', vX, vX, RL[1])]
    D += [acc_read(RL[1], aWA)]
    for dp in range(4):
        if q < 4:
            t = X8
            for bi in range(2):
                o = Oblk(q, 2 * dp + bi)
                D += [acc_read(t[4 * bi + i], o[i]) for i in range(4)]
        else:
            o = Oblk(q, 2 * dp); t = V(o.n, 8)
        mul = [Inst(f"v_pk_mul_f32 {t[2*i:2*i+2]}, {t[2*i:2*i+2]}, {RL} op_sel_hi:[1,0]", 'valu',
                    regs_of(t[2 * i:2 * i + 2]) + regs_of(RL[0]), regs_of(t[2 * i:2 * i + 2])) for i in range(4)]
        D += mul
        T = T4[dp % 2]
        D += [valu('v_cvt_pk_bf16_f32', T[i], t[2 * i], t[2 * i + 1]) for i in range(4)]
        for bi in range(2):
            db = 2 * dp + bi
            D += [ds_write('ds_write_b64', RL[1], T[2 * bi:2 * bi + 2], half)]
            if db < 7: D += [valu('v_xor_b32', RL[1], (db ^ (db + 1)) << 5, RL[1])]
    D += [acc_read(RL[1], aRA)]
    for t in range(4):
        D += [ds_read('ds_read_b128', oreg(q, t), RL[1], half + t * 1024)]
        if t < 3: D += [valu('v_xor_b32', RL[1], (t ^ (t + 1)) << 6, RL[1])]
    return D
def epi_b(q):
    D = [salu('s_add_u32', sQO2, sOH, q * 4096), waitl(*[oreg(q, t) for t in range(4)])]
    D += [buf_store('buffer_store_dwordx4', oreg(q, t), vOo, srdO, sQO2, t * 1024, flags=cfg.st_flags) for t in range(4)]
    return D
def fail_check():
    return [Inst(f"v_cmp_nge_f32 vcc, {sTHR}, {vX}", 'valu', regs_of(sTHR) + regs_of(vX), [('x', 'vcc')]),
            salu('s_cmp_lg_u64', None, 'vcc', 0), salu('s_cselect_b32', sT0, sBIT, 0, scc_w=False, scc_r=True),
            salu('s_or_b32', sFLAGS, sFLAGS, sT0)]

def is_pk(i): return 'v_pk_' in i.text
def vphase(mf, seq, start=0):
    n = len(seq); out = []
    if not mf: return list(seq)
    tot = sum(i.cost for i in seq if isinstance(i, Inst))
    step = (tot * (1.0 - start)) / len(mf)
    acc = 0.0; nxt = tot * start; k = 0
    for idx, i in enumerate(seq):
        if k < len(mf) and acc >= nxt:
            look = [x for x in seq[idx:idx + 3] if isinstance(x, Inst)]
            if not any(is_pk(x) for x in look):
                m = mf[k]; out += (m if isinstance(m, list) else [m]); k += 1; nxt += step
        out.append(i)
        if isinstance(i, Inst): acc += i.cost
    for m in mf[k:]: out += (m if isinstance(m, list) else [m])
    return out

class Cond:
    n = 0
    def __init__(self, first, body):
        self.first, self.body = first, body
        self.lab = f"L_c{Cond.n}"; Cond.n += 1
        self.head = [salu('s_cmp_eq_u32', None, sFIRST, 0), branch('s_cbranch_scc1' if first else 's_cbranch_scc0', self.lab)]
        self.tail = [label(self.lab)]
    def static(self): return self.head + self.body + self.tail
    def dyn(self, first): return self.head + (self.body if first == self.first else []) + self.tail
def flat_static(seq): return [y for x in seq for y in (x.static() if hasattr(x, 'static') else [x])]
def flat_dyn(seq, flag):
    out = []
    for x in seq:
        if hasattr(x, 'dyn'): out += x.dyn(flag)
        elif flag is True and getattr(x, 'nf_only', False): out.append(Ghost(x))
        else: out.append(x)
    return out
def waitv_nf(*tags):
    w = waitv(*tags); w.nf_only = True; return w

def tile_dma(part, t): return [set_m0(part, t)] + [dma_piece(part, t, i) for i in range(4)]
nxt_tile = lambda: [salu('s_add_u32', sDOFF, sDOFF, 16384)]

def stream_head():
    return [salu('s_mul_i32', sQH, sHEAD, QH, scc_w=False), salu('s_mul_i32', sT1, sW, 20480, scc_w=False), salu('s_add_u32', sQH, sQH, sT1),
            salu('s_mul_i32', sDOFF, sHEAD, KH, scc_w=False)] + q_load_q(0) + tile_dma('K', 0) + q_load_q(1)
blk['entry1'] = stream_head()
B = [label('L_stream')]
B += [salu('s_mul_i32', sNB, sNEXT, KH, scc_w=False), salu('s_cmp_lt_u32', None, sNEXT, 512),
      salu('s_cselect_b32', sNB, sNB, OOB, scc_w=False, scc_r=True),
      salu('s_cselect_b32', sQP, 12 // cfg.bt, 99, scc_w=False, scc_r=True), salu('s_add_u32', sQP1, sQP, 1),
      smov(sFIRST, 1), smov(sOH, OOB), smov(sBITN, sBIT), smov(sBIT, 0)]
blk['stream'] = B

zero_init = [valu('v_mov_b32', Oblk(5, db)[i], 0) for db in range(8) for i in range(4)]
zero_init += [Inst(f"v_accvgpr_write_b32 {Lb[5][i]}, 0", 'valu', [], regs_of(Lb[5][i])) for i in range(4)]
FU = [label('L_fuse'), smov(sPASS, 0)] + stamp()
def st2(): return stamp() if cfg.stamps >= 2 else []
GR = [('q', 0), ('t', 0, 'K'), ('q', 1), ('q', 2), ('q', 3), ('t', 0, 'V'), ('q', 4), ('q', 5),
      ('t', 1, 'K'), ('t', 1, 'V'), ('t', 2, 'K'), ('t', 2, 'V')]
def issue(k):
    t = GR[k]
    if t[0] == 'q': return q_load_q(t[1])
    return tile_dma(t[2], t[1]) + (nxt_tile() if t[2] == 'V' else [])
def top(k, extra=()): return [Cond(True, ([waitv(GR[k - 3])] if k <= 10 else []) + issue(k) + list(extra))]
def qscale(q): return [waitl(*Qf[q])] + q_scale_q(q)
class EpiBlk:
    def __init__(self, n, body, last=False):
        self.head = [salu('s_cmp_eq_u32', None, sFIRST, 0), branch('s_cbranch_scc0', f'L_epx{n}')]
        self.body = [label(f'L_epi{n}')] + body
        self.chain = [salu('s_cmp_lg_u32', None, sFIN, 0), branch('s_cbranch_scc1', 'L_end' if last else f'L_epi{n+1}')]
        self.tail = [label(f'L_epx{n}')]
    def static(self): return self.head + self.body + self.chain + self.tail
    def dyn(self, first): return self.head + ([] if first else self.body + self.chain) + self.tail
    def fin(self): return self.body + self.chain
EPIS = [EpiBlk(0, epi_a(0) + epi_a(1) + epi_b(0)), EpiBlk(1, epi_a(2) + epi_b(1)), EpiBlk(2, epi_a(3) + epi_b(2)),
        EpiBlk(3, epi_a(4) + epi_b(3) + epi_a(5) + fail_check() + epi_b(4)), EpiBlk(4, epi_b(5), last=True)]
QK0 = lambda q: qk_mfmas(q, S0[q], 0)
PV0 = lambda q: pv_mfmas(q, Pb[q % 2], first=True)
SM0 = lambda q: sm_valu(S0[q], Pb[q % 2])
pv = pv_mfmas(5, Pb[1])
def pv_db(m):
    for db in range(8):
        if VF[db].regs()[0] in m.ab: return db
    return None
mf0 = [([m] + v_reads(pv_db(m), 0, 0)) if pv_db(m) is not None else [m] for m in pv]
for m in mf0:
    for r in m[1:]: r.tag = ('tx', 0, 'V')
def qs01(q): return [Cond(False, q_unstage_acc(q)), Cond(True, [waitl(*Qf[q])])] + q_scale_q(q)
FU += vphase(mf0, top(3, q_lds_read([Qf[0]], 0)) + qs01(0)
             + top(4, [barrier()] + [k_read(kb, j, 0, 0) for kb in range(2) for j in range(4)])
             + top(5, q_lds_read([Qf[1]], 1)) + qs01(1)) + st2()
FU += [waitl(*ALLK)]
FU += vphase(QK0(0) + QK0(1), top(6) + top(7) + [waitv_nf(('q', 3))] + q_lds_read([Qf[2], Qf[3]], 2) + qscale(2)
             + top(8, [barrier()] + [r for db in range(8) for r in v_reads(db, 0, 0)]) + qscale(3)) + st2()
FU += vphase(QK0(2), max_valu(0) + SM0(0) + max_valu(1) + SM0(1)) + st2()
FU += [EPIS[0]] + st2()
FU += [waitl(*VF)]
FU += vphase(QK0(3) + PV0(0), top(9) + [waitv_nf(('q', 4))] + q_lds_read([Qf[4]], 4) + max_valu(2) + qscale(4)) + [EPIS[1]] + st2()
FU += vphase(QK0(4) + PV0(1), top(10) + [waitv_nf(('q', 5))] + q_lds_read([Qf[5]], 5) + SM0(2) + qscale(5) + max_valu(3)) + [EPIS[2]] + st2()
qk5 = QK0(5); qk5 = [[qk5[kb * 4 + j], k_read(kb, j, 0, 1)] for kb in range(2) for j in range(4)]
FU += vphase(qk5 + PV0(2), SM0(3) + max_valu(4) + top(11)) + [EPIS[3]] + st2()
FU += vphase(PV0(3), SM0(4) + max_valu(5)) + [EPIS[4]] + st2()
FU += [waitl(*ALLK)]
FU += vphase(qk_mfmas(0, Sb[0], NEGM[0]) + PV0(4),
             [set_m0('K', 3), dma_piece('K', 3, 0)] + SM0(5) + [dma_piece('K', 3, 1)] + zero_init[:12] + [dma_piece('K', 3, 2)] + zero_init[12:24]
             + [dma_piece('K', 3, 3)] + zero_init[24:] + [set_m0('V', 3), dma_piece('V', 3, 0)])
if cfg.sched == 2: FU += [valu('v_exp_f32', Sb[0][i], Sb[0][i], trans=True) for i in range(cfg.hv)]
FU += [smov(sFIRST, 0), smov(sBIT, sBITN), salu('s_mul_i32', sQH, sNEXT, QH, scc_w=False), salu('s_mul_i32', sT1, sW, 20480, scc_w=False), salu('s_add_u32', sQH, sQH, sT1)] + stamp() + [branch('s_branch', 'L_body1')]
blk['fuse'] = FU

class CondQ:
    n = 0
    def __init__(self, body, dp):
        self.body = body; self.lab = f"L_q{CondQ.n}"; CondQ.n += 1; self.dp = dp
        self.head = [salu('s_cmp_eq_u32', None, sPASS, sQP if dp == 0 else sQP1), branch('s_cbranch_scc0', self.lab)]
        self.tail = [label(self.lab)]
        self.cost = 8
    def static(self): return self.head + self.body + self.tail
    def dyn(self, flag): return self.head + (self.body if flag == self.dp else []) + self.tail

class CondL:
    def __init__(self, body):
        self.body = body; self.lab = "L_nl"
        self.head = [salu('s_cmp_eq_u32', None, sPASS, 3), branch('s_cbranch_scc1', self.lab)]
        self.tail = [label(self.lab)]
        self.cost = 16
    def static(self): return self.head + self.body + self.tail
    def dyn(self, flag): return self.head + ([] if LASTPASS[0] else self.body) + self.tail
LASTPASS = [False]
BT = cfg.bt
NIT = 16 // BT
def set_m0r(part, r):
    if BT == 4: return set_m0(part, r)
    return salu('s_add_u32', M0, sMa if r < 2 else sMb, (65536 if part == 'V' else 0) + (r & 1) * 16384)
def k_read_r(kb, j, r, sub):
    d = k_read(kb, j, r % BT if BT == 2 else r, sub); d.tag = ('t', r, 'K'); return d

def HO(lp): return {0: cfg.hv, 6: cfg.hv, 4: cfg.hk, 10: cfg.hk}.get(lp, 0)
_smi = {}
def sm_items(k, lp):
    if (k, lp) not in _smi:
        q = lp % 6; Ssrc, P = Sb[q % 2], Pb[q % 2]
        _smi[(k, lp)] = ([(i, valu('v_exp_f32', Ssrc[i], Ssrc[i], trans=True)) for i in range(8)],
                         [(i, valu('v_cvt_pk_bf16_f32', P[i], Ssrc[2 * i], Ssrc[2 * i + 1])) for i in range(4)])
    return _smi[(k, lp)]
def body_phase(k, lp):
    sub, q = divmod(lp, 6)
    qn = (q + 1) % 6; qp = (q - 1) % 6
    pre = []; fb = []
    mf = qk_mfmas(qn, Sb[(q + 1) % 2], NEGM[qn]) + pv_mfmas(qp, Pb[(q - 1) % 2])
    fa = sm_valu(Sb[q % 2], Pb[q % 2], X8[q] if cfg.rowsum == 'valu' else None)
    if q == 4:
        slot, s2 = (k, 1) if sub == 0 else ((k + 1) % 4, 0)
        if sub == 1: pre += [waitv(('t', slot, 'V')), barrier()]
        for kb in range(2):
            for j in range(4): fb.append((kb * 4 + j, [k_read_r(kb, j, slot, s2)]))
    if q == 5: pre += [waitl(*ALLK)]
    if q == 0:
        for gi, m in enumerate(mf):
            if gi >= 8 and pv_db(m) is not None: fb.append((gi, v_reads(pv_db(m), k, sub)))
    if q == 1: fb.append((7, [waitl(*VF)]))
    x3 = (k + 3) % 4
    if lp in (1, 2, 3): fb.append((2, [dma_piece('K', x3, lp)]))
    if lp == 5: fb.append((1, [set_m0r('V', x3)])); fb.append((2, [dma_piece('V', x3, 0)]))
    if lp in (7, 8, 9): fb.append((2, [dma_piece('V', x3, lp - 6)]))
    assert BT == 4
    cur_m0 = set_m0r('K', x3) if lp < 5 else set_m0r('V', x3)
    if (k, lp) == (0, 8): fb.append((12, [CondQ(q_load_q(0, cur_m0, early=True), 0)]))
    if (k, lp) == (1, 2): fb.append((12, [CondQ(q_load_q(1, cur_m0, early=True), 0)]))
    if (k, lp) == (1, 9): fb.append((12, [CondQ([waitv(('q', 1))] + q_lds_read([QST[0], QST[1]], 0, early=True), 0)]))
    if (k, lp) == (2, 2): fb.append((12, [CondQ([waitl(*QST[0], *QST[1])] + q_load_q(2, cur_m0), 0)]))
    if (k, lp) == (2, 8): fb.append((12, [CondQ(q_load_q(3, cur_m0), 0)]))
    if (k, lp) == (3, 10): fb.append((12, [CondQ(q_load_q(4), 0)]))
    if BT == 2 and k == 1:
        if lp == 7:
            for j in range(4): fb.append((11 + j, [valu('v_xor_b32', aK[j], 32768, aK[j])]))
        if lp in (8, 9):
            for d in range(4): fb.append((9 + 2 * d if lp == 9 else 9 + d // 2 + 6 * (d // 2), [valu('v_xor_b32', aV[4 * (lp - 8) + d], 32768, aV[4 * (lp - 8) + d])]))
    if lp == 11:
        upd = [salu('s_add_u32', sDOFF, sDOFF, 16384)]
        if k == 0:
            upd += [salu('s_cmp_eq_u32', None, sPASS, 12 // BT), salu('s_cselect_b32', sDOFF, sNB, sDOFF, scc_w=False, scc_r=True)]
        fb.append((0, upd[:2]))
        if len(upd) > 2: fb.append((1, upd[2:]))
        if k == 3:
            fb.append((2, [CondL([set_m0r('K', k), dma_piece('K', k, 0)])]))
            fb.append((12, [CondQ(q_load_q(5), 0)]))
        else: fb.append((1, [set_m0r('K', k)])); fb.append((2, [dma_piece('K', k, 0)]))
        if BT == 2 and k == 1:
            fb.append((13, [salu('s_xor_b32', sMa, sMa, 32768), salu('s_xor_b32', sMb, sMb, 32768)]))
    if cfg.sched == 1: return phase(pre, mf, fa, fb)
    ex, cv = sm_items(k, lp)
    nk, nlp = (k, lp + 1) if lp < 11 else ((k + 1) % BT, 0)
    return phase2(pre, mf, ex[HO(lp):], cv, fb, sm_items(nk, nlp)[0][:HO(nlp)])

BA = [raw(".p2align 6"), label('L_body0')]
for lp in range(6): BA += body_phase(0, lp)
blk['body_a'] = BA
BB = [label('L_body1')]
for lp in range(6, 12): BB += body_phase(0, lp)
for k in range(1, BT):
    for lp in range(12): BB += body_phase(k, lp)
BB += stamp() + [salu('s_add_u32', sPASS, sPASS, 1), salu('s_cmp_lt_u32', None, sPASS, NIT), branch('s_cbranch_scc1', 'L_body0')]
blk['body_b'] = BB

D1 = [salu('s_mul_i32', sOH, sHEAD, QH, scc_w=False) if not cfg.nostore else smov(sOH, OOB), salu('s_cmp_ge_u32', None, sNEXT, 512), branch('s_cbranch_scc1', 'L_drain')]
blk['bnd_chk'] = D1
N = [smov(sHEAD, sNEXT), smov(sNEXT, '0xffff'), smov(sNB, OOB), smov(sBITN, 2), smov(sQP, 99), smov(sQP1, 99)] + minit_reset() + [branch('s_branch', 'L_fuse')]
blk['bnd_next'] = N
D = [label('L_drain')] + pv_mfmas(5, Pb[1]) + [smov(sFIN, 1), branch('s_branch', 'L_epi0')]
blk['drain'] = D

F = [label('L_end')] + stamp() + [smov(sFIN, 0)]
F += [valu('v_mov_b32', tA, sFLAGS), valu('v_mov_b32', tB, sM0Q), valu('v_mov_b32', tC, LDS_RING),
      ds_write('ds_write_b32', tB, tA, 0), raw("  s_waitcnt lgkmcnt(0)"), barrier()] + [
      ds_read('ds_read_b32', Y8[i], tC, i * 8192) for i in range(4)] + [raw("  s_waitcnt lgkmcnt(0)"),
      valu('v_or_b32', tA, Y8[0], Y8[1]), valu('v_or3_b32', tA, tA, Y8[2], Y8[3]),
      Inst(f"v_readfirstlane_b32 {sFLAGS}, {tA}", 'valu', regs_of(tA), regs_of(sFLAGS)),
      ] + stamp() + stamp_dump() + [salu('s_cmp_eq_u32', None, sFLAGS, 0), branch('s_cbranch_scc1', 'L_exit')]
blk['end'] = F
M = [raw('  s_waitcnt vmcnt(0)'), barrier()]
M += [salu('s_and_b32', sT0, sFLAGS, 1), salu('s_add_u32', sT1, sWG, NWG), salu('s_cmp_lg_u32', None, sT0, 0),
      salu('s_cselect_b32', sHEAD, sWG, sT1, scc_w=False, scc_r=True),
      salu('s_cselect_b32', sT0, 1, 2, scc_w=False, scc_r=True), salu('s_andn2_b32', sFLAGS, sFLAGS, sT0),
      smov(sMODE, 1), smov(sBIT, 0), smov(sNEXT, '0xffff')]
M += [salu('s_mul_i32', sQO, sHEAD, QH, scc_w=False)]
for q in range(6):
    M += [buf_load('buffer_load_dwordx4', Qf[q][j], vQo, srdQ, sQO, j * 64, tag=('mq',)) for j in range(4)]
    M += [salu('s_add_u32', sQO, sQO, 4096)]
M += [waitv(('mq',))]
for q in range(6): M += q_scale_q(q)
M += minit_reset()
M += [valu('v_mbcnt_lo_u32_b32', tC, -1, 0), valu('v_mbcnt_hi_u32_b32', tC, -1, tC),
      valu('v_and_b32', tA, 15, tC), valu('v_lshrrev_b32', tB, 4, tC), valu('v_lshlrev_b32', tA, 8, tA),
      valu('v_lshl_add_u32', vX, tB, 4, tA)]
M += [salu('s_mul_i32', sT1, sHEAD, KH, scc_w=False), smov(sIT, 0)]
blk['max_pre'] = M
ML = [label('L_maxloop')]
ML += [buf_load('buffer_load_dwordx4', KF[0][j], vX, srdK, sT1, j * 64, tag=('mk',)) for j in range(4)]
ML += [waitv(('mk',))]
MS = [Sb[0][0:4], Sb[0][4:8], Sb[1][0:4], Sb[1][4:8], X8[0:4], X8[4:8]]
for q in range(6):
    for j in range(4): ML.append(mfma16(MS[q], KF[0][j], Qf[q][j], 0 if j == 0 else MS[q]))
for q in range(6):
    m = NEGM[q][3]
    ML += [valu('v_max3_f32', m, MS[q][0], MS[q][1], m), valu('v_max3_f32', m, MS[q][2], MS[q][3], m)]
ML += [salu('s_add_u32', sT1, sT1, 4096), salu('s_add_u32', sIT, sIT, 1), salu('s_cmp_lt_u32', None, sIT, 64),
       branch('s_cbranch_scc1', 'L_maxloop')]
blk['max_loop'] = ML
blk['max_post'] = stream_head() + [branch('s_branch', 'L_stream')]
blk['exit'] = [label('L_exit'), raw("  s_endpgm")]

def head_trace(first, has_next):
    t = flat_dyn(blk['fuse'], first)
    for p in range(NIT):
        qf = (p - 12 // BT) if (has_next and p >= 12 // BT) else None
        LASTPASS[0] = (p == NIT - 1)
        b = flat_dyn((blk['body_a'] if p else []) + blk['body_b'], qf)
        sh = (p * BT) % 4
        t += [Remap(i, sh) for i in b] if sh else b
    t += blk['bnd_chk'] + (blk['bnd_next'] if has_next else blk['drain'] + [i for e in EPIS for i in e.fin()] + blk['end'])
    return t
trace = blk['entry0'] + blk['entry1'] + blk['entry'] + blk['stream'] + head_trace(True, True) + head_trace(False, False)
for _ in range(2):
    trace += blk['max_pre'] + blk['max_loop'] * 3 + blk['max_post'] + blk['stream'] + head_trace(True, False)
trace += blk['exit']
for b in blk: blk[b] = flat_static(blk[b])

resolve_waits(trace)
for it in range(10):
    n = check_trace(trace, fix=True, verbose=False)
    if n == 0: break
    if n >= 1000: sys.exit("pending-load errors")
assert check_trace(trace, fix=False) == 0
assert check_lds_protocol(trace)

order = ['entry0', 'entry1', 'entry', 'stream', 'fuse', 'body_a', 'body_b', 'bnd_chk', 'bnd_next', 'drain', 'end',
         'max_pre', 'max_loop', 'max_post', 'exit']
NAME = "standalone__mha_softmax__near_ridge_kernel"
out = f"""; MHA forward (B16 H32 Sq384 Sk1024 D128, bf16) - generated by gen/gen.py (hand-written generator)
; @launch grid=({NWG},1,1) block=(256,1,1) lds={LDS_TOTAL}
.amdgcn_target "amdgcn-amd-amdhsa--gfx950"
.text
.globl {NAME}
.p2align 8
.type {NAME},@function
{NAME}:
"""
for b in order:
    out += f"; ---- {b}\n"
    for i in blk[b]: out += i.render()
out += f""".section .rodata,"a"
.p2align 6
.amdhsa_kernel {NAME}
  .amdhsa_next_free_vgpr 512
  .amdhsa_next_free_sgpr 80
  .amdhsa_accum_offset 256
  .amdhsa_group_segment_fixed_size 0
  .amdhsa_kernarg_size 48
  .amdhsa_user_sgpr_count 2
  .amdhsa_user_sgpr_kernarg_segment_ptr 1
  .amdhsa_system_sgpr_workgroup_id_x 1
.end_amdhsa_kernel
"""
open(sys.argv[1], 'w').write(out)
nn = sum(i.pre_nop for b in ('body_a', 'body_b') for i in blk[b])
print("emitted", sys.argv[1], "insts:", {b: len(blk[b]) for b in order}, "body nops:", nn)
```

```python
import sys, math, struct
from asmlib import *

def f2u(f): return struct.unpack('<I', struct.pack('<f', f))[0]

class Cfg:
    dma_flags = " nt"
    q_flags = " nt"
    st_flags = " nt"
    dma_cost = 8
    thr = 2.0 ** 32
    stamps = 0
    otouch = 0
    nostore = 0
    rowsum = 'mfma'
    bt = 4
    stampdbg = -1
    sched = 2
    hv = 2
    hk = 4
    dgrp = 1
    dgap = 2
    exp64 = 0
    ones1 = 0
    cpf = 0
    q45late = 0
cfg = Cfg()
for a in sys.argv[2:]:
    k, v = a.split('=', 1)
    cur = getattr(cfg, k)
    setattr(cfg, k, type(cur)(v) if not isinstance(cur, str) else v.replace('_', ' '))

NWG = 256
QH = 98304
KH = 262144
Q_BYTES = 512 * QH
K_BYTES = 512 * KH
OOB = 0x10000000
LDS_RING = 131072
LDS_TOTAL = LDS_RING + 32768
SCALE = (128 ** -0.5) * math.log2(math.e)

vTID = V(0)
aK = [V(1 + j) for j in range(4)]
aV = [V(5 + d) for d in range(8)]
dK = [V(13 + i) for i in range(4)]
dV = [V(17 + i) for i in range(2)]
vQo, vOo = V(19), V(20)
vX = V(21)
RL = V(22, 2)
T4 = [V(24, 4), V(28, 4)]
Sb = [V(32, 8), V(40, 8)]
Pb = [V(48, 4), V(52, 4)]
NEGM = [V(56 + 4 * q, 4) for q in range(6)]
Qf = [[V(80 + (q * 4 + j) * 4, 4) for j in range(4)] for q in range(6)]
def Oblk(q, db):
    if q < 4: return A((q * 8 + db) * 4, 4)
    return V(176 + ((q - 4) * 8 + db) * 4, 4)
X8 = V(240, 8)
Y8 = V(248, 8)
KF = [[A(128 + (kb * 4 + j) * 4, 4) for j in range(4)] for kb in range(2)]
VF = [A(160 + db * 4, 4) for db in range(8)]
Lb = [A(192 + 4 * q, 4) for q in range(6)]
ONES = A(216, 4)
S0 = [Sb[0], Y8, Sb[1], Sb[0], Y8, Sb[1]]
QST = [[A(220 + (q * 4 + j) * 4, 4) for j in range(4)] for q in range(2)]
vQs = V(0)

srdQ, srdK, srdV, srdO = S(8, 4), S(12, 4), S(16, 4), S(20, 4)
sWG = S(2)
sW, sM0B, sHEAD, sNEXT, sDOFF, sNB, sPASS, sMODE, sFLAGS, sQO, sBIT, sTHR = [S(24 + i) for i in range(12)]
sARG = S(36, 8)
sC = S(44, 2)
sMASK, sFIRST, sT0, sT1, sIT, sOH, sQH, sQP = S(46), S(47), S(48), S(49), S(50), S(51), S(62), S(63)
M0 = 'm0'
sQO2, sM0Q, sBITN, M0S, sFIN, sMa, sMb, sQP1 = [S(64 + i) for i in range(8)]

def smov(d, x): return salu('s_mov_b32', d, x, scc_w=False)
srdW = S(56, 4); sST = S(52, 2); sSTO = S(54); sST2 = S(60, 2)
sSTI = S(55)
def stamp():
    if not cfg.stamps: return []
    t0, t1 = T4[0][0], T4[0][1]
    def acc_r(d, a): return Inst(f"v_accvgpr_read_b32 {d}, {a}", 'valu', regs_of(a), regs_of(d))
    def acc_w(a, d): return Inst(f"v_accvgpr_write_b32 {a}, {d}", 'valu', regs_of(d), regs_of(a))
    def wl(d, s): return Inst(f"v_writelane_b32 {d}, {s}, {sSTI}", 'valu', regs_of(d) + regs_of(s) + regs_of(sSTI), regs_of(d))
    return [raw(f"  s_memtime {sST}", wr=[sST]), raw(f"  s_memrealtime {sST2}", wr=[sST2]), acc_r(t0, A(252)), acc_r(t1, A(253)),
            raw("  s_waitcnt lgkmcnt(0)"), smov(M0S, M0), smov(M0, sSTI), nop(1),
            Inst(f"v_writelane_b32 {t0}, {sST[0]}, m0", 'valu', regs_of(t0), regs_of(t0)),
            Inst(f"v_writelane_b32 {t1}, {sST2[0]}, m0", 'valu', regs_of(t1), regs_of(t1)),
            smov(M0, M0S), acc_w(A(252), t0), acc_w(A(253), t1), salu('s_add_u32', sSTI, sSTI, 1)]
def stamp_dump():
    if not cfg.stamps: return []
    t = T4[0]
    st = Inst(f"buffer_store_dwordx2 {t[0:2]}, {t[2]}, {srdW}, {sSTO} offen", 'vmem_store', regs_of(t[0:3]) + regs_of(srdW) + regs_of(sSTO), [])
    st.sdata = regs_of(t[0:2])
    if cfg.stampdbg >= 0:
        st = Inst(f"buffer_store_dword {t[1]}, {t[2]}, {srdW}, {sSTO} offen", 'vmem_store', regs_of(t[0:3]) + regs_of(srdW) + regs_of(sSTO), [])
        st.sdata = regs_of(t[1])
        return [Inst(f"v_accvgpr_read_b32 {t[1]}, a253", 'valu', regs_of(A(253)), regs_of(t[1])),
                valu('v_mbcnt_lo_u32_b32', t[2], -1, 0), valu('v_mbcnt_hi_u32_b32', t[2], -1, t[2]), valu('v_lshlrev_b32', t[2], 2, t[2]), st]
    return [Inst(f"v_accvgpr_read_b32 {t[0]}, a252", 'valu', regs_of(A(252)), regs_of(t[0])),
            Inst(f"v_accvgpr_read_b32 {t[1]}, a253", 'valu', regs_of(A(253)), regs_of(t[1])),
            valu('v_mbcnt_lo_u32_b32', t[2], -1, 0), valu('v_mbcnt_hi_u32_b32', t[2], -1, t[2]), valu('v_lshlrev_b32', t[2], 3, t[2]), st]

def phase(pre, mf, fa, fb=(), fa_start=0):
    out = list(pre)
    fb = sorted(fb, key=lambda x: x[0])
    total = sum(i.cost for i in fa) + sum(i.cost for _, l in fb for i in l)
    ng = len(mf)
    budget = max(8, int(math.ceil(total / max(ng - fa_start, 1) / 4.0)) * 4)
    ia = 0
    fb = list(fb)
    for g, m in enumerate(mf):
        out.append(m)
        rem = budget
        while fb and fb[0][0] <= g:
            c = sum(i.cost for i in fb[0][1])
            if c <= rem or rem == budget:
                out += fb[0][1]; rem -= c; fb.pop(0)
            else: break
        while g >= fa_start and ia < len(fa) and fa[ia].cost <= rem:
            out.append(fa[ia]); rem -= fa[ia].cost; ia += 1
    for _, l in fb: out += l
    out += fa[ia:]
    return out

def phase2(pre, mf, exps, cvts, fb, hoist):
    out = list(pre)
    fb = sorted(fb, key=lambda x: x[0])
    exps = list(exps); cvts = list(cvts); hoist = list(hoist)
    done = {i: -1 for i in range(8)}
    for i, _ in exps: done.pop(i)
    ng = len(mf)
    for g, m in enumerate(mf):
        out.append(m)
        rem = 8
        while fb and fb[0][0] <= g:
            c = sum(i.cost for i in fb[0][1])
            if c <= rem or rem == 8:
                out += fb[0][1]; rem -= c; fb.pop(0)
            else: break
        def ready_cvt():
            for n, (i, c) in enumerate(cvts):
                if done.get(2 * i, g) < g and done.get(2 * i + 1, g) < g: return n
            return None
        while rem > 0:
            rc = ready_cvt()
            nready = sum(1 for (i, c) in cvts if done.get(2 * i, g) < g and done.get(2 * i + 1, g) < g)
            if rem == 8 and exps and not (nready >= 2 and len(exps) <= cfg_tail(g, ng, exps, cvts)):
                i, e = exps.pop(0); out.append(e); done[i] = g; rem -= 8
            elif rc is not None:
                out.append(cvts.pop(rc)[1]); rem -= 4
            elif rem == 8 and hoist and g >= (9 if hoist[0][0] < 4 else 12):
                out.append(hoist.pop(0)[1]); rem -= 8
            else: break
    for _, l in fb: out += l
    out += [e for _, e in exps] + [c for _, c in cvts] + [e for _, e in hoist]
    return out
def cfg_tail(g, ng, exps, cvts): return 4

def qk_mfmas(q, Sdst, cinit):
    L = []
    for kb in range(2):
        d = Sdst[4 * kb:4 * kb + 4]
        for j in range(4):
            L.append(mfma16(d, KF[kb][j], Qf[q][j], (cinit if j == 0 else d)))
    return L
def pv_mfmas(q, P, first=False):
    L = [mfma16(Oblk(q, db), VF[db], P, 0 if first else Oblk(q, db)) for db in range(8)]
    if cfg.rowsum == 'mf4':
        L.insert(4, mfma4(Lb[q], ONES[0:2], P[0:2], 0 if first else Lb[q]))
        L.append(mfma4(Lb[q], ONES[0:2], P[2:4], Lb[q]))
    elif cfg.rowsum == 'mfma' or first: L.append(mfma16(Lb[q], ONES, P, 0 if first else Lb[q]))
    return L
def sm_valu(Ssrc, P, lacc=None):
    e = [valu('v_exp_f32', Ssrc[i], Ssrc[i], trans=True) for i in range(8)]
    c = [valu('v_cvt_pk_bf16_f32', P[i], Ssrc[2 * i], Ssrc[2 * i + 1]) for i in range(4)]
    if lacc is not None:
        a = [valu('v_add_f32', lacc, lacc, Ssrc[i]) for i in range(8)]
        return [e[0], e[1], a[0], c[0], e[2], a[1], a[2], e[3], e[4], a[3], c[1], e[5], a[4], a[5], e[6], e[7], c[2], a[6], a[7], c[3]]
    return [e[0], e[1], e[2], c[0], e[3], e[4], c[1], e[5], e[6], c[2], e[7], c[3]]
def k_read(kb, j, slot, sub):
    return ds_read('ds_read_b128', KF[kb][j], aK[j], slot * 16384 + sub * 8192 + kb * 4096, tag=('t', slot, 'K'))
def v_reads(db, slot, sub):
    return [ds_read('ds_read_b64_tr_b16', VF[db][2 * h:2 * h + 2], aV[db], slot * 16384 + sub * 8192 + h * 4096, tag=('t', slot, 'V'))
            for h in range(2)]
def dma_piece(part, slot, idx):
    if part == 'K': d = dma(dK[idx], srdK, sDOFF, idx * 1024, ('t', slot, 'K'), cfg.dma_flags, cfg.dma_cost)
    else: d = dma(dV[idx & 1], srdV, sDOFF, idx * 1024, ('t', slot, 'V'), cfg.dma_flags, cfg.dma_cost)
    d.piece = idx
    return d
def set_m0(part, slot):
    return salu('s_add_u32', M0, sM0B, (65536 if part == 'V' else 0) + slot * 16384)
ALLK = [KF[kb][j] for kb in range(2) for j in range(4)]

def q_loads():
    L = [salu('s_mul_i32', sQO, sHEADQ, QH, scc_w=False)]
    for q in range(6):
        for j in range(4):
            L.append(buf_load('buffer_load_dwordx4', Qf[q][j], vQo, srdQ, sQO, j * 64, tag=('q', q), flags=cfg.q_flags))
        if q < 5: L.append(salu('s_add_u32', sQO, sQO, 4096))
    return L
def q_scale():
    L = []
    for q in range(6):
        L.append(waitv(('q', q)))
        for j in range(4):
            x = Qf[q][j]; t = X8 if (j & 1) == 0 else Y8
            for i in range(4):
                L.append(valu('v_lshlrev_b32', t[2 * i], 16, x[i]))
                L.append(valu('v_and_b32', t[2 * i + 1], sMASK, x[i]))
            for i in range(4):
                L.append(valu('v_pk_mul_f32', t[2 * i:2 * i + 2], t[2 * i:2 * i + 2], sC))
            for i in range(4):
                L.append(valu('v_cvt_pk_bf16_f32', x[i], t[2 * i], t[2 * i + 1]))
    return L
def minit_reset():
    return [valu('v_mov_b32', NEGM[q][3], '0xff800000') for q in range(6)]

def max_valu(q):
    s = S0[q]; m = NEGM[q][3]; t = RL[q & 1]
    L = [valu('v_max3_f32', m, s[0], s[1], m), valu('v_max3_f32', m, s[2], s[3], m),
         valu('v_max3_f32', m, s[4], s[5], m), valu('v_max3_f32', m, s[6], s[7], m),
         valu('v_mov_b32', t, m), permswap('v_permlane32_swap_b32', t, m), valu('v_max_f32', m, t, m),
         valu('v_mov_b32', t, m), permswap('v_permlane16_swap_b32', t, m), valu('v_max_f32', t, t, m)]
    L += [valu('v_sub_f32', s[i], s[i], t) for i in range(8)]
    L += [valu('v_sub_f32', NEGM[q][i], 0, t) for i in range(4)]
    return L

blk = {}
E = []
E += [salu('s_cmp_ge_u32', None, sWG, NWG), branch('s_cbranch_scc1', 'L_exit')]
E += [raw(f"  s_load_dwordx8 {sARG}, s[0:1], 0", wr=[sARG])]
E += [valu('v_lshrrev_b32', vX, 6, vTID), valu('v_and_b32', vTID, 63, vTID)]
E += [Inst(f"v_readfirstlane_b32 {sW}, {vX}", 'valu', regs_of(vX), regs_of(sW))]
tA, tB, tC, tD = X8[0], X8[1], X8[2], X8[3]
tQ, tG = X8[4], X8[5]
E += [valu('v_and_b32', tQ, 15, vTID), valu('v_lshrrev_b32', tG, 4, vTID)]
E += [smov(sHEAD, sWG), valu('v_lshlrev_b32', tA, 8, tQ), valu('v_xor_b32', tD, tG, tQ)]
E += [salu('s_mul_i32', sT0, sW, 96 * 256, scc_w=False), salu('s_lshl_b32', sM0B, sW, 12)]
E += [valu('v_add_u32', tA, sT0, tA), valu('v_lshl_add_u32', vQo, tG, 4, tA)]
E += [valu('v_lshlrev_b32', tB, 8, tG), valu('v_add_u32', tB, sM0B, tB)]
for i in range(4):
    E += [valu('v_xor_b32', tC, 4 * i, tD), valu('v_lshl_add_u32', dK[i], tC, 4, tB)]
def mk_srd(srd, k, nb): return [smov(srd[0], sARG[k]), salu('s_and_b32', srd[1], sARG[k + 1], '0xffff'), smov(srd[2], nb), smov(srd[3], '0x20000')]
E += [smov(srdQ[2], Q_BYTES), smov(srdQ[3], '0x20000'), smov(srdK[2], K_BYTES), smov(srdK[3], '0x20000')]
E += [raw("  s_waitcnt lgkmcnt(0)")]
E += [smov(srdQ[0], sARG[0]), salu('s_and_b32', srdQ[1], sARG[1], '0xffff'), smov(srdK[0], sARG[2]), salu('s_and_b32', srdK[1], sARG[3], '0xffff')]
blk['entry0'] = E
E = []
sPC = S(72, 2)
def cpf_code(dst):
    L = [salu('s_lshr_b32', sT1, sWG, 3), salu('s_lshl_b32', sT1, sT1, 2), salu('s_add_u32', sT1, sT1, sW)]
    if cfg.cpf == 1: L += [salu('s_and_b32', sT1, sT1, 31)]
    else: L += [salu('s_cmp_ge_u32', None, sT1, 23), branch('s_cbranch_scc1', 'L_nocpf')]
    L += [salu('s_lshl_b32', sT1, sT1, 10), valu('v_mbcnt_lo_u32_b32', dst[0], -1, 0), valu('v_mbcnt_hi_u32_b32', dst[0], -1, dst[0]),
          valu('v_lshlrev_b32', dst[0], 4, dst[0]), valu('v_add_u32', dst[0], sT1, dst[0]),
          raw(f"  v_min_u32 {dst[0]}, L_max_pre - L_pc - 16, {dst[0]}", kind='valu', rd=[dst[0]], wr=[dst[0]]),
          Inst(f"global_load_dwordx4 {dst[0:4]}, {dst[0]}, {sPC}", 'vmem_load', regs_of(dst[0]) + regs_of(sPC), regs_of(dst[0:4]), tag=('cpf',))]
    if cfg.cpf != 1:
        L[-1].optional = True
        L += [label('L_nocpf')]
    return L
if cfg.cpf:
    E += [raw(f"  s_getpc_b64 {sPC}", wr=[sPC]), label('L_pc')]
    if cfg.cpf <= 2: E += cpf_code(Y8[4:8])
E += mk_srd(srdV, 4, K_BYTES) + mk_srd(srdO, 6, Q_BYTES)
E += [valu('v_lshlrev_b32', tA, 1, tG), valu('v_xor_b32', tA, tA, tQ)]
for i in range(2):
    E += [valu('v_xor_b32', tC, 8 * i, tA), valu('v_lshl_add_u32', dV[i], tC, 4, tB)]
E += [valu('v_lshlrev_b32', tB, 8, tQ)]
for j in range(4):
    E += [valu('v_xor_b32', tC, 4 * j, tD), valu('v_lshl_add_u32', aK[j], tC, 4, tB)]
E += [valu('v_lshrrev_b32', tA, 2, vTID), valu('v_and_b32', tC, 7, tA), valu('v_lshlrev_b32', tA, 8, tA),
      valu('v_and_b32', tB, 3, vTID), valu('v_lshl_add_u32', tA, tB, 3, tA), valu('v_add_u32', tA, 65536, tA)]
for db in range(8):
    E += [valu('v_xor_b32', tB, db, tC), valu('v_lshl_add_u32', aV[db], tB, 5, tA)]
E += [valu('v_lshlrev_b32', vOo, 4, vTID), valu('v_add_u32', vOo, sT0, vOo)]
E += [smov(sMa, sM0B), salu('s_add_u32', sMb, sM0B, 32768)]
E += [salu('s_lshl_b32', sM0Q, sW, 13), salu('s_add_u32', sM0Q, sM0Q, LDS_RING),
      valu('v_lshlrev_b32', vQs, 4, vTID), valu('v_add_u32', vQs, sM0Q, vQs)]
E += [valu('v_lshrrev_b32', tA, 1, tG), valu('v_xor_b32', tA, tA, tQ), valu('v_lshlrev_b32', tA, 4, tA), valu('v_lshl_add_u32', tA, tQ, 8, tA),
      valu('v_and_b32', tB, 1, tG), valu('v_lshl_add_u32', tA, tB, 3, tA), valu('v_add_u32', tA, sM0Q, tA),
      Inst("v_accvgpr_write_b32 a254, " + str(tA), 'valu', regs_of(tA), regs_of(A(254))),
      valu('v_lshlrev_b32', tA, 4, tD), valu('v_lshl_add_u32', tA, tG, 8, tA), valu('v_add_u32', tA, sM0Q, tA),
      Inst("v_accvgpr_write_b32 a255, " + str(tA), 'valu', regs_of(tA), regs_of(A(255)))]
E += [valu('v_mov_b32', tA, '0x3f803f80')]
if cfg.ones1:
    E += [Inst(f"v_cmp_eq_u32 vcc, 0, {tQ}", 'valu', regs_of(tQ), [('x', 'vcc')]),
          Inst(f"v_cndmask_b32 {tA}, 0, {tA}, vcc", 'valu', regs_of(tA) + [('x', 'vcc')], regs_of(tA))]
E += [Inst(f"v_accvgpr_write_b32 {ONES[i]}, {tA}", 'valu', regs_of(tA), regs_of(ONES[i])) for i in range(4)]
E += [smov(sC[0], hex(f2u(SCALE))), smov(sC[1], hex(f2u(SCALE))), smov(sMASK, '0xffff0000'), smov(sTHR, hex(f2u(cfg.thr)))]
E += [salu('s_add_u32', sNEXT, sWG, NWG), smov(sMODE, 0), smov(sFLAGS, 0), smov(sBIT, 1), smov(sFIN, 0)]
E += minit_reset()
if cfg.stamps:
    E += [raw(f"  s_load_dwordx2 {srdW[0:2]}, s[0:1], {32 if cfg.stampdbg >= 0 else 40}", wr=[srdW[0:2]]), raw("  s_waitcnt lgkmcnt(0)"),
          salu('s_and_b32', srdW[1], srdW[1], '0xffff'), smov(srdW[2], 1 << 20), smov(srdW[3], '0x20000'),
          salu('s_lshl_b32', sSTO, sWG, 2), salu('s_add_u32', sSTO, sSTO, sW)]
    if cfg.stampdbg >= 0:
        E += [salu('s_cmp_eq_u32', None, sSTO, cfg.stampdbg), salu('s_cselect_b32', srdW[2], 64, 0, scc_w=False, scc_r=True), smov(sSTO, 0)]
    else: E += [salu('s_lshl_b32', sSTO, sSTO, 9)]
    E += [smov(sSTI, 0), smov(M0, 0), Inst('v_accvgpr_write_b32 a252, 0', 'valu', [], regs_of(A(252))), Inst('v_accvgpr_write_b32 a253, 0', 'valu', [], regs_of(A(253)))]
    E += stamp()
blk['entry'] = E

def q_place(q, early=False):
    if q < 2: return (sM0Q, q * 4096) if early else (sM0B, 16384 * (q + 1))
    if q < 4: return (sM0Q, (q - 2) * 4096)
    return (sM0B, 65536 + 49152) if q == 4 else (sM0B, 49152)
def q_load_q(q, restore_m0=None, early=False):
    b, c = q_place(q, early)
    L = [salu('s_add_u32', sQO, sQH, q * 4096), salu('s_add_u32', M0, b, c)]
    for i in range(4):
        d = dma(dK[i], srdQ, sQO, i * 1024, ('q', q), cfg.q_flags, cfg.dma_cost); d.piece = i; L.append(d)
    if restore_m0: L.append(restore_m0)
    return L
def q_lds_read(dsts, q, early=False):
    b, c = q_place(q, early)
    L = [salu('s_add_u32', sT0, b, c)] + [valu('v_add_u32', X8[j], sT0, aK[j]) for j in range(4)]
    for n, d in enumerate(dsts):
        L += [ds_read('ds_read_b128', d[j], X8[j], n * 4096) for j in range(4)]
    return L
def q_unstage_acc(q):
    return [Inst(f"v_accvgpr_read_b32 {Qf[q][j][i]}, {QST[q][j][i]}", 'valu', regs_of(QST[q][j][i]), regs_of(Qf[q][j][i]))
            for j in range(4) for i in range(4)]
def q_scale_q(q):
    L = []
    for j in range(4):
        x = Qf[q][j]; t = X8
        for i in range(4):
            L.append(valu('v_lshlrev_b32', t[2 * i], 16, x[i]))
            L.append(valu('v_and_b32', t[2 * i + 1], sMASK, x[i]))
        for i in range(4):
            L.append(valu('v_pk_mul_f32', t[2 * i:2 * i + 2], t[2 * i:2 * i + 2], sC))
        for i in range(4):
            L.append(valu('v_cvt_pk_bf16_f32', x[i], t[2 * i], t[2 * i + 1]))
    return L
_ti = [0]
def epi_q(q, tsets):
    D = [salu('s_add_u32', sQO2, sOH, q * 4096)]
    D += [Inst(f"v_accvgpr_read_b32 {RL[1]}, {Lb[q][0]}", 'valu', regs_of(Lb[q][0]), regs_of(RL[1]))]
    if cfg.rowsum == 'mf4':
        D += [valu('v_mov_b32', RL[0], RL[1]), permswap('v_permlane32_swap_b32', RL[0], RL[1]), valu('v_add_f32', RL[1], RL[0], RL[1]),
              valu('v_mov_b32', RL[0], RL[1]), permswap('v_permlane16_swap_b32', RL[0], RL[1]), valu('v_add_f32', RL[1], RL[0], RL[1])]
    D += [valu('v_rcp_f32', RL[0], RL[1], trans=True)]
    if q == 0: D += [valu('v_mov_b32', vX, RL[1])]
    else: D += [valu('v_add_f32', vX, vX, RL[1])]
    for dp in range(4):
        if q < 4:
            t = tsets[dp % len(tsets)]
            for bi in range(2):
                o = Oblk(q, 2 * dp + bi)
                D += [Inst(f"v_accvgpr_read_b32 {t[4*bi+i]}, {o[i]}", 'valu', regs_of(o[i]), regs_of(t[4 * bi + i])) for i in range(4)]
        else:
            o = Oblk(q, 2 * dp); t = V(o.n, 8)
        for i in range(4):
            D += [valu('v_pk_mul_f32', t[2 * i:2 * i + 2], t[2 * i:2 * i + 2], RL, extra="op_sel_hi:[1,0]")]
        T = T4[_ti[0] % 2]; _ti[0] += 1
        for i in range(4): D += [valu('v_cvt_pk_bf16_f32', T[i], t[2 * i], t[2 * i + 1])]
        D += [permswap('v_permlane16_swap_b32', T[0], T[2]), permswap('v_permlane16_swap_b32', T[1], T[3])]
        D += [buf_store('buffer_store_dwordx4', T, vOo, srdO, sQO2, dp * 64, flags=cfg.st_flags)]
    return D
aWA, aRA = A(254), A(255)
def acc_read(d, a): return Inst(f"v_accvgpr_read_b32 {d}, {a}", 'valu', regs_of(a), regs_of(d))
def oreg(q, t):
    return Oblk(q, t)
def epi_a(q):
    half = (q & 1) * 4096
    D = [acc_read(RL[1], Lb[q][0])]
    if cfg.ones1:
        D += [valu('v_mov_b32', RL[0], RL[1]), permswap('v_permlane16_swap_b32', RL[0], RL[1]), valu('v_add_f32', RL[1], RL[0], RL[1]),
              valu('v_mov_b32', RL[0], RL[1]), permswap('v_permlane32_swap_b32', RL[0], RL[1]), valu('v_add_f32', RL[1], RL[0], RL[1])]
    D += [valu('v_rcp_f32', RL[0], RL[1], trans=True)]
    D += [valu('v_mov_b32', vX, RL[1]) if q == 0 else valu('v_add_f32', vX, vX, RL[1])]
    D += [acc_read(RL[1], aWA)]
    for dp in range(4):
        if q < 4:
            t = X8
            for bi in range(2):
                o = Oblk(q, 2 * dp + bi)
                D += [acc_read(t[4 * bi + i], o[i]) for i in range(4)]
        else:
            o = Oblk(q, 2 * dp); t = V(o.n, 8)
        mul = [Inst(f"v_pk_mul_f32 {t[2*i:2*i+2]}, {t[2*i:2*i+2]}, {RL} op_sel_hi:[1,0]", 'valu',
                    regs_of(t[2 * i:2 * i + 2]) + regs_of(RL[0]), regs_of(t[2 * i:2 * i + 2])) for i in range(4)]
        D += mul
        T = T4[dp % 2]
        D += [valu('v_cvt_pk_bf16_f32', T[i], t[2 * i], t[2 * i + 1]) for i in range(4)]
        for bi in range(2):
            db = 2 * dp + bi
            D += [ds_write('ds_write_b64', RL[1], T[2 * bi:2 * bi + 2], half)]
            if db < 7: D += [valu('v_xor_b32', RL[1], (db ^ (db + 1)) << 5, RL[1])]
    D += [acc_read(RL[1], aRA)]
    for t in range(4):
        D += [ds_read('ds_read_b128', oreg(q, t), RL[1], half + t * 1024)]
        if t < 3: D += [valu('v_xor_b32', RL[1], (t ^ (t + 1)) << 6, RL[1])]
    return D
def epi_b(q):
    D = [salu('s_add_u32', sQO2, sOH, q * 4096), waitl(*[oreg(q, t) for t in range(4)])]
    D += [buf_store('buffer_store_dwordx4', oreg(q, t), vOo, srdO, sQO2, t * 1024, flags=cfg.st_flags) for t in range(4)]
    return D
def fail_check():
    return [Inst(f"v_cmp_nge_f32 vcc, {sTHR}, {vX}", 'valu', regs_of(sTHR) + regs_of(vX), [('x', 'vcc')]),
            salu('s_cmp_lg_u64', None, 'vcc', 0), salu('s_cselect_b32', sT0, sBIT, 0, scc_w=False, scc_r=True),
            salu('s_or_b32', sFLAGS, sFLAGS, sT0)]

def is_pk(i): return 'v_pk_' in i.text
def vphase(mf, seq, start=0):
    n = len(seq); out = []
    if not mf: return list(seq)
    tot = sum(i.cost for i in seq if isinstance(i, Inst))
    step = (tot * (1.0 - start)) / len(mf)
    acc = 0.0; nxt = tot * start; k = 0
    for idx, i in enumerate(seq):
        if k < len(mf) and acc >= nxt:
            look = [x for x in seq[idx:idx + 3] if isinstance(x, Inst)]
            if not any(is_pk(x) for x in look):
                m = mf[k]; out += (m if isinstance(m, list) else [m]); k += 1; nxt += step
        out.append(i)
        if isinstance(i, Inst): acc += i.cost
    for m in mf[k:]: out += (m if isinstance(m, list) else [m])
    return out

class Cond:
    n = 0
    def __init__(self, first, body):
        self.first, self.body = first, body
        self.lab = f"L_c{Cond.n}"; Cond.n += 1
        self.head = [salu('s_cmp_eq_u32', None, sFIRST, 0), branch('s_cbranch_scc1' if first else 's_cbranch_scc0', self.lab)]
        self.tail = [label(self.lab)]
    def static(self): return self.head + self.body + self.tail
    def dyn(self, first): return self.head + (self.body if first == self.first else []) + self.tail
def flat_static(seq): return [y for x in seq for y in (x.static() if hasattr(x, 'static') else [x])]
def flat_dyn(seq, flag):
    out = []
    for x in seq:
        if hasattr(x, 'dyn'): out += x.dyn(flag)
        elif flag is True and getattr(x, 'nf_only', False): out.append(Ghost(x))
        else: out.append(x)
    return out
def waitv_nf(*tags):
    w = waitv(*tags); w.nf_only = True; return w

def tile_dma(part, t): return [set_m0(part, t)] + [dma_piece(part, t, i) for i in range(4)]
nxt_tile = lambda: [salu('s_add_u32', sDOFF, sDOFF, 16384)]

def stream_head():
    return [salu('s_mul_i32', sQH, sHEAD, QH, scc_w=False), salu('s_mul_i32', sT1, sW, 20480, scc_w=False), salu('s_add_u32', sQH, sQH, sT1),
            salu('s_mul_i32', sDOFF, sHEAD, KH, scc_w=False)] + q_load_q(0) + tile_dma('K', 0) + q_load_q(1)
blk['entry1'] = stream_head()
B = [label('L_stream')]
B += [salu('s_mul_i32', sNB, sNEXT, KH, scc_w=False), salu('s_cmp_lt_u32', None, sNEXT, 512),
      salu('s_cselect_b32', sNB, sNB, OOB, scc_w=False, scc_r=True),
      salu('s_cselect_b32', sQP, 12 // cfg.bt, 99, scc_w=False, scc_r=True), salu('s_add_u32', sQP1, sQP, 1),
      smov(sFIRST, 1), smov(sOH, OOB), smov(sBITN, sBIT), smov(sBIT, 0)]
blk['stream'] = B

zero_init = [valu('v_mov_b32', Oblk(5, db)[i], 0) for db in range(8) for i in range(4)]
zero_init += [Inst(f"v_accvgpr_write_b32 {Lb[5][i]}, 0", 'valu', [], regs_of(Lb[5][i])) for i in range(4)]
FU = [label('L_fuse'), smov(sPASS, 0)] + stamp()
def st2(): return stamp() if cfg.stamps >= 2 else []
GR = [('q', 0), ('t', 0, 'K'), ('q', 1), ('q', 2), ('q', 3), ('t', 0, 'V'), ('q', 4), ('q', 5),
      ('t', 1, 'K'), ('t', 1, 'V'), ('t', 2, 'K'), ('t', 2, 'V')]
def issue(k):
    t = GR[k]
    if t[0] == 'q': return q_load_q(t[1])
    return tile_dma(t[2], t[1]) + (nxt_tile() if t[2] == 'V' else [])
def top(k, extra=()): return [Cond(True, ([waitv(GR[k - 3])] if k <= 10 else []) + issue(k) + list(extra))]
def qscale(q): return [waitl(*Qf[q])] + q_scale_q(q)
class EpiBlk:
    def __init__(self, n, body, last=False):
        self.head = [salu('s_cmp_eq_u32', None, sFIRST, 0), branch('s_cbranch_scc0', f'L_epx{n}')]
        self.body = [label(f'L_epi{n}')] + body
        self.chain = [salu('s_cmp_lg_u32', None, sFIN, 0), branch('s_cbranch_scc1', 'L_end' if last else f'L_epi{n+1}')]
        self.tail = [label(f'L_epx{n}')]
    def static(self): return self.head + self.body + self.chain + self.tail
    def dyn(self, first): return self.head + ([] if first else self.body + self.chain) + self.tail
    def fin(self): return self.body + self.chain
EPIS = [EpiBlk(0, epi_a(0) + epi_a(1) + epi_b(0)), EpiBlk(1, epi_a(2) + epi_b(1)), EpiBlk(2, epi_a(3) + epi_b(2)),
        EpiBlk(3, epi_a(4) + epi_b(3) + epi_a(5) + fail_check() + epi_b(4)), EpiBlk(4, epi_b(5), last=True)]
QK0 = lambda q: qk_mfmas(q, S0[q], 0)
PV0 = lambda q: pv_mfmas(q, Pb[q % 2], first=True)
SM0 = lambda q: sm_valu(S0[q], Pb[q % 2])
pv = pv_mfmas(5, Pb[1])
def pv_db(m):
    for db in range(8):
        if VF[db].regs()[0] in m.ab: return db
    return None
mf0 = [([m] + v_reads(pv_db(m), 0, 0)) if pv_db(m) is not None else [m] for m in pv]
for m in mf0:
    for r in m[1:]: r.tag = ('tx', 0, 'V')
def qs01(q): return [Cond(False, q_unstage_acc(q)), Cond(True, [waitl(*Qf[q])])] + q_scale_q(q)
FU += vphase(mf0, top(3, q_lds_read([Qf[0]], 0)) + qs01(0)
             + top(4, [barrier()] + [k_read(kb, j, 0, 0) for kb in range(2) for j in range(4)])
             + top(5, q_lds_read([Qf[1]], 1)) + qs01(1)) + st2()
FU += [waitl(*ALLK)]
FU += vphase(QK0(0) + QK0(1), top(6) + top(7) + [waitv_nf(('q', 3))] + q_lds_read([Qf[2], Qf[3]], 2) + qscale(2)
             + top(8, [barrier()] + [r for db in range(8) for r in v_reads(db, 0, 0)]) + qscale(3)) + st2()
FU += vphase(QK0(2), max_valu(0) + SM0(0) + max_valu(1) + SM0(1)) + st2()
FU += [EPIS[0]] + st2()
FU += [waitl(*VF)]
FU += vphase(QK0(3) + PV0(0), top(9) + [waitv_nf(('q', 4))] + q_lds_read([Qf[4]], 4) + max_valu(2) + qscale(4)) + [EPIS[1]] + st2()
FU += vphase(QK0(4) + PV0(1), top(10) + [waitv_nf(('q', 5))] + q_lds_read([Qf[5]], 5) + SM0(2) + qscale(5) + max_valu(3)) + [EPIS[2]] + st2()
qk5 = QK0(5); qk5 = [[qk5[kb * 4 + j], k_read(kb, j, 0, 1)] for kb in range(2) for j in range(4)]
FU += vphase(qk5 + PV0(2), SM0(3) + max_valu(4) + top(11, cpf_code(T4[1]) if cfg.cpf == 3 else [])) + [EPIS[3]] + st2()
FU += vphase(PV0(3), SM0(4) + max_valu(5)) + [EPIS[4]] + st2()
FU += [waitl(*ALLK)]
FU += vphase(qk_mfmas(0, Sb[0], NEGM[0]) + PV0(4),
             [set_m0('K', 3), dma_piece('K', 3, 0)] + SM0(5) + [dma_piece('K', 3, 1)] + zero_init[:12] + [dma_piece('K', 3, 2)] + zero_init[12:24]
             + [dma_piece('K', 3, 3)] + zero_init[24:] + [set_m0('V', 3), dma_piece('V', 3, 0)])
if cfg.sched == 2: FU += [valu('v_exp_f32', Sb[0][i], Sb[0][i], trans=True) for i in range(cfg.hv)]
FU += [smov(sFIRST, 0), smov(sBIT, sBITN), salu('s_mul_i32', sQH, sNEXT, QH, scc_w=False), salu('s_mul_i32', sT1, sW, 20480, scc_w=False), salu('s_add_u32', sQH, sQH, sT1)] + stamp() + [branch('s_branch', 'L_body1')]
blk['fuse'] = FU

class CondQ:
    n = 0
    def __init__(self, body, dp):
        self.body = body; self.lab = f"L_q{CondQ.n}"; CondQ.n += 1; self.dp = dp
        self.head = [salu('s_cmp_eq_u32', None, sPASS, sQP if dp == 0 else sQP1), branch('s_cbranch_scc0', self.lab)]
        self.tail = [label(self.lab)]
        self.cost = 8
    def static(self): return self.head + self.body + self.tail
    def dyn(self, flag): return self.head + (self.body if flag == self.dp else []) + self.tail

class CondL:
    def __init__(self, body):
        self.body = body; self.lab = "L_nl"
        self.head = [salu('s_cmp_eq_u32', None, sPASS, 3), branch('s_cbranch_scc1', self.lab)]
        self.tail = [label(self.lab)]
        self.cost = 16
    def static(self): return self.head + self.body + self.tail
    def dyn(self, flag): return self.head + ([] if LASTPASS[0] else self.body) + self.tail
LASTPASS = [False]
BT = cfg.bt
NIT = 16 // BT
def set_m0r(part, r):
    if BT == 4: return set_m0(part, r)
    return salu('s_add_u32', M0, sMa if r < 2 else sMb, (65536 if part == 'V' else 0) + (r & 1) * 16384)
def k_read_r(kb, j, r, sub):
    d = k_read(kb, j, r % BT if BT == 2 else r, sub); d.tag = ('t', r, 'K'); return d

def HO(lp): return {0: cfg.hv, 6: cfg.hv, 4: cfg.hk, 10: cfg.hk}.get(lp, 0)
_smi = {}
def sm_items(k, lp):
    if (k, lp) not in _smi:
        q = lp % 6; Ssrc, P = Sb[q % 2], Pb[q % 2]
        _smi[(k, lp)] = ([(i, valu('v_exp_f32_e64' if cfg.exp64 else 'v_exp_f32', Ssrc[i], Ssrc[i], trans=True)) for i in range(8)],
                         [(i, valu('v_cvt_pk_bf16_f32', P[i], Ssrc[2 * i], Ssrc[2 * i + 1])) for i in range(4)])
    return _smi[(k, lp)]
def body_phase(k, lp):
    sub, q = divmod(lp, 6)
    qn = (q + 1) % 6; qp = (q - 1) % 6
    pre = []; fb = []
    mf = qk_mfmas(qn, Sb[(q + 1) % 2], NEGM[qn]) + pv_mfmas(qp, Pb[(q - 1) % 2])
    fa = sm_valu(Sb[q % 2], Pb[q % 2], X8[q] if cfg.rowsum == 'valu' else None)
    if q == 4:
        slot, s2 = (k, 1) if sub == 0 else ((k + 1) % 4, 0)
        if sub == 1: pre += [waitv(('t', slot, 'V')), barrier()]
        for kb in range(2):
            for j in range(4): fb.append((kb * 4 + j, [k_read_r(kb, j, slot, s2)]))
    if q == 5: pre += [waitl(*ALLK)]
    if q == 0:
        for gi, m in enumerate(mf):
            if gi >= 8 and pv_db(m) is not None: fb.append((gi, v_reads(pv_db(m), k, sub)))
    if q == 1: fb.append((7, [waitl(*VF)]))
    x3 = (k + 3) % 4
    G = cfg.dgap
    if cfg.dgrp == 1:
        if lp in (1, 2, 3): fb.append((G, [dma_piece('K', x3, lp)]))
        if lp == 5: fb.append((G - 1, [set_m0r('V', x3)])); fb.append((G, [dma_piece('V', x3, 0)]))
        if lp in (7, 8, 9): fb.append((G, [dma_piece('V', x3, lp - 6)]))
    elif cfg.dgrp == 2:
        if lp == 2: fb.append((G, [dma_piece('K', x3, 1), dma_piece('K', x3, 2), dma_piece('K', x3, 3)]))
        if lp == 5: fb.append((G - 1, [set_m0r('V', x3)])); fb.append((G, [dma_piece('V', x3, 0)]))
        if lp == 8: fb.append((G, [dma_piece('V', x3, 1), dma_piece('V', x3, 2), dma_piece('V', x3, 3)]))
    assert BT == 4
    cur_m0 = set_m0r('K', x3) if lp < 5 else set_m0r('V', x3)
    if (k, lp) == (0, 8): fb.append((12, [CondQ(q_load_q(0, cur_m0, early=True), 0)]))
    if (k, lp) == (1, 2): fb.append((12, [CondQ(q_load_q(1, cur_m0, early=True), 0)]))
    if (k, lp) == (1, 9): fb.append((12, [CondQ([waitv(('q', 1))] + q_lds_read([QST[0], QST[1]], 0, early=True), 0)]))
    if (k, lp) == (2, 2): fb.append((12, [CondQ([waitl(*QST[0], *QST[1])] + q_load_q(2, cur_m0), 0)]))
    if (k, lp) == (2, 8): fb.append((12, [CondQ(q_load_q(3, cur_m0), 0)]))
    if (k, lp) == (3, 10): fb.append((12, [CondQ(q_load_q(4), 0)]))
    if BT == 2 and k == 1:
        if lp == 7:
            for j in range(4): fb.append((11 + j, [valu('v_xor_b32', aK[j], 32768, aK[j])]))
        if lp in (8, 9):
            for d in range(4): fb.append((9 + 2 * d if lp == 9 else 9 + d // 2 + 6 * (d // 2), [valu('v_xor_b32', aV[4 * (lp - 8) + d], 32768, aV[4 * (lp - 8) + d])]))
    if lp == 11:
        upd = [salu('s_add_u32', sDOFF, sDOFF, 16384)]
        if k == 0:
            upd += [salu('s_cmp_eq_u32', None, sPASS, 12 // BT), salu('s_cselect_b32', sDOFF, sNB, sDOFF, scc_w=False, scc_r=True)]
        fb.append((0, upd[:2]))
        if len(upd) > 2: fb.append((1, upd[2:]))
        if k == 3:
            fb.append((2, [CondL([set_m0r('K', k), dma_piece('K', k, 0)])]))
            fb.append((12, [CondQ(q_load_q(5), 0)]))
        else: fb.append((max(G - 1, 1), [set_m0r('K', k)])); fb.append((max(G, 2), [dma_piece('K', k, 0)]))
        if BT == 2 and k == 1:
            fb.append((13, [salu('s_xor_b32', sMa, sMa, 32768), salu('s_xor_b32', sMb, sMb, 32768)]))
    if cfg.sched == 1: return phase(pre, mf, fa, fb)
    ex, cv = sm_items(k, lp)
    nk, nlp = (k, lp + 1) if lp < 11 else ((k + 1) % BT, 0)
    return phase2(pre, mf, ex[HO(lp):], cv, fb, sm_items(nk, nlp)[0][:HO(nlp)])

BA = [raw(".p2align 6"), label('L_body0')]
for lp in range(6): BA += body_phase(0, lp)
blk['body_a'] = BA
BB = [label('L_body1')]
for lp in range(6, 12): BB += body_phase(0, lp)
for k in range(1, BT):
    for lp in range(12): BB += body_phase(k, lp)
BB += stamp() + [salu('s_add_u32', sPASS, sPASS, 1), salu('s_cmp_lt_u32', None, sPASS, NIT), branch('s_cbranch_scc1', 'L_body0')]
blk['body_b'] = BB

D1 = [salu('s_mul_i32', sOH, sHEAD, QH, scc_w=False) if not cfg.nostore else smov(sOH, OOB), salu('s_cmp_ge_u32', None, sNEXT, 512), branch('s_cbranch_scc1', 'L_drain')]
blk['bnd_chk'] = D1
N = [smov(sHEAD, sNEXT), smov(sNEXT, '0xffff'), smov(sNB, OOB), smov(sBITN, 2), smov(sQP, 99), smov(sQP1, 99)] + minit_reset() + [branch('s_branch', 'L_fuse')]
blk['bnd_next'] = N
D = [label('L_drain')] + pv_mfmas(5, Pb[1]) + [smov(sFIN, 1), branch('s_branch', 'L_epi0')]
blk['drain'] = D

F = [label('L_end')] + stamp() + [smov(sFIN, 0)]
F += [valu('v_mov_b32', tA, sFLAGS), valu('v_mov_b32', tB, sM0Q), valu('v_mov_b32', tC, LDS_RING),
      ds_write('ds_write_b32', tB, tA, 0), raw("  s_waitcnt lgkmcnt(0)"), barrier()] + [
      ds_read('ds_read_b32', Y8[i], tC, i * 8192) for i in range(4)] + [raw("  s_waitcnt lgkmcnt(0)"),
      valu('v_or_b32', tA, Y8[0], Y8[1]), valu('v_or3_b32', tA, tA, Y8[2], Y8[3]),
      Inst(f"v_readfirstlane_b32 {sFLAGS}, {tA}", 'valu', regs_of(tA), regs_of(sFLAGS)),
      ] + stamp() + stamp_dump() + [salu('s_cmp_eq_u32', None, sFLAGS, 0), branch('s_cbranch_scc1', 'L_exit')]
blk['end'] = F
M = [label('L_max_pre'), raw('  s_waitcnt vmcnt(0)'), barrier()]
M += [salu('s_and_b32', sT0, sFLAGS, 1), salu('s_add_u32', sT1, sWG, NWG), salu('s_cmp_lg_u32', None, sT0, 0),
      salu('s_cselect_b32', sHEAD, sWG, sT1, scc_w=False, scc_r=True),
      salu('s_cselect_b32', sT0, 1, 2, scc_w=False, scc_r=True), salu('s_andn2_b32', sFLAGS, sFLAGS, sT0),
      smov(sMODE, 1), smov(sBIT, 0), smov(sNEXT, '0xffff')]
M += [salu('s_mul_i32', sQO, sHEAD, QH, scc_w=False)]
for q in range(6):
    M += [buf_load('buffer_load_dwordx4', Qf[q][j], vQo, srdQ, sQO, j * 64, tag=('mq',)) for j in range(4)]
    M += [salu('s_add_u32', sQO, sQO, 4096)]
M += [waitv(('mq',))]
for q in range(6): M += q_scale_q(q)
M += minit_reset()
M += [valu('v_mbcnt_lo_u32_b32', tC, -1, 0), valu('v_mbcnt_hi_u32_b32', tC, -1, tC),
      valu('v_and_b32', tA, 15, tC), valu('v_lshrrev_b32', tB, 4, tC), valu('v_lshlrev_b32', tA, 8, tA),
      valu('v_lshl_add_u32', vX, tB, 4, tA)]
M += [salu('s_mul_i32', sT1, sHEAD, KH, scc_w=False), smov(sIT, 0)]
blk['max_pre'] = M
ML = [label('L_maxloop')]
ML += [buf_load('buffer_load_dwordx4', KF[0][j], vX, srdK, sT1, j * 64, tag=('mk',)) for j in range(4)]
ML += [waitv(('mk',))]
MS = [Sb[0][0:4], Sb[0][4:8], Sb[1][0:4], Sb[1][4:8], X8[0:4], X8[4:8]]
for q in range(6):
    for j in range(4): ML.append(mfma16(MS[q], KF[0][j], Qf[q][j], 0 if j == 0 else MS[q]))
for q in range(6):
    m = NEGM[q][3]
    ML += [valu('v_max3_f32', m, MS[q][0], MS[q][1], m), valu('v_max3_f32', m, MS[q][2], MS[q][3], m)]
ML += [salu('s_add_u32', sT1, sT1, 4096), salu('s_add_u32', sIT, sIT, 1), salu('s_cmp_lt_u32', None, sIT, 64),
       branch('s_cbranch_scc1', 'L_maxloop')]
blk['max_loop'] = ML
blk['max_post'] = stream_head() + [branch('s_branch', 'L_stream')]
blk['exit'] = [label('L_exit'), raw("  s_endpgm")]

def head_trace(first, has_next):
    t = flat_dyn(blk['fuse'], first)
    for p in range(NIT):
        qf = (p - 12 // BT) if (has_next and p >= 12 // BT) else None
        LASTPASS[0] = (p == NIT - 1)
        b = flat_dyn((blk['body_a'] if p else []) + blk['body_b'], qf)
        sh = (p * BT) % 4
        t += [Remap(i, sh) for i in b] if sh else b
    t += blk['bnd_chk'] + (blk['bnd_next'] if has_next else blk['drain'] + [i for e in EPIS for i in e.fin()] + blk['end'])
    return t
trace = blk['entry0'] + blk['entry1'] + blk['entry'] + blk['stream'] + head_trace(True, True) + head_trace(False, False)
for _ in range(2):
    trace += blk['max_pre'] + blk['max_loop'] * 3 + blk['max_post'] + blk['stream'] + head_trace(True, False)
trace += blk['exit']
for b in blk: blk[b] = flat_static(blk[b])

resolve_waits(trace)
for it in range(10):
    n = check_trace(trace, fix=True, verbose=False)
    if n == 0: break
    if n >= 1000: sys.exit("pending-load errors")
assert check_trace(trace, fix=False) == 0
assert check_lds_protocol(trace)

order = ['entry0', 'entry1', 'entry', 'stream', 'fuse', 'body_a', 'body_b', 'bnd_chk', 'bnd_next', 'drain', 'end',
         'max_pre', 'max_loop', 'max_post', 'exit']
NAME = "standalone__mha_softmax__near_ridge_kernel"
out = f"""; MHA forward (B16 H32 Sq384 Sk1024 D128, bf16) - generated by gen/gen.py (hand-written generator)
; @launch grid=({NWG},1,1) block=(256,1,1) lds={LDS_TOTAL}
.amdgcn_target "amdgcn-amd-amdhsa--gfx950"
.text
.globl {NAME}
.p2align 8
.type {NAME},@function
{NAME}:
"""
for b in order:
    out += f"; ---- {b}\n"
    for i in blk[b]: out += i.render()
out += f""".section .rodata,"a"
.p2align 6
.amdhsa_kernel {NAME}
  .amdhsa_next_free_vgpr 512
  .amdhsa_next_free_sgpr 80
  .amdhsa_accum_offset 256
  .amdhsa_group_segment_fixed_size 0
  .amdhsa_kernarg_size 48
  .amdhsa_user_sgpr_count 2
  .amdhsa_user_sgpr_kernarg_segment_ptr 1
  .amdhsa_system_sgpr_workgroup_id_x 1
.end_amdhsa_kernel
"""
open(sys.argv[1], 'w').write(out)
nn = sum(i.pre_nop for b in ('body_a', 'body_b') for i in blk[b])
print("emitted", sys.argv[1], "insts:", {b: len(blk[b]) for b in order}, "body nops:", nn)
```

```python
import sys, math, struct
from asmlib import *

def f2u(f): return struct.unpack('<I', struct.pack('<f', f))[0]

class Cfg:
    dma_flags = " nt"
    q_flags = " nt"
    st_flags = " nt"
    dma_cost = 8
    thr = 2.0 ** 32
    stamps = 0
    otouch = 0
    nostore = 0
    rowsum = 'mfma'
    bt = 4
    stampdbg = -1
    sched = 2
    hv = 2
    hk = 4
    dgrp = 1
    dgap = 2
    exp64 = 0
    ones1 = 0
    cpf = 2
    q45late = 0
cfg = Cfg()
for a in sys.argv[2:]:
    k, v = a.split('=', 1)
    cur = getattr(cfg, k)
    setattr(cfg, k, type(cur)(v) if not isinstance(cur, str) else v.replace('_', ' '))

NWG = 256
QH = 98304
KH = 262144
Q_BYTES = 512 * QH
K_BYTES = 512 * KH
OOB = 0x10000000
LDS_RING = 131072
LDS_TOTAL = LDS_RING + 32768
SCALE = (128 ** -0.5) * math.log2(math.e)

vTID = V(0)
aK = [V(1 + j) for j in range(4)]
aV = [V(5 + d) for d in range(8)]
dK = [V(13 + i) for i in range(4)]
dV = [V(17 + i) for i in range(2)]
vQo, vOo = V(19), V(20)
vX = V(21)
RL = V(22, 2)
T4 = [V(24, 4), V(28, 4)]
Sb = [V(32, 8), V(40, 8)]
Pb = [V(48, 4), V(52, 4)]
NEGM = [V(56 + 4 * q, 4) for q in range(6)]
Qf = [[V(80 + (q * 4 + j) * 4, 4) for j in range(4)] for q in range(6)]
def Oblk(q, db):
    if q < 4: return A((q * 8 + db) * 4, 4)
    return V(176 + ((q - 4) * 8 + db) * 4, 4)
X8 = V(240, 8)
Y8 = V(248, 8)
KF = [[A(128 + (kb * 4 + j) * 4, 4) for j in range(4)] for kb in range(2)]
VF = [A(160 + db * 4, 4) for db in range(8)]
Lb = [A(192 + 4 * q, 4) for q in range(6)]
ONES = A(216, 4)
S0 = [Sb[0], Y8, Sb[1], Sb[0], Y8, Sb[1]]
QST = [[A(220 + (q * 4 + j) * 4, 4) for j in range(4)] for q in range(2)]
vQs = V(0)

srdQ, srdK, srdV, srdO = S(8, 4), S(12, 4), S(16, 4), S(20, 4)
sWG = S(2)
sW, sM0B, sHEAD, sNEXT, sDOFF, sNB, sPASS, sMODE, sFLAGS, sQO, sBIT, sTHR = [S(24 + i) for i in range(12)]
sARG = S(36, 8)
sC = S(44, 2)
sMASK, sFIRST, sT0, sT1, sIT, sOH, sQH, sQP = S(46), S(47), S(48), S(49), S(50), S(51), S(62), S(63)
M0 = 'm0'
sQO2, sM0Q, sBITN, M0S, sFIN, sMa, sMb, sQP1 = [S(64 + i) for i in range(8)]

def smov(d, x): return salu('s_mov_b32', d, x, scc_w=False)
srdW = S(56, 4); sST = S(52, 2); sSTO = S(54); sST2 = S(60, 2)
sSTI = S(55)
def stamp():
    if not cfg.stamps: return []
    t0, t1 = T4[0][0], T4[0][1]
    def acc_r(d, a): return Inst(f"v_accvgpr_read_b32 {d}, {a}", 'valu', regs_of(a), regs_of(d))
    def acc_w(a, d): return Inst(f"v_accvgpr_write_b32 {a}, {d}", 'valu', regs_of(d), regs_of(a))
    def wl(d, s): return Inst(f"v_writelane_b32 {d}, {s}, {sSTI}", 'valu', regs_of(d) + regs_of(s) + regs_of(sSTI), regs_of(d))
    return [raw(f"  s_memtime {sST}", wr=[sST]), raw(f"  s_memrealtime {sST2}", wr=[sST2]), acc_r(t0, A(252)), acc_r(t1, A(253)),
            raw("  s_waitcnt lgkmcnt(0)"), smov(M0S, M0), smov(M0, sSTI), nop(1),
            Inst(f"v_writelane_b32 {t0}, {sST[0]}, m0", 'valu', regs_of(t0), regs_of(t0)),
            Inst(f"v_writelane_b32 {t1}, {sST2[0]}, m0", 'valu', regs_of(t1), regs_of(t1)),
            smov(M0, M0S), acc_w(A(252), t0), acc_w(A(253), t1), salu('s_add_u32', sSTI, sSTI, 1)]
def stamp_dump():
    if not cfg.stamps: return []
    t = T4[0]
    st = Inst(f"buffer_store_dwordx2 {t[0:2]}, {t[2]}, {srdW}, {sSTO} offen", 'vmem_store', regs_of(t[0:3]) + regs_of(srdW) + regs_of(sSTO), [])
    st.sdata = regs_of(t[0:2])
    if cfg.stampdbg >= 0:
        st = Inst(f"buffer_store_dword {t[1]}, {t[2]}, {srdW}, {sSTO} offen", 'vmem_store', regs_of(t[0:3]) + regs_of(srdW) + regs_of(sSTO), [])
        st.sdata = regs_of(t[1])
        return [Inst(f"v_accvgpr_read_b32 {t[1]}, a253", 'valu', regs_of(A(253)), regs_of(t[1])),
                valu('v_mbcnt_lo_u32_b32', t[2], -1, 0), valu('v_mbcnt_hi_u32_b32', t[2], -1, t[2]), valu('v_lshlrev_b32', t[2], 2, t[2]), st]
    return [Inst(f"v_accvgpr_read_b32 {t[0]}, a252", 'valu', regs_of(A(252)), regs_of(t[0])),
            Inst(f"v_accvgpr_read_b32 {t[1]}, a253", 'valu', regs_of(A(253)), regs_of(t[1])),
            valu('v_mbcnt_lo_u32_b32', t[2], -1, 0), valu('v_mbcnt_hi_u32_b32', t[2], -1, t[2]), valu('v_lshlrev_b32', t[2], 3, t[2]), st]

def phase(pre, mf, fa, fb=(), fa_start=0):
    out = list(pre)
    fb = sorted(fb, key=lambda x: x[0])
    total = sum(i.cost for i in fa) + sum(i.cost for _, l in fb for i in l)
    ng = len(mf)
    budget = max(8, int(math.ceil(total / max(ng - fa_start, 1) / 4.0)) * 4)
    ia = 0
    fb = list(fb)
    for g, m in enumerate(mf):
        out.append(m)
        rem = budget
        while fb and fb[0][0] <= g:
            c = sum(i.cost for i in fb[0][1])
            if c <= rem or rem == budget:
                out += fb[0][1]; rem -= c; fb.pop(0)
            else: break
        while g >= fa_start and ia < len(fa) and fa[ia].cost <= rem:
            out.append(fa[ia]); rem -= fa[ia].cost; ia += 1
    for _, l in fb: out += l
    out += fa[ia:]
    return out

def phase2(pre, mf, exps, cvts, fb, hoist):
    out = list(pre)
    fb = sorted(fb, key=lambda x: x[0])
    exps = list(exps); cvts = list(cvts); hoist = list(hoist)
    done = {i: -1 for i in range(8)}
    for i, _ in exps: done.pop(i)
    ng = len(mf)
    for g, m in enumerate(mf):
        out.append(m)
        rem = 8
        while fb and fb[0][0] <= g:
            c = sum(i.cost for i in fb[0][1])
            if c <= rem or rem == 8:
                out += fb[0][1]; rem -= c; fb.pop(0)
            else: break
        def ready_cvt():
            for n, (i, c) in enumerate(cvts):
                if done.get(2 * i, g) < g and done.get(2 * i + 1, g) < g: return n
            return None
        while rem > 0:
            rc = ready_cvt()
            nready = sum(1 for (i, c) in cvts if done.get(2 * i, g) < g and done.get(2 * i + 1, g) < g)
            if rem == 8 and exps and not (nready >= 2 and len(exps) <= cfg_tail(g, ng, exps, cvts)):
                i, e = exps.pop(0); out.append(e); done[i] = g; rem -= 8
            elif rc is not None:
                out.append(cvts.pop(rc)[1]); rem -= 4
            elif rem == 8 and hoist and g >= (9 if hoist[0][0] < 4 else 12):
                out.append(hoist.pop(0)[1]); rem -= 8
            else: break
    for _, l in fb: out += l
    out += [e for _, e in exps] + [c for _, c in cvts] + [e for _, e in hoist]
    return out
def cfg_tail(g, ng, exps, cvts): return 4

def qk_mfmas(q, Sdst, cinit):
    L = []
    for kb in range(2):
        d = Sdst[4 * kb:4 * kb + 4]
        for j in range(4):
            L.append(mfma16(d, KF[kb][j], Qf[q][j], (cinit if j == 0 else d)))
    return L
def pv_mfmas(q, P, first=False):
    L = [mfma16(Oblk(q, db), VF[db], P, 0 if first else Oblk(q, db)) for db in range(8)]
    if cfg.rowsum == 'mf4':
        L.insert(4, mfma4(Lb[q], ONES[0:2], P[0:2], 0 if first else Lb[q]))
        L.append(mfma4(Lb[q], ONES[0:2], P[2:4], Lb[q]))
    elif cfg.rowsum == 'mfma' or first: L.append(mfma16(Lb[q], ONES, P, 0 if first else Lb[q]))
    return L
def sm_valu(Ssrc, P, lacc=None):
    e = [valu('v_exp_f32', Ssrc[i], Ssrc[i], trans=True) for i in range(8)]
    c = [valu('v_cvt_pk_bf16_f32', P[i], Ssrc[2 * i], Ssrc[2 * i + 1]) for i in range(4)]
    if lacc is not None:
        a = [valu('v_add_f32', lacc, lacc, Ssrc[i]) for i in range(8)]
        return [e[0], e[1], a[0], c[0], e[2], a[1], a[2], e[3], e[4], a[3], c[1], e[5], a[4], a[5], e[6], e[7], c[2], a[6], a[7], c[3]]
    return [e[0], e[1], e[2], c[0], e[3], e[4], c[1], e[5], e[6], c[2], e[7], c[3]]
def k_read(kb, j, slot, sub):
    return ds_read('ds_read_b128', KF[kb][j], aK[j], slot * 16384 + sub * 8192 + kb * 4096, tag=('t', slot, 'K'))
def v_reads(db, slot, sub):
    return [ds_read('ds_read_b64_tr_b16', VF[db][2 * h:2 * h + 2], aV[db], slot * 16384 + sub * 8192 + h * 4096, tag=('t', slot, 'V'))
            for h in range(2)]
def dma_piece(part, slot, idx):
    if part == 'K': d = dma(dK[idx], srdK, sDOFF, idx * 1024, ('t', slot, 'K'), cfg.dma_flags, cfg.dma_cost)
    else: d = dma(dV[idx & 1], srdV, sDOFF, idx * 1024, ('t', slot, 'V'), cfg.dma_flags, cfg.dma_cost)
    d.piece = idx
    return d
def set_m0(part, slot):
    return salu('s_add_u32', M0, sM0B, (65536 if part == 'V' else 0) + slot * 16384)
ALLK = [KF[kb][j] for kb in range(2) for j in range(4)]

def q_loads():
    L = [salu('s_mul_i32', sQO, sHEADQ, QH, scc_w=False)]
    for q in range(6):
        for j in range(4):
            L.append(buf_load('buffer_load_dwordx4', Qf[q][j], vQo, srdQ, sQO, j * 64, tag=('q', q), flags=cfg.q_flags))
        if q < 5: L.append(salu('s_add_u32', sQO, sQO, 4096))
    return L
def q_scale():
    L = []
    for q in range(6):
        L.append(waitv(('q', q)))
        for j in range(4):
            x = Qf[q][j]; t = X8 if (j & 1) == 0 else Y8
            for i in range(4):
                L.append(valu('v_lshlrev_b32', t[2 * i], 16, x[i]))
                L.append(valu('v_and_b32', t[2 * i + 1], sMASK, x[i]))
            for i in range(4):
                L.append(valu('v_pk_mul_f32', t[2 * i:2 * i + 2], t[2 * i:2 * i + 2], sC))
            for i in range(4):
                L.append(valu('v_cvt_pk_bf16_f32', x[i], t[2 * i], t[2 * i + 1]))
    return L
def minit_reset():
    return [valu('v_mov_b32', NEGM[q][3], '0xff800000') for q in range(6)]

def max_valu(q):
    s = S0[q]; m = NEGM[q][3]; t = RL[q & 1]
    L = [valu('v_max3_f32', m, s[0], s[1], m), valu('v_max3_f32', m, s[2], s[3], m),
         valu('v_max3_f32', m, s[4], s[5], m), valu('v_max3_f32', m, s[6], s[7], m),
         valu('v_mov_b32', t, m), permswap('v_permlane32_swap_b32', t, m), valu('v_max_f32', m, t, m),
         valu('v_mov_b32', t, m), permswap('v_permlane16_swap_b32', t, m), valu('v_max_f32', t, t, m)]
    L += [valu('v_sub_f32', s[i], s[i], t) for i in range(8)]
    L += [valu('v_sub_f32', NEGM[q][i], 0, t) for i in range(4)]
    return L

blk = {}
E = []
E += [salu('s_cmp_ge_u32', None, sWG, NWG), branch('s_cbranch_scc1', 'L_exit')]
E += [raw(f"  s_load_dwordx8 {sARG}, s[0:1], 0", wr=[sARG])]
E += [valu('v_lshrrev_b32', vX, 6, vTID), valu('v_and_b32', vTID, 63, vTID)]
E += [Inst(f"v_readfirstlane_b32 {sW}, {vX}", 'valu', regs_of(vX), regs_of(sW))]
tA, tB, tC, tD = X8[0], X8[1], X8[2], X8[3]
tQ, tG = X8[4], X8[5]
E += [valu('v_and_b32', tQ, 15, vTID), valu('v_lshrrev_b32', tG, 4, vTID)]
E += [smov(sHEAD, sWG), valu('v_lshlrev_b32', tA, 8, tQ), valu('v_xor_b32', tD, tG, tQ)]
E += [salu('s_mul_i32', sT0, sW, 96 * 256, scc_w=False), salu('s_lshl_b32', sM0B, sW, 12)]
E += [valu('v_add_u32', tA, sT0, tA), valu('v_lshl_add_u32', vQo, tG, 4, tA)]
E += [valu('v_lshlrev_b32', tB, 8, tG), valu('v_add_u32', tB, sM0B, tB)]
for i in range(4):
    E += [valu('v_xor_b32', tC, 4 * i, tD), valu('v_lshl_add_u32', dK[i], tC, 4, tB)]
def mk_srd(srd, k, nb): return [smov(srd[0], sARG[k]), salu('s_and_b32', srd[1], sARG[k + 1], '0xffff'), smov(srd[2], nb), smov(srd[3], '0x20000')]
E += [smov(srdQ[2], Q_BYTES), smov(srdQ[3], '0x20000'), smov(srdK[2], K_BYTES), smov(srdK[3], '0x20000')]
CPF_EARLY = len(E)
E += [raw("  s_waitcnt lgkmcnt(0)")]
E += [smov(srdQ[0], sARG[0]), salu('s_and_b32', srdQ[1], sARG[1], '0xffff'), smov(srdK[0], sARG[2]), salu('s_and_b32', srdK[1], sARG[3], '0xffff')]
blk['entry0'] = E
E = []
sPC = S(72, 2)
def cpf_code(dst):
    L = [salu('s_lshr_b32', sT1, sWG, 3), salu('s_lshl_b32', sT1, sT1, 2), salu('s_add_u32', sT1, sT1, sW)]
    if cfg.cpf == 1: L += [salu('s_and_b32', sT1, sT1, 31)]
    else: L += [salu('s_cmp_ge_u32', None, sT1, 23), branch('s_cbranch_scc1', 'L_nocpf')]
    L += [salu('s_lshl_b32', sT1, sT1, 10), valu('v_mbcnt_lo_u32_b32', dst[0], -1, 0), valu('v_mbcnt_hi_u32_b32', dst[0], -1, dst[0]),
          valu('v_lshlrev_b32', dst[0], 4, dst[0]), valu('v_add_u32', dst[0], sT1, dst[0]),
          raw(f"  v_min_u32 {dst[0]}, L_max_pre - L_pc - 16, {dst[0]}", kind='valu', rd=[dst[0]], wr=[dst[0]]),
          Inst(f"global_load_dwordx4 {dst[0:4]}, {dst[0]}, {sPC}", 'vmem_load', regs_of(dst[0]) + regs_of(sPC), regs_of(dst[0:4]), tag=('cpf',))]
    if cfg.cpf != 1:
        L[-1].optional = True
        L += [label('L_nocpf')]
    return L
if cfg.cpf == 4:
    blk['entry0'][CPF_EARLY:CPF_EARLY] = [raw(f"  s_getpc_b64 {sPC}", wr=[sPC]), label('L_pc')] + cpf_code(Y8[4:8])
elif cfg.cpf:
    E += [raw(f"  s_getpc_b64 {sPC}", wr=[sPC]), label('L_pc')]
    if cfg.cpf <= 2: E += cpf_code(Y8[4:8])
E += mk_srd(srdV, 4, K_BYTES) + mk_srd(srdO, 6, Q_BYTES)
E += [valu('v_lshlrev_b32', tA, 1, tG), valu('v_xor_b32', tA, tA, tQ)]
for i in range(2):
    E += [valu('v_xor_b32', tC, 8 * i, tA), valu('v_lshl_add_u32', dV[i], tC, 4, tB)]
E += [valu('v_lshlrev_b32', tB, 8, tQ)]
for j in range(4):
    E += [valu('v_xor_b32', tC, 4 * j, tD), valu('v_lshl_add_u32', aK[j], tC, 4, tB)]
E += [valu('v_lshrrev_b32', tA, 2, vTID), valu('v_and_b32', tC, 7, tA), valu('v_lshlrev_b32', tA, 8, tA),
      valu('v_and_b32', tB, 3, vTID), valu('v_lshl_add_u32', tA, tB, 3, tA), valu('v_add_u32', tA, 65536, tA)]
for db in range(8):
    E += [valu('v_xor_b32', tB, db, tC), valu('v_lshl_add_u32', aV[db], tB, 5, tA)]
E += [valu('v_lshlrev_b32', vOo, 4, vTID), valu('v_add_u32', vOo, sT0, vOo)]
E += [smov(sMa, sM0B), salu('s_add_u32', sMb, sM0B, 32768)]
E += [salu('s_lshl_b32', sM0Q, sW, 13), salu('s_add_u32', sM0Q, sM0Q, LDS_RING),
      valu('v_lshlrev_b32', vQs, 4, vTID), valu('v_add_u32', vQs, sM0Q, vQs)]
E += [valu('v_lshrrev_b32', tA, 1, tG), valu('v_xor_b32', tA, tA, tQ), valu('v_lshlrev_b32', tA, 4, tA), valu('v_lshl_add_u32', tA, tQ, 8, tA),
      valu('v_and_b32', tB, 1, tG), valu('v_lshl_add_u32', tA, tB, 3, tA), valu('v_add_u32', tA, sM0Q, tA),
      Inst("v_accvgpr_write_b32 a254, " + str(tA), 'valu', regs_of(tA), regs_of(A(254))),
      valu('v_lshlrev_b32', tA, 4, tD), valu('v_lshl_add_u32', tA, tG, 8, tA), valu('v_add_u32', tA, sM0Q, tA),
      Inst("v_accvgpr_write_b32 a255, " + str(tA), 'valu', regs_of(tA), regs_of(A(255)))]
E += [valu('v_mov_b32', tA, '0x3f803f80')]
if cfg.ones1:
    E += [Inst(f"v_cmp_eq_u32 vcc, 0, {tQ}", 'valu', regs_of(tQ), [('x', 'vcc')]),
          Inst(f"v_cndmask_b32 {tA}, 0, {tA}, vcc", 'valu', regs_of(tA) + [('x', 'vcc')], regs_of(tA))]
E += [Inst(f"v_accvgpr_write_b32 {ONES[i]}, {tA}", 'valu', regs_of(tA), regs_of(ONES[i])) for i in range(4)]
E += [smov(sC[0], hex(f2u(SCALE))), smov(sC[1], hex(f2u(SCALE))), smov(sMASK, '0xffff0000'), smov(sTHR, hex(f2u(cfg.thr)))]
E += [salu('s_add_u32', sNEXT, sWG, NWG), smov(sMODE, 0), smov(sFLAGS, 0), smov(sBIT, 1), smov(sFIN, 0)]
E += minit_reset()
if cfg.stamps:
    E += [raw(f"  s_load_dwordx2 {srdW[0:2]}, s[0:1], {32 if cfg.stampdbg >= 0 else 40}", wr=[srdW[0:2]]), raw("  s_waitcnt lgkmcnt(0)"),
          salu('s_and_b32', srdW[1], srdW[1], '0xffff'), smov(srdW[2], 1 << 20), smov(srdW[3], '0x20000'),
          salu('s_lshl_b32', sSTO, sWG, 2), salu('s_add_u32', sSTO, sSTO, sW)]
    if cfg.stampdbg >= 0:
        E += [salu('s_cmp_eq_u32', None, sSTO, cfg.stampdbg), salu('s_cselect_b32', srdW[2], 64, 0, scc_w=False, scc_r=True), smov(sSTO, 0)]
    else: E += [salu('s_lshl_b32', sSTO, sSTO, 9)]
    E += [smov(sSTI, 0), smov(M0, 0), Inst('v_accvgpr_write_b32 a252, 0', 'valu', [], regs_of(A(252))), Inst('v_accvgpr_write_b32 a253, 0', 'valu', [], regs_of(A(253)))]
    E += stamp()
blk['entry'] = E

def q_place(q, early=False):
    if q < 2: return (sM0Q, q * 4096) if early else (sM0B, 16384 * (q + 1))
    if q < 4: return (sM0Q, (q - 2) * 4096)
    return (sM0B, 65536 + 49152) if q == 4 else (sM0B, 49152)
def q_load_q(q, restore_m0=None, early=False):
    b, c = q_place(q, early)
    L = [salu('s_add_u32', sQO, sQH, q * 4096), salu('s_add_u32', M0, b, c)]
    for i in range(4):
        d = dma(dK[i], srdQ, sQO, i * 1024, ('q', q), cfg.q_flags, cfg.dma_cost); d.piece = i; L.append(d)
    if restore_m0: L.append(restore_m0)
    return L
def q_lds_read(dsts, q, early=False):
    b, c = q_place(q, early)
    L = [salu('s_add_u32', sT0, b, c)] + [valu('v_add_u32', X8[j], sT0, aK[j]) for j in range(4)]
    for n, d in enumerate(dsts):
        L += [ds_read('ds_read_b128', d[j], X8[j], n * 4096) for j in range(4)]
    return L
def q_unstage_acc(q):
    return [Inst(f"v_accvgpr_read_b32 {Qf[q][j][i]}, {QST[q][j][i]}", 'valu', regs_of(QST[q][j][i]), regs_of(Qf[q][j][i]))
            for j in range(4) for i in range(4)]
def q_scale_q(q):
    L = []
    for j in range(4):
        x = Qf[q][j]; t = X8
        for i in range(4):
            L.append(valu('v_lshlrev_b32', t[2 * i], 16, x[i]))
            L.append(valu('v_and_b32', t[2 * i + 1], sMASK, x[i]))
        for i in range(4):
            L.append(valu('v_pk_mul_f32', t[2 * i:2 * i + 2], t[2 * i:2 * i + 2], sC))
        for i in range(4):
            L.append(valu('v_cvt_pk_bf16_f32', x[i], t[2 * i], t[2 * i + 1]))
    return L
_ti = [0]
def epi_q(q, tsets):
    D = [salu('s_add_u32', sQO2, sOH, q * 4096)]
    D += [Inst(f"v_accvgpr_read_b32 {RL[1]}, {Lb[q][0]}", 'valu', regs_of(Lb[q][0]), regs_of(RL[1]))]
    if cfg.rowsum == 'mf4':
        D += [valu('v_mov_b32', RL[0], RL[1]), permswap('v_permlane32_swap_b32', RL[0], RL[1]), valu('v_add_f32', RL[1], RL[0], RL[1]),
              valu('v_mov_b32', RL[0], RL[1]), permswap('v_permlane16_swap_b32', RL[0], RL[1]), valu('v_add_f32', RL[1], RL[0], RL[1])]
    D += [valu('v_rcp_f32', RL[0], RL[1], trans=True)]
    if q == 0: D += [valu('v_mov_b32', vX, RL[1])]
    else: D += [valu('v_add_f32', vX, vX, RL[1])]
    for dp in range(4):
        if q < 4:
            t = tsets[dp % len(tsets)]
            for bi in range(2):
                o = Oblk(q, 2 * dp + bi)
                D += [Inst(f"v_accvgpr_read_b32 {t[4*bi+i]}, {o[i]}", 'valu', regs_of(o[i]), regs_of(t[4 * bi + i])) for i in range(4)]
        else:
            o = Oblk(q, 2 * dp); t = V(o.n, 8)
        for i in range(4):
            D += [valu('v_pk_mul_f32', t[2 * i:2 * i + 2], t[2 * i:2 * i + 2], RL, extra="op_sel_hi:[1,0]")]
        T = T4[_ti[0] % 2]; _ti[0] += 1
        for i in range(4): D += [valu('v_cvt_pk_bf16_f32', T[i], t[2 * i], t[2 * i + 1])]
        D += [permswap('v_permlane16_swap_b32', T[0], T[2]), permswap('v_permlane16_swap_b32', T[1], T[3])]
        D += [buf_store('buffer_store_dwordx4', T, vOo, srdO, sQO2, dp * 64, flags=cfg.st_flags)]
    return D
aWA, aRA = A(254), A(255)
def acc_read(d, a): return Inst(f"v_accvgpr_read_b32 {d}, {a}", 'valu', regs_of(a), regs_of(d))
def oreg(q, t):
    return Oblk(q, t)
def epi_a(q):
    half = (q & 1) * 4096
    D = [acc_read(RL[1], Lb[q][0])]
    if cfg.ones1:
        D += [valu('v_mov_b32', RL[0], RL[1]), permswap('v_permlane16_swap_b32', RL[0], RL[1]), valu('v_add_f32', RL[1], RL[0], RL[1]),
              valu('v_mov_b32', RL[0], RL[1]), permswap('v_permlane32_swap_b32', RL[0], RL[1]), valu('v_add_f32', RL[1], RL[0], RL[1])]
    D += [valu('v_rcp_f32', RL[0], RL[1], trans=True)]
    D += [valu('v_mov_b32', vX, RL[1]) if q == 0 else valu('v_add_f32', vX, vX, RL[1])]
    D += [acc_read(RL[1], aWA)]
    for dp in range(4):
        if q < 4:
            t = X8
            for bi in range(2):
                o = Oblk(q, 2 * dp + bi)
                D += [acc_read(t[4 * bi + i], o[i]) for i in range(4)]
        else:
            o = Oblk(q, 2 * dp); t = V(o.n, 8)
        mul = [Inst(f"v_pk_mul_f32 {t[2*i:2*i+2]}, {t[2*i:2*i+2]}, {RL} op_sel_hi:[1,0]", 'valu',
                    regs_of(t[2 * i:2 * i + 2]) + regs_of(RL[0]), regs_of(t[2 * i:2 * i + 2])) for i in range(4)]
        D += mul
        T = T4[dp % 2]
        D += [valu('v_cvt_pk_bf16_f32', T[i], t[2 * i], t[2 * i + 1]) for i in range(4)]
        for bi in range(2):
            db = 2 * dp + bi
            D += [ds_write('ds_write_b64', RL[1], T[2 * bi:2 * bi + 2], half)]
            if db < 7: D += [valu('v_xor_b32', RL[1], (db ^ (db + 1)) << 5, RL[1])]
    D += [acc_read(RL[1], aRA)]
    for t in range(4):
        D += [ds_read('ds_read_b128', oreg(q, t), RL[1], half + t * 1024)]
        if t < 3: D += [valu('v_xor_b32', RL[1], (t ^ (t + 1)) << 6, RL[1])]
    return D
def epi_b(q):
    D = [salu('s_add_u32', sQO2, sOH, q * 4096), waitl(*[oreg(q, t) for t in range(4)])]
    D += [buf_store('buffer_store_dwordx4', oreg(q, t), vOo, srdO, sQO2, t * 1024, flags=cfg.st_flags) for t in range(4)]
    return D
def fail_check():
    return [Inst(f"v_cmp_nge_f32 vcc, {sTHR}, {vX}", 'valu', regs_of(sTHR) + regs_of(vX), [('x', 'vcc')]),
            salu('s_cmp_lg_u64', None, 'vcc', 0), salu('s_cselect_b32', sT0, sBIT, 0, scc_w=False, scc_r=True),
            salu('s_or_b32', sFLAGS, sFLAGS, sT0)]

def is_pk(i): return 'v_pk_' in i.text
def vphase(mf, seq, start=0):
    n = len(seq); out = []
    if not mf: return list(seq)
    tot = sum(i.cost for i in seq if isinstance(i, Inst))
    step = (tot * (1.0 - start)) / len(mf)
    acc = 0.0; nxt = tot * start; k = 0
    for idx, i in enumerate(seq):
        if k < len(mf) and acc >= nxt:
            look = [x for x in seq[idx:idx + 3] if isinstance(x, Inst)]
            if not any(is_pk(x) for x in look):
                m = mf[k]; out += (m if isinstance(m, list) else [m]); k += 1; nxt += step
        out.append(i)
        if isinstance(i, Inst): acc += i.cost
    for m in mf[k:]: out += (m if isinstance(m, list) else [m])
    return out

class Cond:
    n = 0
    def __init__(self, first, body):
        self.first, self.body = first, body
        self.lab = f"L_c{Cond.n}"; Cond.n += 1
        self.head = [salu('s_cmp_eq_u32', None, sFIRST, 0), branch('s_cbranch_scc1' if first else 's_cbranch_scc0', self.lab)]
        self.tail = [label(self.lab)]
    def static(self): return self.head + self.body + self.tail
    def dyn(self, first): return self.head + (self.body if first == self.first else []) + self.tail
def flat_static(seq): return [y for x in seq for y in (x.static() if hasattr(x, 'static') else [x])]
def flat_dyn(seq, flag):
    out = []
    for x in seq:
        if hasattr(x, 'dyn'): out += x.dyn(flag)
        elif flag is True and getattr(x, 'nf_only', False): out.append(Ghost(x))
        else: out.append(x)
    return out
def waitv_nf(*tags):
    w = waitv(*tags); w.nf_only = True; return w

def tile_dma(part, t): return [set_m0(part, t)] + [dma_piece(part, t, i) for i in range(4)]
nxt_tile = lambda: [salu('s_add_u32', sDOFF, sDOFF, 16384)]

def stream_head():
    return [salu('s_mul_i32', sQH, sHEAD, QH, scc_w=False), salu('s_mul_i32', sT1, sW, 20480, scc_w=False), salu('s_add_u32', sQH, sQH, sT1),
            salu('s_mul_i32', sDOFF, sHEAD, KH, scc_w=False)] + q_load_q(0) + tile_dma('K', 0) + q_load_q(1)
blk['entry1'] = stream_head()
B = [label('L_stream')]
B += [salu('s_mul_i32', sNB, sNEXT, KH, scc_w=False), salu('s_cmp_lt_u32', None, sNEXT, 512),
      salu('s_cselect_b32', sNB, sNB, OOB, scc_w=False, scc_r=True),
      salu('s_cselect_b32', sQP, 12 // cfg.bt, 99, scc_w=False, scc_r=True), salu('s_add_u32', sQP1, sQP, 1),
      smov(sFIRST, 1), smov(sOH, OOB), smov(sBITN, sBIT), smov(sBIT, 0)]
blk['stream'] = B

zero_init = [valu('v_mov_b32', Oblk(5, db)[i], 0) for db in range(8) for i in range(4)]
zero_init += [Inst(f"v_accvgpr_write_b32 {Lb[5][i]}, 0", 'valu', [], regs_of(Lb[5][i])) for i in range(4)]
FU = [label('L_fuse'), smov(sPASS, 0)] + stamp()
def st2(): return stamp() if cfg.stamps >= 2 else []
GR = [('q', 0), ('t', 0, 'K'), ('q', 1), ('q', 2), ('q', 3), ('t', 0, 'V'), ('q', 4), ('q', 5),
      ('t', 1, 'K'), ('t', 1, 'V'), ('t', 2, 'K'), ('t', 2, 'V')]
def issue(k):
    t = GR[k]
    if t[0] == 'q': return q_load_q(t[1])
    return tile_dma(t[2], t[1]) + (nxt_tile() if t[2] == 'V' else [])
def top(k, extra=()): return [Cond(True, ([waitv(GR[k - 3])] if k <= 10 else []) + issue(k) + list(extra))]
def qscale(q): return [waitl(*Qf[q])] + q_scale_q(q)
class EpiBlk:
    def __init__(self, n, body, last=False):
        self.head = [salu('s_cmp_eq_u32', None, sFIRST, 0), branch('s_cbranch_scc0', f'L_epx{n}')]
        self.body = [label(f'L_epi{n}')] + body
        self.chain = [salu('s_cmp_lg_u32', None, sFIN, 0), branch('s_cbranch_scc1', 'L_end' if last else f'L_epi{n+1}')]
        self.tail = [label(f'L_epx{n}')]
    def static(self): return self.head + self.body + self.chain + self.tail
    def dyn(self, first): return self.head + ([] if first else self.body + self.chain) + self.tail
    def fin(self): return self.body + self.chain
EPIS = [EpiBlk(0, epi_a(0) + epi_a(1) + epi_b(0)), EpiBlk(1, epi_a(2) + epi_b(1)), EpiBlk(2, epi_a(3) + epi_b(2)),
        EpiBlk(3, epi_a(4) + epi_b(3) + epi_a(5) + fail_check() + epi_b(4)), EpiBlk(4, epi_b(5), last=True)]
QK0 = lambda q: qk_mfmas(q, S0[q], 0)
PV0 = lambda q: pv_mfmas(q, Pb[q % 2], first=True)
SM0 = lambda q: sm_valu(S0[q], Pb[q % 2])
pv = pv_mfmas(5, Pb[1])
def pv_db(m):
    for db in range(8):
        if VF[db].regs()[0] in m.ab: return db
    return None
mf0 = [([m] + v_reads(pv_db(m), 0, 0)) if pv_db(m) is not None else [m] for m in pv]
for m in mf0:
    for r in m[1:]: r.tag = ('tx', 0, 'V')
def qs01(q): return [Cond(False, q_unstage_acc(q)), Cond(True, [waitl(*Qf[q])])] + q_scale_q(q)
FU += vphase(mf0, top(3, q_lds_read([Qf[0]], 0)) + qs01(0)
             + top(4, [barrier()] + [k_read(kb, j, 0, 0) for kb in range(2) for j in range(4)])
             + top(5, q_lds_read([Qf[1]], 1)) + qs01(1)) + st2()
FU += [waitl(*ALLK)]
FU += vphase(QK0(0) + QK0(1), top(6) + top(7) + [waitv_nf(('q', 3))] + q_lds_read([Qf[2], Qf[3]], 2) + qscale(2)
             + top(8, [barrier()] + [r for db in range(8) for r in v_reads(db, 0, 0)]) + qscale(3)) + st2()
FU += vphase(QK0(2), max_valu(0) + SM0(0) + max_valu(1) + SM0(1)) + st2()
FU += [EPIS[0]] + st2()
FU += [waitl(*VF)]
FU += vphase(QK0(3) + PV0(0), top(9) + [waitv_nf(('q', 4))] + q_lds_read([Qf[4]], 4) + max_valu(2) + qscale(4)) + [EPIS[1]] + st2()
FU += vphase(QK0(4) + PV0(1), top(10) + [waitv_nf(('q', 5))] + q_lds_read([Qf[5]], 5) + SM0(2) + qscale(5) + max_valu(3)) + [EPIS[2]] + st2()
qk5 = QK0(5); qk5 = [[qk5[kb * 4 + j], k_read(kb, j, 0, 1)] for kb in range(2) for j in range(4)]
FU += vphase(qk5 + PV0(2), SM0(3) + max_valu(4) + top(11, cpf_code(T4[1]) if cfg.cpf == 3 else [])) + [EPIS[3]] + st2()
FU += vphase(PV0(3), SM0(4) + max_valu(5)) + [EPIS[4]] + st2()
FU += [waitl(*ALLK)]
FU += vphase(qk_mfmas(0, Sb[0], NEGM[0]) + PV0(4),
             [set_m0('K', 3), dma_piece('K', 3, 0)] + SM0(5) + [dma_piece('K', 3, 1)] + zero_init[:12] + [dma_piece('K', 3, 2)] + zero_init[12:24]
             + [dma_piece('K', 3, 3)] + zero_init[24:] + [set_m0('V', 3), dma_piece('V', 3, 0)])
if cfg.sched == 2: FU += [valu('v_exp_f32', Sb[0][i], Sb[0][i], trans=True) for i in range(cfg.hv)]
FU += [smov(sFIRST, 0), smov(sBIT, sBITN), salu('s_mul_i32', sQH, sNEXT, QH, scc_w=False), salu('s_mul_i32', sT1, sW, 20480, scc_w=False), salu('s_add_u32', sQH, sQH, sT1)] + stamp() + [branch('s_branch', 'L_body1')]
blk['fuse'] = FU

class CondQ:
    n = 0
    def __init__(self, body, dp):
        self.body = body; self.lab = f"L_q{CondQ.n}"; CondQ.n += 1; self.dp = dp
        self.head = [salu('s_cmp_eq_u32', None, sPASS, sQP if dp == 0 else sQP1), branch('s_cbranch_scc0', self.lab)]
        self.tail = [label(self.lab)]
        self.cost = 8
    def static(self): return self.head + self.body + self.tail
    def dyn(self, flag): return self.head + (self.body if flag == self.dp else []) + self.tail

class CondL:
    def __init__(self, body):
        self.body = body; self.lab = "L_nl"
        self.head = [salu('s_cmp_eq_u32', None, sPASS, 3), branch('s_cbranch_scc1', self.lab)]
        self.tail = [label(self.lab)]
        self.cost = 16
    def static(self): return self.head + self.body + self.tail
    def dyn(self, flag): return self.head + ([] if LASTPASS[0] else self.body) + self.tail
LASTPASS = [False]
BT = cfg.bt
NIT = 16 // BT
def set_m0r(part, r):
    if BT == 4: return set_m0(part, r)
    return salu('s_add_u32', M0, sMa if r < 2 else sMb, (65536 if part == 'V' else 0) + (r & 1) * 16384)
def k_read_r(kb, j, r, sub):
    d = k_read(kb, j, r % BT if BT == 2 else r, sub); d.tag = ('t', r, 'K'); return d

def HO(lp): return {0: cfg.hv, 6: cfg.hv, 4: cfg.hk, 10: cfg.hk}.get(lp, 0)
_smi = {}
def sm_items(k, lp):
    if (k, lp) not in _smi:
        q = lp % 6; Ssrc, P = Sb[q % 2], Pb[q % 2]
        _smi[(k, lp)] = ([(i, valu('v_exp_f32_e64' if cfg.exp64 else 'v_exp_f32', Ssrc[i], Ssrc[i], trans=True)) for i in range(8)],
                         [(i, valu('v_cvt_pk_bf16_f32', P[i], Ssrc[2 * i], Ssrc[2 * i + 1])) for i in range(4)])
    return _smi[(k, lp)]
def body_phase(k, lp):
    sub, q = divmod(lp, 6)
    qn = (q + 1) % 6; qp = (q - 1) % 6
    pre = []; fb = []
    mf = qk_mfmas(qn, Sb[(q + 1) % 2], NEGM[qn]) + pv_mfmas(qp, Pb[(q - 1) % 2])
    fa = sm_valu(Sb[q % 2], Pb[q % 2], X8[q] if cfg.rowsum == 'valu' else None)
    if q == 4:
        slot, s2 = (k, 1) if sub == 0 else ((k + 1) % 4, 0)
        if sub == 1: pre += [waitv(('t', slot, 'V')), barrier()]
        for kb in range(2):
            for j in range(4): fb.append((kb * 4 + j, [k_read_r(kb, j, slot, s2)]))
    if q == 5: pre += [waitl(*ALLK)]
    if q == 0:
        for gi, m in enumerate(mf):
            if gi >= 8 and pv_db(m) is not None: fb.append((gi, v_reads(pv_db(m), k, sub)))
    if q == 1: fb.append((7, [waitl(*VF)]))
    x3 = (k + 3) % 4
    G = cfg.dgap
    if cfg.dgrp == 1:
        if lp in (1, 2, 3): fb.append((G, [dma_piece('K', x3, lp)]))
        if lp == 5: fb.append((G - 1, [set_m0r('V', x3)])); fb.append((G, [dma_piece('V', x3, 0)]))
        if lp in (7, 8, 9): fb.append((G, [dma_piece('V', x3, lp - 6)]))
    elif cfg.dgrp == 2:
        if lp == 2: fb.append((G, [dma_piece('K', x3, 1), dma_piece('K', x3, 2), dma_piece('K', x3, 3)]))
        if lp == 5: fb.append((G - 1, [set_m0r('V', x3)])); fb.append((G, [dma_piece('V', x3, 0)]))
        if lp == 8: fb.append((G, [dma_piece('V', x3, 1), dma_piece('V', x3, 2), dma_piece('V', x3, 3)]))
    assert BT == 4
    cur_m0 = set_m0r('K', x3) if lp < 5 else set_m0r('V', x3)
    if (k, lp) == (0, 8): fb.append((12, [CondQ(q_load_q(0, cur_m0, early=True), 0)]))
    if (k, lp) == (1, 2): fb.append((12, [CondQ(q_load_q(1, cur_m0, early=True), 0)]))
    if (k, lp) == (1, 9): fb.append((12, [CondQ([waitv(('q', 1))] + q_lds_read([QST[0], QST[1]], 0, early=True), 0)]))
    if (k, lp) == (2, 2): fb.append((12, [CondQ([waitl(*QST[0], *QST[1])] + q_load_q(2, cur_m0), 0)]))
    if (k, lp) == (2, 8): fb.append((12, [CondQ(q_load_q(3, cur_m0), 0)]))
    if (k, lp) == (3, 10): fb.append((12, [CondQ(q_load_q(4), 0)]))
    if BT == 2 and k == 1:
        if lp == 7:
            for j in range(4): fb.append((11 + j, [valu('v_xor_b32', aK[j], 32768, aK[j])]))
        if lp in (8, 9):
            for d in range(4): fb.append((9 + 2 * d if lp == 9 else 9 + d // 2 + 6 * (d // 2), [valu('v_xor_b32', aV[4 * (lp - 8) + d], 32768, aV[4 * (lp - 8) + d])]))
    if lp == 11:
        upd = [salu('s_add_u32', sDOFF, sDOFF, 16384)]
        if k == 0:
            upd += [salu('s_cmp_eq_u32', None, sPASS, 12 // BT), salu('s_cselect_b32', sDOFF, sNB, sDOFF, scc_w=False, scc_r=True)]
        fb.append((0, upd[:2]))
        if len(upd) > 2: fb.append((1, upd[2:]))
        if k == 3:
            fb.append((2, [CondL([set_m0r('K', k), dma_piece('K', k, 0)])]))
            fb.append((12, [CondQ(q_load_q(5), 0)]))
        else: fb.append((max(G - 1, 1), [set_m0r('K', k)])); fb.append((max(G, 2), [dma_piece('K', k, 0)]))
        if BT == 2 and k == 1:
            fb.append((13, [salu('s_xor_b32', sMa, sMa, 32768), salu('s_xor_b32', sMb, sMb, 32768)]))
    if cfg.sched == 1: return phase(pre, mf, fa, fb)
    ex, cv = sm_items(k, lp)
    nk, nlp = (k, lp + 1) if lp < 11 else ((k + 1) % BT, 0)
    return phase2(pre, mf, ex[HO(lp):], cv, fb, sm_items(nk, nlp)[0][:HO(nlp)])

BA = [raw(".p2align 6"), label('L_body0')]
for lp in range(6): BA += body_phase(0, lp)
blk['body_a'] = BA
BB = [label('L_body1')]
for lp in range(6, 12): BB += body_phase(0, lp)
for k in range(1, BT):
    for lp in range(12): BB += body_phase(k, lp)
BB += stamp() + [salu('s_add_u32', sPASS, sPASS, 1), salu('s_cmp_lt_u32', None, sPASS, NIT), branch('s_cbranch_scc1', 'L_body0')]
blk['body_b'] = BB

D1 = [salu('s_mul_i32', sOH, sHEAD, QH, scc_w=False) if not cfg.nostore else smov(sOH, OOB), salu('s_cmp_ge_u32', None, sNEXT, 512), branch('s_cbranch_scc1', 'L_drain')]
blk['bnd_chk'] = D1
N = [smov(sHEAD, sNEXT), smov(sNEXT, '0xffff'), smov(sNB, OOB), smov(sBITN, 2), smov(sQP, 99), smov(sQP1, 99)] + minit_reset() + [branch('s_branch', 'L_fuse')]
blk['bnd_next'] = N
D = [label('L_drain')] + pv_mfmas(5, Pb[1]) + [smov(sFIN, 1), branch('s_branch', 'L_epi0')]
blk['drain'] = D

F = [label('L_end')] + stamp() + [smov(sFIN, 0)]
F += [valu('v_mov_b32', tA, sFLAGS), valu('v_mov_b32', tB, sM0Q), valu('v_mov_b32', tC, LDS_RING),
      ds_write('ds_write_b32', tB, tA, 0), raw("  s_waitcnt lgkmcnt(0)"), barrier()] + [
      ds_read('ds_read_b32', Y8[i], tC, i * 8192) for i in range(4)] + [raw("  s_waitcnt lgkmcnt(0)"),
      valu('v_or_b32', tA, Y8[0], Y8[1]), valu('v_or3_b32', tA, tA, Y8[2], Y8[3]),
      Inst(f"v_readfirstlane_b32 {sFLAGS}, {tA}", 'valu', regs_of(tA), regs_of(sFLAGS)),
      ] + stamp() + stamp_dump() + [salu('s_cmp_eq_u32', None, sFLAGS, 0), branch('s_cbranch_scc1', 'L_exit')]
blk['end'] = F
M = [label('L_max_pre'), raw('  s_waitcnt vmcnt(0)'), barrier()]
M += [salu('s_and_b32', sT0, sFLAGS, 1), salu('s_add_u32', sT1, sWG, NWG), salu('s_cmp_lg_u32', None, sT0, 0),
      salu('s_cselect_b32', sHEAD, sWG, sT1, scc_w=False, scc_r=True),
      salu('s_cselect_b32', sT0, 1, 2, scc_w=False, scc_r=True), salu('s_andn2_b32', sFLAGS, sFLAGS, sT0),
      smov(sMODE, 1), smov(sBIT, 0), smov(sNEXT, '0xffff')]
M += [salu('s_mul_i32', sQO, sHEAD, QH, scc_w=False)]
for q in range(6):
    M += [buf_load('buffer_load_dwordx4', Qf[q][j], vQo, srdQ, sQO, j * 64, tag=('mq',)) for j in range(4)]
    M += [salu('s_add_u32', sQO, sQO, 4096)]
M += [waitv(('mq',))]
for q in range(6): M += q_scale_q(q)
M += minit_reset()
M += [valu('v_mbcnt_lo_u32_b32', tC, -1, 0), valu('v_mbcnt_hi_u32_b32', tC, -1, tC),
      valu('v_and_b32', tA, 15, tC), valu('v_lshrrev_b32', tB, 4, tC), valu('v_lshlrev_b32', tA, 8, tA),
      valu('v_lshl_add_u32', vX, tB, 4, tA)]
M += [salu('s_mul_i32', sT1, sHEAD, KH, scc_w=False), smov(sIT, 0)]
blk['max_pre'] = M
ML = [label('L_maxloop')]
ML += [buf_load('buffer_load_dwordx4', KF[0][j], vX, srdK, sT1, j * 64, tag=('mk',)) for j in range(4)]
ML += [waitv(('mk',))]
MS = [Sb[0][0:4], Sb[0][4:8], Sb[1][0:4], Sb[1][4:8], X8[0:4], X8[4:8]]
for q in range(6):
    for j in range(4): ML.append(mfma16(MS[q], KF[0][j], Qf[q][j], 0 if j == 0 else MS[q]))
for q in range(6):
    m = NEGM[q][3]
    ML += [valu('v_max3_f32', m, MS[q][0], MS[q][1], m), valu('v_max3_f32', m, MS[q][2], MS[q][3], m)]
ML += [salu('s_add_u32', sT1, sT1, 4096), salu('s_add_u32', sIT, sIT, 1), salu('s_cmp_lt_u32', None, sIT, 64),
       branch('s_cbranch_scc1', 'L_maxloop')]
blk['max_loop'] = ML
blk['max_post'] = stream_head() + [branch('s_branch', 'L_stream')]
blk['exit'] = [label('L_exit'), raw("  s_endpgm")]

def head_trace(first, has_next):
    t = flat_dyn(blk['fuse'], first)
    for p in range(NIT):
        qf = (p - 12 // BT) if (has_next and p >= 12 // BT) else None
        LASTPASS[0] = (p == NIT - 1)
        b = flat_dyn((blk['body_a'] if p else []) + blk['body_b'], qf)
        sh = (p * BT) % 4
        t += [Remap(i, sh) for i in b] if sh else b
    t += blk['bnd_chk'] + (blk['bnd_next'] if has_next else blk['drain'] + [i for e in EPIS for i in e.fin()] + blk['end'])
    return t
trace = blk['entry0'] + blk['entry1'] + blk['entry'] + blk['stream'] + head_trace(True, True) + head_trace(False, False)
for _ in range(2):
    trace += blk['max_pre'] + blk['max_loop'] * 3 + blk['max_post'] + blk['stream'] + head_trace(True, False)
trace += blk['exit']
for b in blk: blk[b] = flat_static(blk[b])

resolve_waits(trace)
for it in range(10):
    n = check_trace(trace, fix=True, verbose=False)
    if n == 0: break
    if n >= 1000: sys.exit("pending-load errors")
assert check_trace(trace, fix=False) == 0
assert check_lds_protocol(trace)

order = ['entry0', 'entry1', 'entry', 'stream', 'fuse', 'body_a', 'body_b', 'bnd_chk', 'bnd_next', 'drain', 'end',
         'max_pre', 'max_loop', 'max_post', 'exit']
NAME = "standalone__mha_softmax__near_ridge_kernel"
out = f"""; MHA forward (B16 H32 Sq384 Sk1024 D128, bf16) - generated by gen/gen.py (hand-written generator)
; @launch grid=({NWG},1,1) block=(256,1,1) lds={LDS_TOTAL}
.amdgcn_target "amdgcn-amd-amdhsa--gfx950"
.text
.globl {NAME}
.p2align 8
.type {NAME},@function
{NAME}:
"""
for b in order:
    out += f"; ---- {b}\n"
    for i in blk[b]: out += i.render()
out += f""".section .rodata,"a"
.p2align 6
.amdhsa_kernel {NAME}
  .amdhsa_next_free_vgpr 512
  .amdhsa_next_free_sgpr 80
  .amdhsa_accum_offset 256
  .amdhsa_group_segment_fixed_size 0
  .amdhsa_kernarg_size 48
  .amdhsa_user_sgpr_count 2
  .amdhsa_user_sgpr_kernarg_segment_ptr 1
  .amdhsa_system_sgpr_workgroup_id_x 1
.end_amdhsa_kernel
"""
open(sys.argv[1], 'w').write(out)
nn = sum(i.pre_nop for b in ('body_a', 'body_b') for i in blk[b])
print("emitted", sys.argv[1], "insts:", {b: len(blk[b]) for b in order}, "body nops:", nn)
```

```python
import sys, math, struct
from asmlib import *

def f2u(f): return struct.unpack('<I', struct.pack('<f', f))[0]

class Cfg:
    dma_flags = " nt"
    q_flags = " nt"
    st_flags = " nt"
    dma_cost = 8
    thr = 2.0 ** 32
    stamps = 0
    otouch = 0
    nostore = 0
    rowsum = 'mfma'
    bt = 4
    stampdbg = -1
    sched = 2
    hv = 2
    hk = 4
    dgrp = 1
    dgap = 2
    exp64 = 0
    ones1 = 0
    cpf = 2
    ramp = 1
    q45late = 0
cfg = Cfg()
for a in sys.argv[2:]:
    k, v = a.split('=', 1)
    cur = getattr(cfg, k)
    setattr(cfg, k, type(cur)(v) if not isinstance(cur, str) else v.replace('_', ' '))

NWG = 256
QH = 98304
KH = 262144
Q_BYTES = 512 * QH
K_BYTES = 512 * KH
OOB = 0x10000000
LDS_RING = 131072
LDS_TOTAL = LDS_RING + 32768
SCALE = (128 ** -0.5) * math.log2(math.e)

vTID = V(0)
aK = [V(1 + j) for j in range(4)]
aV = [V(5 + d) for d in range(8)]
dK = [V(13 + i) for i in range(4)]
dV = [V(17 + i) for i in range(2)]
vQo, vOo = V(19), V(20)
vX = V(21)
RL = V(22, 2)
T4 = [V(24, 4), V(28, 4)]
Sb = [V(32, 8), V(40, 8)]
Pb = [V(48, 4), V(52, 4)]
NEGM = [V(56 + 4 * q, 4) for q in range(6)]
Qf = [[V(80 + (q * 4 + j) * 4, 4) for j in range(4)] for q in range(6)]
def Oblk(q, db):
    if q < 4: return A((q * 8 + db) * 4, 4)
    return V(176 + ((q - 4) * 8 + db) * 4, 4)
X8 = V(240, 8)
Y8 = V(248, 8)
KF = [[A(128 + (kb * 4 + j) * 4, 4) for j in range(4)] for kb in range(2)]
VF = [A(160 + db * 4, 4) for db in range(8)]
Lb = [A(192 + 4 * q, 4) for q in range(6)]
ONES = A(216, 4)
S0 = [Sb[0], Y8, Sb[1], Sb[0], Y8, Sb[1]]
QST = [[A(220 + (q * 4 + j) * 4, 4) for j in range(4)] for q in range(2)]
vQs = V(0)

srdQ, srdK, srdV, srdO = S(8, 4), S(12, 4), S(16, 4), S(20, 4)
sWG = S(2)
sW, sM0B, sHEAD, sNEXT, sDOFF, sNB, sPASS, sMODE, sFLAGS, sQO, sBIT, sTHR = [S(24 + i) for i in range(12)]
sARG = S(36, 8)
sC = S(44, 2)
sMASK, sFIRST, sT0, sT1, sIT, sOH, sQH, sQP = S(46), S(47), S(48), S(49), S(50), S(51), S(62), S(63)
M0 = 'm0'
sQO2, sM0Q, sBITN, M0S, sFIN, sMa, sMb, sQP1 = [S(64 + i) for i in range(8)]

def smov(d, x): return salu('s_mov_b32', d, x, scc_w=False)
srdW = S(56, 4); sST = S(52, 2); sSTO = S(54); sST2 = S(60, 2)
sSTI = S(55)
def stamp():
    if not cfg.stamps: return []
    t0, t1 = T4[0][0], T4[0][1]
    def acc_r(d, a): return Inst(f"v_accvgpr_read_b32 {d}, {a}", 'valu', regs_of(a), regs_of(d))
    def acc_w(a, d): return Inst(f"v_accvgpr_write_b32 {a}, {d}", 'valu', regs_of(d), regs_of(a))
    def wl(d, s): return Inst(f"v_writelane_b32 {d}, {s}, {sSTI}", 'valu', regs_of(d) + regs_of(s) + regs_of(sSTI), regs_of(d))
    return [raw(f"  s_memtime {sST}", wr=[sST]), raw(f"  s_memrealtime {sST2}", wr=[sST2]), acc_r(t0, A(252)), acc_r(t1, A(253)),
            raw("  s_waitcnt lgkmcnt(0)"), smov(M0S, M0), smov(M0, sSTI), nop(1),
            Inst(f"v_writelane_b32 {t0}, {sST[0]}, m0", 'valu', regs_of(t0), regs_of(t0)),
            Inst(f"v_writelane_b32 {t1}, {sST2[0]}, m0", 'valu', regs_of(t1), regs_of(t1)),
            smov(M0, M0S), acc_w(A(252), t0), acc_w(A(253), t1), salu('s_add_u32', sSTI, sSTI, 1)]
def stamp_dump():
    if not cfg.stamps: return []
    t = T4[0]
    st = Inst(f"buffer_store_dwordx2 {t[0:2]}, {t[2]}, {srdW}, {sSTO} offen", 'vmem_store', regs_of(t[0:3]) + regs_of(srdW) + regs_of(sSTO), [])
    st.sdata = regs_of(t[0:2])
    if cfg.stampdbg >= 0:
        st = Inst(f"buffer_store_dword {t[1]}, {t[2]}, {srdW}, {sSTO} offen", 'vmem_store', regs_of(t[0:3]) + regs_of(srdW) + regs_of(sSTO), [])
        st.sdata = regs_of(t[1])
        return [Inst(f"v_accvgpr_read_b32 {t[1]}, a253", 'valu', regs_of(A(253)), regs_of(t[1])),
                valu('v_mbcnt_lo_u32_b32', t[2], -1, 0), valu('v_mbcnt_hi_u32_b32', t[2], -1, t[2]), valu('v_lshlrev_b32', t[2], 2, t[2]), st]
    return [Inst(f"v_accvgpr_read_b32 {t[0]}, a252", 'valu', regs_of(A(252)), regs_of(t[0])),
            Inst(f"v_accvgpr_read_b32 {t[1]}, a253", 'valu', regs_of(A(253)), regs_of(t[1])),
            valu('v_mbcnt_lo_u32_b32', t[2], -1, 0), valu('v_mbcnt_hi_u32_b32', t[2], -1, t[2]), valu('v_lshlrev_b32', t[2], 3, t[2]), st]

def phase(pre, mf, fa, fb=(), fa_start=0):
    out = list(pre)
    fb = sorted(fb, key=lambda x: x[0])
    total = sum(i.cost for i in fa) + sum(i.cost for _, l in fb for i in l)
    ng = len(mf)
    budget = max(8, int(math.ceil(total / max(ng - fa_start, 1) / 4.0)) * 4)
    ia = 0
    fb = list(fb)
    for g, m in enumerate(mf):
        out.append(m)
        rem = budget
        while fb and fb[0][0] <= g:
            c = sum(i.cost for i in fb[0][1])
            if c <= rem or rem == budget:
                out += fb[0][1]; rem -= c; fb.pop(0)
            else: break
        while g >= fa_start and ia < len(fa) and fa[ia].cost <= rem:
            out.append(fa[ia]); rem -= fa[ia].cost; ia += 1
    for _, l in fb: out += l
    out += fa[ia:]
    return out

def phase2(pre, mf, exps, cvts, fb, hoist):
    out = list(pre)
    fb = sorted(fb, key=lambda x: x[0])
    exps = list(exps); cvts = list(cvts); hoist = list(hoist)
    done = {i: -1 for i in range(8)}
    for i, _ in exps: done.pop(i)
    ng = len(mf)
    for g, m in enumerate(mf):
        out.append(m)
        rem = 8
        while fb and fb[0][0] <= g:
            c = sum(i.cost for i in fb[0][1])
            if c <= rem or rem == 8:
                out += fb[0][1]; rem -= c; fb.pop(0)
            else: break
        def ready_cvt():
            for n, (i, c) in enumerate(cvts):
                if done.get(2 * i, g) < g and done.get(2 * i + 1, g) < g: return n
            return None
        while rem > 0:
            rc = ready_cvt()
            nready = sum(1 for (i, c) in cvts if done.get(2 * i, g) < g and done.get(2 * i + 1, g) < g)
            if rem == 8 and exps and not (nready >= 2 and len(exps) <= cfg_tail(g, ng, exps, cvts)):
                i, e = exps.pop(0); out.append(e); done[i] = g; rem -= 8
            elif rc is not None:
                out.append(cvts.pop(rc)[1]); rem -= 4
            elif rem == 8 and hoist and g >= (9 if hoist[0][0] < 4 else 12):
                out.append(hoist.pop(0)[1]); rem -= 8
            else: break
    for _, l in fb: out += l
    out += [e for _, e in exps] + [c for _, c in cvts] + [e for _, e in hoist]
    return out
def cfg_tail(g, ng, exps, cvts): return 4

def qk_mfmas(q, Sdst, cinit):
    L = []
    for kb in range(2):
        d = Sdst[4 * kb:4 * kb + 4]
        for j in range(4):
            L.append(mfma16(d, KF[kb][j], Qf[q][j], (cinit if j == 0 else d)))
    return L
def pv_mfmas(q, P, first=False):
    L = [mfma16(Oblk(q, db), VF[db], P, 0 if first else Oblk(q, db)) for db in range(8)]
    if cfg.rowsum == 'mf4':
        L.insert(4, mfma4(Lb[q], ONES[0:2], P[0:2], 0 if first else Lb[q]))
        L.append(mfma4(Lb[q], ONES[0:2], P[2:4], Lb[q]))
    elif cfg.rowsum == 'mfma' or first: L.append(mfma16(Lb[q], ONES, P, 0 if first else Lb[q]))
    return L
def sm_valu(Ssrc, P, lacc=None):
    e = [valu('v_exp_f32', Ssrc[i], Ssrc[i], trans=True) for i in range(8)]
    c = [valu('v_cvt_pk_bf16_f32', P[i], Ssrc[2 * i], Ssrc[2 * i + 1]) for i in range(4)]
    if lacc is not None:
        a = [valu('v_add_f32', lacc, lacc, Ssrc[i]) for i in range(8)]
        return [e[0], e[1], a[0], c[0], e[2], a[1], a[2], e[3], e[4], a[3], c[1], e[5], a[4], a[5], e[6], e[7], c[2], a[6], a[7], c[3]]
    return [e[0], e[1], e[2], c[0], e[3], e[4], c[1], e[5], e[6], c[2], e[7], c[3]]
def k_read(kb, j, slot, sub):
    return ds_read('ds_read_b128', KF[kb][j], aK[j], slot * 16384 + sub * 8192 + kb * 4096, tag=('t', slot, 'K'))
def v_reads(db, slot, sub):
    return [ds_read('ds_read_b64_tr_b16', VF[db][2 * h:2 * h + 2], aV[db], slot * 16384 + sub * 8192 + h * 4096, tag=('t', slot, 'V'))
            for h in range(2)]
def dma_piece(part, slot, idx):
    if part == 'K': d = dma(dK[idx], srdK, sDOFF, idx * 1024, ('t', slot, 'K'), cfg.dma_flags, cfg.dma_cost)
    else: d = dma(dV[idx & 1], srdV, sDOFF, idx * 1024, ('t', slot, 'V'), cfg.dma_flags, cfg.dma_cost)
    d.piece = idx
    return d
def set_m0(part, slot):
    return salu('s_add_u32', M0, sM0B, (65536 if part == 'V' else 0) + slot * 16384)
ALLK = [KF[kb][j] for kb in range(2) for j in range(4)]

def q_loads():
    L = [salu('s_mul_i32', sQO, sHEADQ, QH, scc_w=False)]
    for q in range(6):
        for j in range(4):
            L.append(buf_load('buffer_load_dwordx4', Qf[q][j], vQo, srdQ, sQO, j * 64, tag=('q', q), flags=cfg.q_flags))
        if q < 5: L.append(salu('s_add_u32', sQO, sQO, 4096))
    return L
def q_scale():
    L = []
    for q in range(6):
        L.append(waitv(('q', q)))
        for j in range(4):
            x = Qf[q][j]; t = X8 if (j & 1) == 0 else Y8
            for i in range(4):
                L.append(valu('v_lshlrev_b32', t[2 * i], 16, x[i]))
                L.append(valu('v_and_b32', t[2 * i + 1], sMASK, x[i]))
            for i in range(4):
                L.append(valu('v_pk_mul_f32', t[2 * i:2 * i + 2], t[2 * i:2 * i + 2], sC))
            for i in range(4):
                L.append(valu('v_cvt_pk_bf16_f32', x[i], t[2 * i], t[2 * i + 1]))
    return L
def minit_reset():
    return [valu('v_mov_b32', NEGM[q][3], '0xff800000') for q in range(6)]

def max_valu(q, s=None):
    s = S0[q] if s is None else s; m = NEGM[q][3]; t = RL[q & 1]
    L = [valu('v_max3_f32', m, s[0], s[1], m), valu('v_max3_f32', m, s[2], s[3], m),
         valu('v_max3_f32', m, s[4], s[5], m), valu('v_max3_f32', m, s[6], s[7], m),
         valu('v_mov_b32', t, m), permswap('v_permlane32_swap_b32', t, m), valu('v_max_f32', m, t, m),
         valu('v_mov_b32', t, m), permswap('v_permlane16_swap_b32', t, m), valu('v_max_f32', t, t, m)]
    L += [valu('v_sub_f32', s[i], s[i], t) for i in range(8)]
    L += [valu('v_sub_f32', NEGM[q][i], 0, t) for i in range(4)]
    return L

blk = {}
E = []
E += [salu('s_cmp_ge_u32', None, sWG, NWG), branch('s_cbranch_scc1', 'L_exit')]
E += [raw(f"  s_load_dwordx8 {sARG}, s[0:1], 0", wr=[sARG])]
E += [valu('v_lshrrev_b32', vX, 6, vTID), valu('v_and_b32', vTID, 63, vTID)]
E += [Inst(f"v_readfirstlane_b32 {sW}, {vX}", 'valu', regs_of(vX), regs_of(sW))]
tA, tB, tC, tD = X8[0], X8[1], X8[2], X8[3]
tQ, tG = X8[4], X8[5]
E += [valu('v_and_b32', tQ, 15, vTID), valu('v_lshrrev_b32', tG, 4, vTID)]
E += [smov(sHEAD, sWG), valu('v_lshlrev_b32', tA, 8, tQ), valu('v_xor_b32', tD, tG, tQ)]
E += [salu('s_mul_i32', sT0, sW, 96 * 256, scc_w=False), salu('s_lshl_b32', sM0B, sW, 12), salu('s_lshl_b32', sM0Q, sW, 13), salu('s_add_u32', sM0Q, sM0Q, LDS_RING)]
E += [valu('v_add_u32', tA, sT0, tA), valu('v_lshl_add_u32', vQo, tG, 4, tA)]
E += [valu('v_lshlrev_b32', tB, 8, tG), valu('v_add_u32', tB, sM0B, tB)]
for i in range(4):
    E += [valu('v_xor_b32', tC, 4 * i, tD), valu('v_lshl_add_u32', dK[i], tC, 4, tB)]
def mk_srd(srd, k, nb): return [smov(srd[0], sARG[k]), salu('s_and_b32', srd[1], sARG[k + 1], '0xffff'), smov(srd[2], nb), smov(srd[3], '0x20000')]
E += [smov(srdQ[2], Q_BYTES), smov(srdQ[3], '0x20000'), smov(srdK[2], K_BYTES), smov(srdK[3], '0x20000')]
CPF_EARLY = len(E)
E += [raw("  s_waitcnt lgkmcnt(0)")]
E += [smov(srdQ[0], sARG[0]), salu('s_and_b32', srdQ[1], sARG[1], '0xffff'), smov(srdK[0], sARG[2]), salu('s_and_b32', srdK[1], sARG[3], '0xffff')]
blk['entry0'] = E
E = []
sPC = S(72, 2)
def cpf_code(dst):
    L = [salu('s_lshr_b32', sT1, sWG, 3), salu('s_lshl_b32', sT1, sT1, 2), salu('s_add_u32', sT1, sT1, sW)]
    if cfg.cpf == 1: L += [salu('s_and_b32', sT1, sT1, 31)]
    else: L += [salu('s_cmp_ge_u32', None, sT1, 33 if cfg.ramp else 23), branch('s_cbranch_scc1', 'L_nocpf')]
    L += [salu('s_lshl_b32', sT1, sT1, 10), valu('v_mbcnt_lo_u32_b32', dst[0], -1, 0), valu('v_mbcnt_hi_u32_b32', dst[0], -1, dst[0]),
          valu('v_lshlrev_b32', dst[0], 4, dst[0]), valu('v_add_u32', dst[0], sT1, dst[0]),
          raw(f"  v_min_u32 {dst[0]}, L_max_pre - L_pc - 16, {dst[0]}", kind='valu', rd=[dst[0]], wr=[dst[0]]),
          Inst(f"global_load_dwordx4 {dst[0:4]}, {dst[0]}, {sPC}", 'vmem_load', regs_of(dst[0]) + regs_of(sPC), regs_of(dst[0:4]), tag=('cpf',))]
    if cfg.cpf != 1:
        L[-1].optional = True
        L += [label('L_nocpf')]
    return L
if cfg.cpf == 4:
    blk['entry0'][CPF_EARLY:CPF_EARLY] = [raw(f"  s_getpc_b64 {sPC}", wr=[sPC]), label('L_pc')] + cpf_code(Y8[4:8])
elif cfg.cpf:
    E += [raw(f"  s_getpc_b64 {sPC}", wr=[sPC]), label('L_pc')]
    if cfg.cpf <= 2: E += cpf_code(Y8[4:8])
E += mk_srd(srdV, 4, K_BYTES) + mk_srd(srdO, 6, Q_BYTES)
E += [valu('v_lshlrev_b32', tA, 1, tG), valu('v_xor_b32', tA, tA, tQ)]
for i in range(2):
    E += [valu('v_xor_b32', tC, 8 * i, tA), valu('v_lshl_add_u32', dV[i], tC, 4, tB)]
E += [valu('v_lshlrev_b32', tB, 8, tQ)]
for j in range(4):
    E += [valu('v_xor_b32', tC, 4 * j, tD), valu('v_lshl_add_u32', aK[j], tC, 4, tB)]
E += [valu('v_lshrrev_b32', tA, 2, vTID), valu('v_and_b32', tC, 7, tA), valu('v_lshlrev_b32', tA, 8, tA),
      valu('v_and_b32', tB, 3, vTID), valu('v_lshl_add_u32', tA, tB, 3, tA), valu('v_add_u32', tA, 65536, tA)]
for db in range(8):
    E += [valu('v_xor_b32', tB, db, tC), valu('v_lshl_add_u32', aV[db], tB, 5, tA)]
E += [valu('v_lshlrev_b32', vOo, 4, vTID), valu('v_add_u32', vOo, sT0, vOo)]
E += [smov(sMa, sM0B), salu('s_add_u32', sMb, sM0B, 32768)]
E += [valu('v_lshrrev_b32', tA, 1, tG), valu('v_xor_b32', tA, tA, tQ), valu('v_lshlrev_b32', tA, 4, tA), valu('v_lshl_add_u32', tA, tQ, 8, tA),
      valu('v_and_b32', tB, 1, tG), valu('v_lshl_add_u32', tA, tB, 3, tA), valu('v_add_u32', tA, sM0Q, tA),
      Inst("v_accvgpr_write_b32 a254, " + str(tA), 'valu', regs_of(tA), regs_of(A(254))),
      valu('v_lshlrev_b32', tA, 4, tD), valu('v_lshl_add_u32', tA, tG, 8, tA), valu('v_add_u32', tA, sM0Q, tA),
      Inst("v_accvgpr_write_b32 a255, " + str(tA), 'valu', regs_of(tA), regs_of(A(255)))]
E += [valu('v_mov_b32', tA, '0x3f803f80')]
if cfg.ones1:
    E += [Inst(f"v_cmp_eq_u32 vcc, 0, {tQ}", 'valu', regs_of(tQ), [('x', 'vcc')]),
          Inst(f"v_cndmask_b32 {tA}, 0, {tA}, vcc", 'valu', regs_of(tA) + [('x', 'vcc')], regs_of(tA))]
E += [Inst(f"v_accvgpr_write_b32 {ONES[i]}, {tA}", 'valu', regs_of(tA), regs_of(ONES[i])) for i in range(4)]
E += [smov(sC[0], hex(f2u(SCALE))), smov(sC[1], hex(f2u(SCALE))), smov(sMASK, '0xffff0000'), smov(sTHR, hex(f2u(cfg.thr)))]
E += [salu('s_add_u32', sNEXT, sWG, NWG), smov(sMODE, 0), smov(sFLAGS, 0), smov(sBIT, 1), smov(sFIN, 0)]
E += minit_reset()
if cfg.stamps:
    E += [raw(f"  s_load_dwordx2 {srdW[0:2]}, s[0:1], {32 if cfg.stampdbg >= 0 else 40}", wr=[srdW[0:2]]), raw("  s_waitcnt lgkmcnt(0)"),
          salu('s_and_b32', srdW[1], srdW[1], '0xffff'), smov(srdW[2], 1 << 20), smov(srdW[3], '0x20000'),
          salu('s_lshl_b32', sSTO, sWG, 2), salu('s_add_u32', sSTO, sSTO, sW)]
    if cfg.stampdbg >= 0:
        E += [salu('s_cmp_eq_u32', None, sSTO, cfg.stampdbg), salu('s_cselect_b32', srdW[2], 64, 0, scc_w=False, scc_r=True), smov(sSTO, 0)]
    else: E += [salu('s_lshl_b32', sSTO, sSTO, 9)]
    E += [smov(sSTI, 0), smov(M0, 0), Inst('v_accvgpr_write_b32 a252, 0', 'valu', [], regs_of(A(252))), Inst('v_accvgpr_write_b32 a253, 0', 'valu', [], regs_of(A(253)))]
    E += stamp()
blk['entry'] = E

def q_place(q, early=False):
    if early == 'ramp': return [(sM0Q, 0), (sM0Q, 4096), (sM0B, 65536 + 49152), (sM0Q, 0), (sM0Q, 4096), (sM0B, 49152)][q]
    if q < 2: return (sM0Q, q * 4096) if early else (sM0B, 16384 * (q + 1))
    if q < 4: return (sM0Q, (q - 2) * 4096)
    return (sM0B, 65536 + 49152) if q == 4 else (sM0B, 49152)
def q_load_q(q, restore_m0=None, early=False):
    b, c = q_place(q, early)
    L = [salu('s_add_u32', sQO, sQH, q * 4096), salu('s_add_u32', M0, b, c)]
    for i in range(4):
        d = dma(dK[i], srdQ, sQO, i * 1024, ('q', q), cfg.q_flags, cfg.dma_cost); d.piece = i; L.append(d)
    if restore_m0: L.append(restore_m0)
    return L
def q_lds_read(dsts, q, early=False):
    b, c = q_place(q, early)
    L = [salu('s_add_u32', sT0, b, c)] + [valu('v_add_u32', X8[j], sT0, aK[j]) for j in range(4)]
    for n, d in enumerate(dsts):
        L += [ds_read('ds_read_b128', d[j], X8[j], n * 4096) for j in range(4)]
    return L
def q_unstage_acc(q):
    return [Inst(f"v_accvgpr_read_b32 {Qf[q][j][i]}, {QST[q][j][i]}", 'valu', regs_of(QST[q][j][i]), regs_of(Qf[q][j][i]))
            for j in range(4) for i in range(4)]
def q_scale_q(q):
    L = []
    for j in range(4):
        x = Qf[q][j]; t = X8
        for i in range(4):
            L.append(valu('v_lshlrev_b32', t[2 * i], 16, x[i]))
            L.append(valu('v_and_b32', t[2 * i + 1], sMASK, x[i]))
        for i in range(4):
            L.append(valu('v_pk_mul_f32', t[2 * i:2 * i + 2], t[2 * i:2 * i + 2], sC))
        for i in range(4):
            L.append(valu('v_cvt_pk_bf16_f32', x[i], t[2 * i], t[2 * i + 1]))
    return L
_ti = [0]
def epi_q(q, tsets):
    D = [salu('s_add_u32', sQO2, sOH, q * 4096)]
    D += [Inst(f"v_accvgpr_read_b32 {RL[1]}, {Lb[q][0]}", 'valu', regs_of(Lb[q][0]), regs_of(RL[1]))]
    if cfg.rowsum == 'mf4':
        D += [valu('v_mov_b32', RL[0], RL[1]), permswap('v_permlane32_swap_b32', RL[0], RL[1]), valu('v_add_f32', RL[1], RL[0], RL[1]),
              valu('v_mov_b32', RL[0], RL[1]), permswap('v_permlane16_swap_b32', RL[0], RL[1]), valu('v_add_f32', RL[1], RL[0], RL[1])]
    D += [valu('v_rcp_f32', RL[0], RL[1], trans=True)]
    if q == 0: D += [valu('v_mov_b32', vX, RL[1])]
    else: D += [valu('v_add_f32', vX, vX, RL[1])]
    for dp in range(4):
        if q < 4:
            t = tsets[dp % len(tsets)]
            for bi in range(2):
                o = Oblk(q, 2 * dp + bi)
                D += [Inst(f"v_accvgpr_read_b32 {t[4*bi+i]}, {o[i]}", 'valu', regs_of(o[i]), regs_of(t[4 * bi + i])) for i in range(4)]
        else:
            o = Oblk(q, 2 * dp); t = V(o.n, 8)
        for i in range(4):
            D += [valu('v_pk_mul_f32', t[2 * i:2 * i + 2], t[2 * i:2 * i + 2], RL, extra="op_sel_hi:[1,0]")]
        T = T4[_ti[0] % 2]; _ti[0] += 1
        for i in range(4): D += [valu('v_cvt_pk_bf16_f32', T[i], t[2 * i], t[2 * i + 1])]
        D += [permswap('v_permlane16_swap_b32', T[0], T[2]), permswap('v_permlane16_swap_b32', T[1], T[3])]
        D += [buf_store('buffer_store_dwordx4', T, vOo, srdO, sQO2, dp * 64, flags=cfg.st_flags)]
    return D
aWA, aRA = A(254), A(255)
def acc_read(d, a): return Inst(f"v_accvgpr_read_b32 {d}, {a}", 'valu', regs_of(a), regs_of(d))
def oreg(q, t):
    return Oblk(q, t)
def epi_a(q):
    half = (q & 1) * 4096
    D = [acc_read(RL[1], Lb[q][0])]
    if cfg.ones1:
        D += [valu('v_mov_b32', RL[0], RL[1]), permswap('v_permlane16_swap_b32', RL[0], RL[1]), valu('v_add_f32', RL[1], RL[0], RL[1]),
              valu('v_mov_b32', RL[0], RL[1]), permswap('v_permlane32_swap_b32', RL[0], RL[1]), valu('v_add_f32', RL[1], RL[0], RL[1])]
    D += [valu('v_rcp_f32', RL[0], RL[1], trans=True)]
    D += [valu('v_mov_b32', vX, RL[1]) if q == 0 else valu('v_add_f32', vX, vX, RL[1])]
    D += [acc_read(RL[1], aWA)]
    for dp in range(4):
        if q < 4:
            t = X8
            for bi in range(2):
                o = Oblk(q, 2 * dp + bi)
                D += [acc_read(t[4 * bi + i], o[i]) for i in range(4)]
        else:
            o = Oblk(q, 2 * dp); t = V(o.n, 8)
        mul = [Inst(f"v_pk_mul_f32 {t[2*i:2*i+2]}, {t[2*i:2*i+2]}, {RL} op_sel_hi:[1,0]", 'valu',
                    regs_of(t[2 * i:2 * i + 2]) + regs_of(RL[0]), regs_of(t[2 * i:2 * i + 2])) for i in range(4)]
        D += mul
        T = T4[dp % 2]
        D += [valu('v_cvt_pk_bf16_f32', T[i], t[2 * i], t[2 * i + 1]) for i in range(4)]
        for bi in range(2):
            db = 2 * dp + bi
            D += [ds_write('ds_write_b64', RL[1], T[2 * bi:2 * bi + 2], half)]
            if db < 7: D += [valu('v_xor_b32', RL[1], (db ^ (db + 1)) << 5, RL[1])]
    D += [acc_read(RL[1], aRA)]
    for t in range(4):
        D += [ds_read('ds_read_b128', oreg(q, t), RL[1], half + t * 1024)]
        if t < 3: D += [valu('v_xor_b32', RL[1], (t ^ (t + 1)) << 6, RL[1])]
    return D
def epi_b(q):
    D = [salu('s_add_u32', sQO2, sOH, q * 4096), waitl(*[oreg(q, t) for t in range(4)])]
    D += [buf_store('buffer_store_dwordx4', oreg(q, t), vOo, srdO, sQO2, t * 1024, flags=cfg.st_flags) for t in range(4)]
    return D
def fail_check():
    return [Inst(f"v_cmp_nge_f32 vcc, {sTHR}, {vX}", 'valu', regs_of(sTHR) + regs_of(vX), [('x', 'vcc')]),
            salu('s_cmp_lg_u64', None, 'vcc', 0), salu('s_cselect_b32', sT0, sBIT, 0, scc_w=False, scc_r=True),
            salu('s_or_b32', sFLAGS, sFLAGS, sT0)]

def is_pk(i): return 'v_pk_' in i.text
def vphase(mf, seq, start=0):
    n = len(seq); out = []
    if not mf: return list(seq)
    tot = sum(i.cost for i in seq if isinstance(i, Inst))
    step = (tot * (1.0 - start)) / len(mf)
    acc = 0.0; nxt = tot * start; k = 0
    for idx, i in enumerate(seq):
        if k < len(mf) and acc >= nxt:
            look = [x for x in seq[idx:idx + 3] if isinstance(x, Inst)]
            if not any(is_pk(x) for x in look):
                m = mf[k]; out += (m if isinstance(m, list) else [m]); k += 1; nxt += step
        out.append(i)
        if isinstance(i, Inst): acc += i.cost
    for m in mf[k:]: out += (m if isinstance(m, list) else [m])
    return out

class Cond:
    n = 0
    def __init__(self, first, body):
        self.first, self.body = first, body
        self.lab = f"L_c{Cond.n}"; Cond.n += 1
        self.head = [salu('s_cmp_eq_u32', None, sFIRST, 0), branch('s_cbranch_scc1' if first else 's_cbranch_scc0', self.lab)]
        self.tail = [label(self.lab)]
    def static(self):
        if cfg.ramp: return [] if self.first else self.body
        return self.head + self.body + self.tail
    def dyn(self, first):
        if cfg.ramp: return [] if self.first else self.body
        return self.head + (self.body if first == self.first else []) + self.tail
def flat_static(seq): return [y for x in seq for y in (x.static() if hasattr(x, 'static') else [x])]
def flat_dyn(seq, flag):
    out = []
    for x in seq:
        if hasattr(x, 'dyn'): out += x.dyn(flag)
        elif flag is True and getattr(x, 'nf_only', False): out.append(Ghost(x))
        else: out.append(x)
    return out
def waitv_nf(*tags):
    w = waitv(*tags); w.nf_only = True; return w

def tile_dma(part, t): return [set_m0(part, t)] + [dma_piece(part, t, i) for i in range(4)]
nxt_tile = lambda: [salu('s_add_u32', sDOFF, sDOFF, 16384)]

RE = 'ramp' if cfg.ramp else False
def stream_head():
    return [salu('s_mul_i32', sQH, sHEAD, QH, scc_w=False), salu('s_mul_i32', sT1, sW, 20480, scc_w=False), salu('s_add_u32', sQH, sQH, sT1),
            salu('s_mul_i32', sDOFF, sHEAD, KH, scc_w=False)] + q_load_q(0, early=RE) + tile_dma('K', 0) + q_load_q(1, early=RE)
blk['entry1'] = stream_head()
B = [label('L_stream')]
B += [salu('s_mul_i32', sNB, sNEXT, KH, scc_w=False), salu('s_cmp_lt_u32', None, sNEXT, 512),
      salu('s_cselect_b32', sNB, sNB, OOB, scc_w=False, scc_r=True),
      salu('s_cselect_b32', sQP, 12 // cfg.bt, 99, scc_w=False, scc_r=True), salu('s_add_u32', sQP1, sQP, 1),
      smov(sFIRST, 1), smov(sOH, OOB), smov(sBITN, sBIT), smov(sBIT, 0)]
blk['stream'] = B

zero_init = [valu('v_mov_b32', Oblk(5, db)[i], 0) for db in range(8) for i in range(4)]
zero_init += [Inst(f"v_accvgpr_write_b32 {Lb[5][i]}, 0", 'valu', [], regs_of(Lb[5][i])) for i in range(4)]
FU = [label('L_fuse'), smov(sPASS, 0)] + stamp()
def st2(): return stamp() if cfg.stamps >= 2 else []
GR = [('q', 0), ('t', 0, 'K'), ('q', 1), ('q', 2), ('q', 3), ('t', 0, 'V'), ('q', 4), ('q', 5),
      ('t', 1, 'K'), ('t', 1, 'V'), ('t', 2, 'K'), ('t', 2, 'V')]
def issue(k):
    t = GR[k]
    if t[0] == 'q': return q_load_q(t[1])
    return tile_dma(t[2], t[1]) + (nxt_tile() if t[2] == 'V' else [])
def top(k, extra=()): return [Cond(True, ([waitv(GR[k - 3])] if k <= 10 else []) + issue(k) + list(extra))]
def qscale(q): return [waitl(*Qf[q])] + q_scale_q(q)
class EpiBlk:
    def __init__(self, n, body, last=False):
        self.head = [] if cfg.ramp else [salu('s_cmp_eq_u32', None, sFIRST, 0), branch('s_cbranch_scc0', f'L_epx{n}')]
        self.body = [label(f'L_epi{n}')] + body
        self.chain = [salu('s_cmp_lg_u32', None, sFIN, 0), branch('s_cbranch_scc1', 'L_end' if last else f'L_epi{n+1}')]
        self.tail = [label(f'L_epx{n}')]
    def static(self): return self.head + self.body + self.chain + self.tail
    def dyn(self, first): return self.head + ([] if first else self.body + self.chain) + self.tail
    def fin(self): return self.body + self.chain
EPIS = [EpiBlk(0, epi_a(0) + epi_a(1) + epi_b(0)), EpiBlk(1, epi_a(2) + epi_b(1)), EpiBlk(2, epi_a(3) + epi_b(2)),
        EpiBlk(3, epi_a(4) + epi_b(3) + epi_a(5) + fail_check() + epi_b(4)), EpiBlk(4, epi_b(5), last=True)]
QK0 = lambda q: qk_mfmas(q, S0[q], 0)
PV0 = lambda q: pv_mfmas(q, Pb[q % 2], first=True)
SM0 = lambda q: sm_valu(S0[q], Pb[q % 2])
pv = pv_mfmas(5, Pb[1])
def pv_db(m):
    for db in range(8):
        if VF[db].regs()[0] in m.ab: return db
    return None
mf0 = [([m] + v_reads(pv_db(m), 0, 0)) if pv_db(m) is not None else [m] for m in pv]
for m in mf0:
    for r in m[1:]: r.tag = ('tx', 0, 'V')
def qs01(q): return [Cond(False, q_unstage_acc(q)), Cond(True, [waitl(*Qf[q])])] + q_scale_q(q)
FU += vphase(mf0, top(3, q_lds_read([Qf[0]], 0)) + qs01(0)
             + top(4, [barrier()] + [k_read(kb, j, 0, 0) for kb in range(2) for j in range(4)])
             + top(5, q_lds_read([Qf[1]], 1)) + qs01(1)) + st2()
FU += [waitl(*ALLK)]
FU += vphase(QK0(0) + QK0(1), top(6) + top(7) + [waitv_nf(('q', 3))] + q_lds_read([Qf[2], Qf[3]], 2) + qscale(2)
             + top(8, [barrier()] + [r for db in range(8) for r in v_reads(db, 0, 0)]) + qscale(3)) + st2()
FU += vphase(QK0(2), max_valu(0) + SM0(0) + max_valu(1) + SM0(1)) + st2()
FU += [EPIS[0]] + st2()
FU += [waitl(*VF)]
FU += vphase(QK0(3) + PV0(0), top(9) + [waitv_nf(('q', 4))] + q_lds_read([Qf[4]], 4) + max_valu(2) + qscale(4)) + [EPIS[1]] + st2()
FU += vphase(QK0(4) + PV0(1), top(10) + [waitv_nf(('q', 5))] + q_lds_read([Qf[5]], 5) + SM0(2) + qscale(5) + max_valu(3)) + [EPIS[2]] + st2()
qk5 = QK0(5); qk5 = [[qk5[kb * 4 + j], k_read(kb, j, 0, 1)] for kb in range(2) for j in range(4)]
FU += vphase(qk5 + PV0(2), SM0(3) + max_valu(4) + top(11, cpf_code(T4[1]) if cfg.cpf == 3 else [])) + [EPIS[3]] + st2()
FU += vphase(PV0(3), SM0(4) + max_valu(5)) + [EPIS[4]] + st2()
FU += [waitl(*ALLK)]
FU += vphase(qk_mfmas(0, Sb[0], NEGM[0]) + PV0(4),
             [set_m0('K', 3), dma_piece('K', 3, 0)] + SM0(5) + [dma_piece('K', 3, 1)] + zero_init[:12] + [dma_piece('K', 3, 2)] + zero_init[12:24]
             + [dma_piece('K', 3, 3)] + zero_init[24:] + [set_m0('V', 3), dma_piece('V', 3, 0)])
if cfg.otouch:
    FU += [salu('s_mul_i32', sT0, sHEAD, QH, scc_w=False), salu('s_mul_i32', sT1, sW, 96 * 256, scc_w=False), salu('s_add_u32', sT0, sT0, sT1),
           Inst(f"buffer_load_dword {V(0)}, off, {srdO}, {sT0}", 'vmem_load', regs_of(srdO) + regs_of(sT0), regs_of(V(0)), tag=('ot',))]
if cfg.sched == 2: FU += [valu('v_exp_f32', Sb[0][i], Sb[0][i], trans=True) for i in range(cfg.hv)]
FU += [smov(sFIRST, 0), smov(sBIT, sBITN), salu('s_mul_i32', sQH, sNEXT, QH, scc_w=False), salu('s_mul_i32', sT1, sW, 20480, scc_w=False), salu('s_add_u32', sQH, sQH, sT1)] + stamp() + [branch('s_branch', 'L_body1')]
blk['fuse'] = FU

RP = [label('L_ramp'), smov(sPASS, 0), smov(sFIRST, 0), smov(sBIT, sBITN)] + stamp()
U = [(n, q) for n in range(4) for q in range(3)] + [(n, q) for n in range(4) for q in range(3, 6)] + [(4, 0)]
def rq_load(q): return q_load_q(q, early='ramp')
def rq_fetch(q): return [waitv(('q', q))] + q_lds_read([Qf[q]], q, early='ramp')
def tV(t): return tile_dma('V', t) + nxt_tile()
kall = lambda n: [k_read(kb, j, n // 2, n % 2) for kb in range(2) for j in range(4)]
RP += rq_fetch(0) + rq_load(2) + qscale(0)
RP += [waitv(('t', 0, 'K')), barrier()] + kall(0) + tV(0)
RP += rq_fetch(1) + tile_dma('K', 1)
extra = {
    -1: ([], qscale(1) + rq_fetch(2) + tV(1)),
    0: ([], qscale(2) + [waitv(('t', 0, 'V')), barrier()] + [r for db in range(8) for r in v_reads(db, 0, 0)] + rq_load(3)),
    2: ([], [waitv(('t', 1, 'K'))] + rq_load(4)),
    4: (rq_load(5), []),
    7: ([], [waitv(('q', 3))] + tile_dma('K', 2)),
    9: (rq_fetch(3), tV(2)),
    10: (rq_fetch(4), qscale(3)),
    11: (rq_fetch(5), qscale(4)),
    12: ([], qscale(5) + tile_dma('K', 3)),
    14: ([], tV(3)),
    22: ([], [set_m0('K', 0)] + [dma_piece('K', 0, i) for i in range(4)]),
    23: ([set_m0('V', 0)] + [dma_piece('V', 0, i) for i in range(2)], [dma_piece('V', 0, i) for i in range(2, 4)] + nxt_tile() + [set_m0('K', 1), dma_piece('K', 1, 0)]),
}
needK = True; needV = True
heavy = {-1, 0, 1, 2, 9, 10, 11, 12, 13, 14}
def r_items(i):
    S_, P_ = Sb[i % 2], Pb[i % 2]
    return ([(x, valu('v_exp_f32', S_[x], S_[x], trans=True)) for x in range(8)],
            [(x, valu('v_cvt_pk_bf16_f32', P_[x], S_[2 * x], S_[2 * x + 1])) for x in range(4)])
RI = {i: r_items(i) for i in range(0, 24)}
def vrel(i): return 1 <= i <= 23 and U[i][0] != U[i - 1][0]
def rho(i): return 2 if (vrel(i) and i not in heavy and (i - 1) not in heavy) else 0
for i in range(-1, 24):
    pre = []; mf = []; fb = []
    n1, q1 = U[i + 1]
    light = i not in heavy
    if i == 4: pre += [waitv(('t', 1, 'V')), barrier()]
    if i == 22: pre += [waitl(*VF), waitv(('t', 2, 'V')), barrier()]; needV = False
    if needK: pre += [waitl(*ALLK)]; needK = False
    qk = qk_mfmas(q1, Sb[(i + 1) % 2], 0 if n1 == 0 else NEGM[q1])
    if i + 2 < len(U) and U[i + 2][0] != n1:
        kr = kall(U[i + 2][0]); needK = True
        if light: fb += [(2 * x + 1, kr[2 * x:2 * x + 2]) for x in range(4)]
        else: qk = [[qk[x], kr[x]] for x in range(8)]
    mf += qk
    if i >= 1:
        n0, q0 = U[i - 1]
        pvm = pv_mfmas(q0, Pb[(i - 1) % 2], first=(n0 == 0))
        rel = vrel(i)
        if light:
            if needV: fb.append((6, [waitl(*VF)])); needV = False
            if rel: fb += [(8 + x, v_reads(pv_db(m), U[i][0] // 2, U[i][0] % 2)) for x, m in enumerate(pvm) if pv_db(m) is not None]
            pl = pvm
        else:
            pl = [([m] + v_reads(pv_db(m), U[i][0] // 2, U[i][0] % 2)) if (rel and pv_db(m) is not None) else [m] for m in pvm]
            if needV: pl[0] = [waitl(*VF)] + pl[0]; needV = False
        if rel: needV = True
        mf += pl
    eh, et = extra.get(i, ([], []))
    if light:
        ex = list(eh) + list(et); gp = 2
        while ex:
            grp = []
            while ex and (not grp or grp[-1].kind != 'dma'): grp.append(ex.pop(0))
            fb.append((min(gp, 16), grp)); gp += 2
        hoist = RI[i + 1][0][:rho(i + 1)] if i + 1 <= 23 else []
        RP += phase2(pre, mf, RI[i][0][rho(i):], RI[i][1], fb, hoist)
    else:
        seq = list(eh)
        if i >= 0:
            n, q = U[i]
            if n == 0: seq += max_valu(q, Sb[i % 2])
            seq += sm_valu(Sb[i % 2], Pb[i % 2])
        seq += et
        RP += pre + vphase(mf, seq)
    if cfg.stamps >= 2 and i in (-1, 0, 2, 5, 8, 11, 13, 17): RP += stamp()
RP += [valu('v_exp_f32', Sb[0][i], Sb[0][i], trans=True) for i in range(cfg.hv)]
RP += [salu('s_mul_i32', sQH, sNEXT, QH, scc_w=False), salu('s_mul_i32', sT1, sW, 20480, scc_w=False), salu('s_add_u32', sQH, sQH, sT1)]
RP += stamp() + [branch('s_branch', 'L_body2')]
blk['ramp'] = RP if cfg.ramp else []

class CondQ:
    n = 0
    def __init__(self, body, dp):
        self.body = body; self.lab = f"L_q{CondQ.n}"; CondQ.n += 1; self.dp = dp
        self.head = [salu('s_cmp_eq_u32', None, sPASS, sQP if dp == 0 else sQP1), branch('s_cbranch_scc0', self.lab)]
        self.tail = [label(self.lab)]
        self.cost = 8
    def static(self): return self.head + self.body + self.tail
    def dyn(self, flag): return self.head + (self.body if flag == self.dp else []) + self.tail

class CondL:
    def __init__(self, body):
        self.body = body; self.lab = "L_nl"
        self.head = [salu('s_cmp_eq_u32', None, sPASS, 3), branch('s_cbranch_scc1', self.lab)]
        self.tail = [label(self.lab)]
        self.cost = 16
    def static(self): return self.head + self.body + self.tail
    def dyn(self, flag): return self.head + ([] if LASTPASS[0] else self.body) + self.tail
LASTPASS = [False]
BT = cfg.bt
NIT = 16 // BT
def set_m0r(part, r):
    if BT == 4: return set_m0(part, r)
    return salu('s_add_u32', M0, sMa if r < 2 else sMb, (65536 if part == 'V' else 0) + (r & 1) * 16384)
def k_read_r(kb, j, r, sub):
    d = k_read(kb, j, r % BT if BT == 2 else r, sub); d.tag = ('t', r, 'K'); return d

def HO(lp): return {0: cfg.hv, 6: cfg.hv, 4: cfg.hk, 10: cfg.hk}.get(lp, 0)
_smi = {}
def sm_items(k, lp):
    if (k, lp) not in _smi:
        q = lp % 6; Ssrc, P = Sb[q % 2], Pb[q % 2]
        _smi[(k, lp)] = ([(i, valu('v_exp_f32_e64' if cfg.exp64 else 'v_exp_f32', Ssrc[i], Ssrc[i], trans=True)) for i in range(8)],
                         [(i, valu('v_cvt_pk_bf16_f32', P[i], Ssrc[2 * i], Ssrc[2 * i + 1])) for i in range(4)])
    return _smi[(k, lp)]
def body_phase(k, lp):
    sub, q = divmod(lp, 6)
    qn = (q + 1) % 6; qp = (q - 1) % 6
    pre = []; fb = []
    mf = qk_mfmas(qn, Sb[(q + 1) % 2], NEGM[qn]) + pv_mfmas(qp, Pb[(q - 1) % 2])
    fa = sm_valu(Sb[q % 2], Pb[q % 2], X8[q] if cfg.rowsum == 'valu' else None)
    if q == 4:
        slot, s2 = (k, 1) if sub == 0 else ((k + 1) % 4, 0)
        if sub == 1: pre += [waitv(('t', slot, 'V')), barrier()]
        for kb in range(2):
            for j in range(4): fb.append((kb * 4 + j, [k_read_r(kb, j, slot, s2)]))
    if q == 5: pre += [waitl(*ALLK)]
    if q == 0:
        for gi, m in enumerate(mf):
            if gi >= 8 and pv_db(m) is not None: fb.append((gi, v_reads(pv_db(m), k, sub)))
    if q == 1: fb.append((7, [waitl(*VF)]))
    x3 = (k + 3) % 4
    G = cfg.dgap
    if cfg.dgrp == 1:
        if lp in (1, 2, 3): fb.append((G, [dma_piece('K', x3, lp)]))
        if lp == 5: fb.append((G - 1, [set_m0r('V', x3)])); fb.append((G, [dma_piece('V', x3, 0)]))
        if lp in (7, 8, 9): fb.append((G, [dma_piece('V', x3, lp - 6)]))
    elif cfg.dgrp == 2:
        if lp == 2: fb.append((G, [dma_piece('K', x3, 1), dma_piece('K', x3, 2), dma_piece('K', x3, 3)]))
        if lp == 5: fb.append((G - 1, [set_m0r('V', x3)])); fb.append((G, [dma_piece('V', x3, 0)]))
        if lp == 8: fb.append((G, [dma_piece('V', x3, 1), dma_piece('V', x3, 2), dma_piece('V', x3, 3)]))
    assert BT == 4
    cur_m0 = set_m0r('K', x3) if lp < 5 else set_m0r('V', x3)
    if (k, lp) == (0, 8): fb.append((12, [CondQ(q_load_q(0, cur_m0, early=True), 0)]))
    if (k, lp) == (1, 2): fb.append((12, [CondQ(q_load_q(1, cur_m0, early=True), 0)]))
    if (k, lp) == (1, 9): fb.append((12, [CondQ([waitv(('q', 1))] + q_lds_read([QST[0], QST[1]], 0, early=True), 0)]))
    if (k, lp) == (2, 2): fb.append((12, [CondQ([waitl(*QST[0], *QST[1])] + q_load_q(2, cur_m0), 0)]))
    if (k, lp) == (2, 8): fb.append((12, [CondQ(q_load_q(3, cur_m0), 0)]))
    if (k, lp) == (3, 10): fb.append((12, [CondQ(q_load_q(4), 0)]))
    if BT == 2 and k == 1:
        if lp == 7:
            for j in range(4): fb.append((11 + j, [valu('v_xor_b32', aK[j], 32768, aK[j])]))
        if lp in (8, 9):
            for d in range(4): fb.append((9 + 2 * d if lp == 9 else 9 + d // 2 + 6 * (d // 2), [valu('v_xor_b32', aV[4 * (lp - 8) + d], 32768, aV[4 * (lp - 8) + d])]))
    if lp == 11:
        upd = [salu('s_add_u32', sDOFF, sDOFF, 16384)]
        if k == 0:
            upd += [salu('s_cmp_eq_u32', None, sPASS, 12 // BT), salu('s_cselect_b32', sDOFF, sNB, sDOFF, scc_w=False, scc_r=True)]
        fb.append((0, upd[:2]))
        if len(upd) > 2: fb.append((1, upd[2:]))
        if k == 3:
            fb.append((2, [CondL([set_m0r('K', k), dma_piece('K', k, 0)])]))
            fb.append((12, [CondQ(q_load_q(5), 0)]))
        else: fb.append((max(G - 1, 1), [set_m0r('K', k)])); fb.append((max(G, 2), [dma_piece('K', k, 0)]))
        if BT == 2 and k == 1:
            fb.append((13, [salu('s_xor_b32', sMa, sMa, 32768), salu('s_xor_b32', sMb, sMb, 32768)]))
    if cfg.sched == 1: return phase(pre, mf, fa, fb)
    ex, cv = sm_items(k, lp)
    nk, nlp = (k, lp + 1) if lp < 11 else ((k + 1) % BT, 0)
    return phase2(pre, mf, ex[HO(lp):], cv, fb, sm_items(nk, nlp)[0][:HO(nlp)])

BA = [raw(".p2align 6"), label('L_body0')]
for lp in range(6): BA += body_phase(0, lp)
blk['body_a'] = BA
BB = [label('L_body1')]
for lp in range(6, 12): BB += body_phase(0, lp)
for lp in range(12): BB += body_phase(1, lp)
blk['body_b'] = BB
BB = [label('L_body2')]
for k in range(2, BT):
    for lp in range(12): BB += body_phase(k, lp)
BB += stamp() + [salu('s_add_u32', sPASS, sPASS, 1), salu('s_cmp_lt_u32', None, sPASS, NIT), branch('s_cbranch_scc1', 'L_body0')]
blk['body_c'] = BB

D1 = [salu('s_mul_i32', sOH, sHEAD, QH, scc_w=False) if not cfg.nostore else smov(sOH, OOB), salu('s_cmp_ge_u32', None, sNEXT, 512), branch('s_cbranch_scc1', 'L_drain')]
blk['bnd_chk'] = D1
N = [smov(sHEAD, sNEXT), smov(sNEXT, '0xffff'), smov(sNB, OOB), smov(sBITN, 2), smov(sQP, 99), smov(sQP1, 99)] + minit_reset() + [branch('s_branch', 'L_fuse')]
blk['bnd_next'] = N
D = [label('L_drain')] + pv_mfmas(5, Pb[1]) + [smov(sFIN, 1), branch('s_branch', 'L_epi0')]
blk['drain'] = D

F = [label('L_end')] + stamp() + [smov(sFIN, 0)]
F += [valu('v_mov_b32', tA, sFLAGS), valu('v_mov_b32', tB, sM0Q), valu('v_mov_b32', tC, LDS_RING),
      ds_write('ds_write_b32', tB, tA, 0), raw("  s_waitcnt lgkmcnt(0)"), barrier()] + [
      ds_read('ds_read_b32', Y8[i], tC, i * 8192) for i in range(4)] + [raw("  s_waitcnt lgkmcnt(0)"),
      valu('v_or_b32', tA, Y8[0], Y8[1]), valu('v_or3_b32', tA, tA, Y8[2], Y8[3]),
      Inst(f"v_readfirstlane_b32 {sFLAGS}, {tA}", 'valu', regs_of(tA), regs_of(sFLAGS)),
      ] + stamp() + stamp_dump() + [salu('s_cmp_eq_u32', None, sFLAGS, 0), branch('s_cbranch_scc1', 'L_exit')]
blk['end'] = F
M = [label('L_max_pre'), raw('  s_waitcnt vmcnt(0)'), barrier()]
M += [salu('s_and_b32', sT0, sFLAGS, 1), salu('s_add_u32', sT1, sWG, NWG), salu('s_cmp_lg_u32', None, sT0, 0),
      salu('s_cselect_b32', sHEAD, sWG, sT1, scc_w=False, scc_r=True),
      salu('s_cselect_b32', sT0, 1, 2, scc_w=False, scc_r=True), salu('s_andn2_b32', sFLAGS, sFLAGS, sT0),
      smov(sMODE, 1), smov(sBIT, 0), smov(sNEXT, '0xffff')]
M += [salu('s_mul_i32', sQO, sHEAD, QH, scc_w=False)]
for q in range(6):
    M += [buf_load('buffer_load_dwordx4', Qf[q][j], vQo, srdQ, sQO, j * 64, tag=('mq',)) for j in range(4)]
    M += [salu('s_add_u32', sQO, sQO, 4096)]
M += [waitv(('mq',))]
for q in range(6): M += q_scale_q(q)
M += minit_reset()
M += [valu('v_mbcnt_lo_u32_b32', tC, -1, 0), valu('v_mbcnt_hi_u32_b32', tC, -1, tC),
      valu('v_and_b32', tA, 15, tC), valu('v_lshrrev_b32', tB, 4, tC), valu('v_lshlrev_b32', tA, 8, tA),
      valu('v_lshl_add_u32', vX, tB, 4, tA)]
M += [salu('s_mul_i32', sT1, sHEAD, KH, scc_w=False), smov(sIT, 0)]
blk['max_pre'] = M
ML = [label('L_maxloop')]
ML += [buf_load('buffer_load_dwordx4', KF[0][j], vX, srdK, sT1, j * 64, tag=('mk',)) for j in range(4)]
ML += [waitv(('mk',))]
MS = [Sb[0][0:4], Sb[0][4:8], Sb[1][0:4], Sb[1][4:8], X8[0:4], X8[4:8]]
for q in range(6):
    for j in range(4): ML.append(mfma16(MS[q], KF[0][j], Qf[q][j], 0 if j == 0 else MS[q]))
for q in range(6):
    m = NEGM[q][3]
    ML += [valu('v_max3_f32', m, MS[q][0], MS[q][1], m), valu('v_max3_f32', m, MS[q][2], MS[q][3], m)]
ML += [salu('s_add_u32', sT1, sT1, 4096), salu('s_add_u32', sIT, sIT, 1), salu('s_cmp_lt_u32', None, sIT, 64),
       branch('s_cbranch_scc1', 'L_maxloop')]
blk['max_loop'] = ML
blk['max_post'] = stream_head() + [branch('s_branch', 'L_stream')]
blk['exit'] = [label('L_exit'), raw("  s_endpgm")]

def head_trace(first, has_next):
    rp = first and cfg.ramp
    t = list(blk['ramp']) if rp else flat_dyn(blk['fuse'], first)
    for p in range(NIT):
        qf = (p - 12 // BT) if (has_next and p >= 12 // BT) else None
        LASTPASS[0] = (p == NIT - 1)
        b = flat_dyn((blk['body_a'] if p else []) + ([] if (rp and p == 0) else blk['body_b']) + blk['body_c'], qf)
        sh = (p * BT) % 4
        t += [Remap(i, sh) for i in b] if sh else b
    t += blk['bnd_chk'] + (blk['bnd_next'] if has_next else blk['drain'] + [i for e in EPIS for i in e.fin()] + blk['end'])
    return t
trace = blk['entry0'] + blk['entry1'] + blk['entry'] + blk['stream'] + head_trace(True, True) + head_trace(False, False)
for _ in range(2):
    trace += blk['max_pre'] + blk['max_loop'] * 3 + blk['max_post'] + blk['stream'] + head_trace(True, False)
trace += blk['exit']
for b in blk: blk[b] = flat_static(blk[b])

written = {('s', 0), ('s', 1), ('s', 2), ('v', 0)}
for i in trace:
    for r in i.rd:
        if r not in written and (r[0] in 'sx' or i.kind in ('ds_read', 'dma', 'vmem_load')):
            print("UNINIT read", r, "in", i.render().strip()); written.add(r)
    written.update(i.wr)
resolve_waits(trace)
for it in range(10):
    n = check_trace(trace, fix=True, verbose=False)
    if n == 0: break
    if n >= 1000: sys.exit("pending-load errors")
assert check_trace(trace, fix=False) == 0
assert check_lds_protocol(trace)

order = ['entry0', 'entry1', 'entry', 'stream', 'ramp', 'fuse', 'body_a', 'body_b', 'body_c', 'bnd_chk', 'bnd_next', 'drain', 'end',
         'max_pre', 'max_loop', 'max_post', 'exit']
NAME = "standalone__mha_softmax__near_ridge_kernel"
out = f"""; MHA forward (B16 H32 Sq384 Sk1024 D128, bf16) - generated by gen/gen.py (hand-written generator)
; @launch grid=({NWG},1,1) block=(256,1,1) lds={LDS_TOTAL}
.amdgcn_target "amdgcn-amd-amdhsa--gfx950"
.text
.globl {NAME}
.p2align 8
.type {NAME},@function
{NAME}:
"""
for b in order:
    out += f"; ---- {b}\n"
    for i in blk[b]: out += i.render()
out += f""".section .rodata,"a"
.p2align 6
.amdhsa_kernel {NAME}
  .amdhsa_next_free_vgpr 512
  .amdhsa_next_free_sgpr 80
  .amdhsa_accum_offset 256
  .amdhsa_group_segment_fixed_size 0
  .amdhsa_kernarg_size 48
  .amdhsa_user_sgpr_count 2
  .amdhsa_user_sgpr_kernarg_segment_ptr 1
  .amdhsa_system_sgpr_workgroup_id_x 1
.end_amdhsa_kernel
"""
open(sys.argv[1], 'w').write(out)
nn = sum(i.pre_nop for b in ('body_a', 'body_b', 'body_c') for i in blk[b])
print("emitted", sys.argv[1], "insts:", {b: len(blk[b]) for b in order}, "body nops:", nn)
```

```python
import sys, math, struct
from asmlib import *

def f2u(f): return struct.unpack('<I', struct.pack('<f', f))[0]

class Cfg:
    dma_flags = " nt"
    q_flags = " nt"
    st_flags = " nt"
    dma_cost = 8
    thr = 2.0 ** 32
    stamps = 0
    otouch = 0
    nostore = 0
    rowsum = 'mfma'
    bt = 4
    stampdbg = -1
    sched = 2
    hv = 2
    hk = 4
    dgrp = 1
    dgap = 2
    exp64 = 0
    ones1 = 0
    cpf = 2
    ramp = 1
    tail = 1
    q45late = 0
cfg = Cfg()
for a in sys.argv[2:]:
    k, v = a.split('=', 1)
    cur = getattr(cfg, k)
    setattr(cfg, k, type(cur)(v) if not isinstance(cur, str) else v.replace('_', ' '))

NWG = 256
QH = 98304
KH = 262144
Q_BYTES = 512 * QH
K_BYTES = 512 * KH
OOB = 0x10000000
LDS_RING = 131072
LDS_TOTAL = LDS_RING + 32768
SCALE = (128 ** -0.5) * math.log2(math.e)

vTID = V(0)
aK = [V(1 + j) for j in range(4)]
aV = [V(5 + d) for d in range(8)]
dK = [V(13 + i) for i in range(4)]
dV = [V(17 + i) for i in range(2)]
vQo, vOo = V(19), V(20)
vX = V(21)
RL = V(22, 2)
T4 = [V(24, 4), V(28, 4)]
Sb = [V(32, 8), V(40, 8)]
Pb = [V(48, 4), V(52, 4)]
NEGM = [V(56 + 4 * q, 4) for q in range(6)]
Qf = [[V(80 + (q * 4 + j) * 4, 4) for j in range(4)] for q in range(6)]
def Oblk(q, db):
    if q < 4: return A((q * 8 + db) * 4, 4)
    return V(176 + ((q - 4) * 8 + db) * 4, 4)
X8 = V(240, 8)
Y8 = V(248, 8)
KF = [[A(128 + (kb * 4 + j) * 4, 4) for j in range(4)] for kb in range(2)]
VF = [A(160 + db * 4, 4) for db in range(8)]
Lb = [A(192 + 4 * q, 4) for q in range(6)]
ONES = A(216, 4)
S0 = [Sb[0], Y8, Sb[1], Sb[0], Y8, Sb[1]]
QST = [[A(220 + (q * 4 + j) * 4, 4) for j in range(4)] for q in range(2)]
vQs = V(0)

srdQ, srdK, srdV, srdO = S(8, 4), S(12, 4), S(16, 4), S(20, 4)
sWG = S(2)
sW, sM0B, sHEAD, sNEXT, sDOFF, sNB, sPASS, sMODE, sFLAGS, sQO, sBIT, sTHR = [S(24 + i) for i in range(12)]
sARG = S(36, 8)
sC = S(44, 2)
sMASK, sFIRST, sT0, sT1, sIT, sOH, sQH, sQP = S(46), S(47), S(48), S(49), S(50), S(51), S(62), S(63)
M0 = 'm0'
sQO2, sM0Q, sBITN, M0S, sFIN, sMa, sMb, sQP1 = [S(64 + i) for i in range(8)]
sTP = S(74)

def smov(d, x): return salu('s_mov_b32', d, x, scc_w=False)
srdW = S(56, 4); sST = S(52, 2); sSTO = S(54); sST2 = S(60, 2)
sSTI = S(55)
def stamp():
    if not cfg.stamps: return []
    t0, t1 = T4[0][0], T4[0][1]
    def acc_r(d, a): return Inst(f"v_accvgpr_read_b32 {d}, {a}", 'valu', regs_of(a), regs_of(d))
    def acc_w(a, d): return Inst(f"v_accvgpr_write_b32 {a}, {d}", 'valu', regs_of(d), regs_of(a))
    def wl(d, s): return Inst(f"v_writelane_b32 {d}, {s}, {sSTI}", 'valu', regs_of(d) + regs_of(s) + regs_of(sSTI), regs_of(d))
    return [raw(f"  s_memtime {sST}", wr=[sST]), raw(f"  s_memrealtime {sST2}", wr=[sST2]), acc_r(t0, A(252)), acc_r(t1, A(253)),
            raw("  s_waitcnt lgkmcnt(0)"), smov(M0S, M0), smov(M0, sSTI), nop(1),
            Inst(f"v_writelane_b32 {t0}, {sST[0]}, m0", 'valu', regs_of(t0), regs_of(t0)),
            Inst(f"v_writelane_b32 {t1}, {sST2[0]}, m0", 'valu', regs_of(t1), regs_of(t1)),
            smov(M0, M0S), acc_w(A(252), t0), acc_w(A(253), t1), salu('s_add_u32', sSTI, sSTI, 1)]
def stamp_dump():
    if not cfg.stamps: return []
    t = T4[0]
    st = Inst(f"buffer_store_dwordx2 {t[0:2]}, {t[2]}, {srdW}, {sSTO} offen", 'vmem_store', regs_of(t[0:3]) + regs_of(srdW) + regs_of(sSTO), [])
    st.sdata = regs_of(t[0:2])
    if cfg.stampdbg >= 0:
        st = Inst(f"buffer_store_dword {t[1]}, {t[2]}, {srdW}, {sSTO} offen", 'vmem_store', regs_of(t[0:3]) + regs_of(srdW) + regs_of(sSTO), [])
        st.sdata = regs_of(t[1])
        return [Inst(f"v_accvgpr_read_b32 {t[1]}, a253", 'valu', regs_of(A(253)), regs_of(t[1])),
                valu('v_mbcnt_lo_u32_b32', t[2], -1, 0), valu('v_mbcnt_hi_u32_b32', t[2], -1, t[2]), valu('v_lshlrev_b32', t[2], 2, t[2]), st]
    return [Inst(f"v_accvgpr_read_b32 {t[0]}, a252", 'valu', regs_of(A(252)), regs_of(t[0])),
            Inst(f"v_accvgpr_read_b32 {t[1]}, a253", 'valu', regs_of(A(253)), regs_of(t[1])),
            valu('v_mbcnt_lo_u32_b32', t[2], -1, 0), valu('v_mbcnt_hi_u32_b32', t[2], -1, t[2]), valu('v_lshlrev_b32', t[2], 3, t[2]), st]

def phase(pre, mf, fa, fb=(), fa_start=0):
    out = list(pre)
    fb = sorted(fb, key=lambda x: x[0])
    total = sum(i.cost for i in fa) + sum(i.cost for _, l in fb for i in l)
    ng = len(mf)
    budget = max(8, int(math.ceil(total / max(ng - fa_start, 1) / 4.0)) * 4)
    ia = 0
    fb = list(fb)
    for g, m in enumerate(mf):
        out.append(m)
        rem = budget
        while fb and fb[0][0] <= g:
            c = sum(i.cost for i in fb[0][1])
            if c <= rem or rem == budget:
                out += fb[0][1]; rem -= c; fb.pop(0)
            else: break
        while g >= fa_start and ia < len(fa) and fa[ia].cost <= rem:
            out.append(fa[ia]); rem -= fa[ia].cost; ia += 1
    for _, l in fb: out += l
    out += fa[ia:]
    return out

def phase2(pre, mf, exps, cvts, fb, hoist):
    out = list(pre)
    fb = sorted(fb, key=lambda x: x[0])
    exps = list(exps); cvts = list(cvts); hoist = list(hoist)
    done = {i: -1 for i in range(8)}
    for i, _ in exps: done.pop(i)
    ng = len(mf)
    for g, m in enumerate(mf):
        out.append(m)
        rem = 8
        while fb and fb[0][0] <= g:
            c = sum(i.cost for i in fb[0][1])
            if c <= rem or rem == 8:
                out += fb[0][1]; rem -= c; fb.pop(0)
            else: break
        def ready_cvt():
            for n, (i, c) in enumerate(cvts):
                if done.get(2 * i, g) < g and done.get(2 * i + 1, g) < g: return n
            return None
        while rem > 0:
            rc = ready_cvt()
            nready = sum(1 for (i, c) in cvts if done.get(2 * i, g) < g and done.get(2 * i + 1, g) < g)
            if rem == 8 and exps and not (nready >= 2 and len(exps) <= cfg_tail(g, ng, exps, cvts)):
                i, e = exps.pop(0); out.append(e); done[i] = g; rem -= 8
            elif rc is not None:
                out.append(cvts.pop(rc)[1]); rem -= 4
            elif rem == 8 and hoist and g >= (9 if hoist[0][0] < 4 else 12):
                out.append(hoist.pop(0)[1]); rem -= 8
            else: break
    for _, l in fb: out += l
    out += [e for _, e in exps] + [c for _, c in cvts] + [e for _, e in hoist]
    return out
def cfg_tail(g, ng, exps, cvts): return 4

def qk_mfmas(q, Sdst, cinit):
    L = []
    for kb in range(2):
        d = Sdst[4 * kb:4 * kb + 4]
        for j in range(4):
            L.append(mfma16(d, KF[kb][j], Qf[q][j], (cinit if j == 0 else d)))
    return L
def pv_mfmas(q, P, first=False):
    L = [mfma16(Oblk(q, db), VF[db], P, 0 if first else Oblk(q, db)) for db in range(8)]
    if cfg.rowsum == 'mf4':
        L.insert(4, mfma4(Lb[q], ONES[0:2], P[0:2], 0 if first else Lb[q]))
        L.append(mfma4(Lb[q], ONES[0:2], P[2:4], Lb[q]))
    elif cfg.rowsum == 'mfma' or first: L.append(mfma16(Lb[q], ONES, P, 0 if first else Lb[q]))
    return L
def sm_valu(Ssrc, P, lacc=None):
    e = [valu('v_exp_f32', Ssrc[i], Ssrc[i], trans=True) for i in range(8)]
    c = [valu('v_cvt_pk_bf16_f32', P[i], Ssrc[2 * i], Ssrc[2 * i + 1]) for i in range(4)]
    if lacc is not None:
        a = [valu('v_add_f32', lacc, lacc, Ssrc[i]) for i in range(8)]
        return [e[0], e[1], a[0], c[0], e[2], a[1], a[2], e[3], e[4], a[3], c[1], e[5], a[4], a[5], e[6], e[7], c[2], a[6], a[7], c[3]]
    return [e[0], e[1], e[2], c[0], e[3], e[4], c[1], e[5], e[6], c[2], e[7], c[3]]
def k_read(kb, j, slot, sub):
    return ds_read('ds_read_b128', KF[kb][j], aK[j], slot * 16384 + sub * 8192 + kb * 4096, tag=('t', slot, 'K'))
def v_reads(db, slot, sub):
    return [ds_read('ds_read_b64_tr_b16', VF[db][2 * h:2 * h + 2], aV[db], slot * 16384 + sub * 8192 + h * 4096, tag=('t', slot, 'V'))
            for h in range(2)]
def dma_piece(part, slot, idx):
    if part == 'K': d = dma(dK[idx], srdK, sDOFF, idx * 1024, ('t', slot, 'K'), cfg.dma_flags, cfg.dma_cost)
    else: d = dma(dV[idx & 1], srdV, sDOFF, idx * 1024, ('t', slot, 'V'), cfg.dma_flags, cfg.dma_cost)
    d.piece = idx
    return d
def set_m0(part, slot):
    return salu('s_add_u32', M0, sM0B, (65536 if part == 'V' else 0) + slot * 16384)
ALLK = [KF[kb][j] for kb in range(2) for j in range(4)]

def q_loads():
    L = [salu('s_mul_i32', sQO, sHEADQ, QH, scc_w=False)]
    for q in range(6):
        for j in range(4):
            L.append(buf_load('buffer_load_dwordx4', Qf[q][j], vQo, srdQ, sQO, j * 64, tag=('q', q), flags=cfg.q_flags))
        if q < 5: L.append(salu('s_add_u32', sQO, sQO, 4096))
    return L
def q_scale():
    L = []
    for q in range(6):
        L.append(waitv(('q', q)))
        for j in range(4):
            x = Qf[q][j]; t = X8 if (j & 1) == 0 else Y8
            for i in range(4):
                L.append(valu('v_lshlrev_b32', t[2 * i], 16, x[i]))
                L.append(valu('v_and_b32', t[2 * i + 1], sMASK, x[i]))
            for i in range(4):
                L.append(valu('v_pk_mul_f32', t[2 * i:2 * i + 2], t[2 * i:2 * i + 2], sC))
            for i in range(4):
                L.append(valu('v_cvt_pk_bf16_f32', x[i], t[2 * i], t[2 * i + 1]))
    return L
def minit_reset():
    return [valu('v_mov_b32', NEGM[q][3], '0xff800000') for q in range(6)]

def max_valu(q, s=None):
    s = S0[q] if s is None else s; m = NEGM[q][3]; t = RL[q & 1]
    L = [valu('v_max3_f32', m, s[0], s[1], m), valu('v_max3_f32', m, s[2], s[3], m),
         valu('v_max3_f32', m, s[4], s[5], m), valu('v_max3_f32', m, s[6], s[7], m),
         valu('v_mov_b32', t, m), permswap('v_permlane32_swap_b32', t, m), valu('v_max_f32', m, t, m),
         valu('v_mov_b32', t, m), permswap('v_permlane16_swap_b32', t, m), valu('v_max_f32', t, t, m)]
    L += [valu('v_sub_f32', s[i], s[i], t) for i in range(8)]
    L += [valu('v_sub_f32', NEGM[q][i], 0, t) for i in range(4)]
    return L

blk = {}
E = []
E += [salu('s_cmp_ge_u32', None, sWG, NWG), branch('s_cbranch_scc1', 'L_exit')]
E += [raw(f"  s_load_dwordx8 {sARG}, s[0:1], 0", wr=[sARG])]
E += [valu('v_lshrrev_b32', vX, 6, vTID), valu('v_and_b32', vTID, 63, vTID)]
E += [Inst(f"v_readfirstlane_b32 {sW}, {vX}", 'valu', regs_of(vX), regs_of(sW))]
tA, tB, tC, tD = X8[0], X8[1], X8[2], X8[3]
tQ, tG = X8[4], X8[5]
E += [valu('v_and_b32', tQ, 15, vTID), valu('v_lshrrev_b32', tG, 4, vTID)]
E += [smov(sHEAD, sWG), valu('v_lshlrev_b32', tA, 8, tQ), valu('v_xor_b32', tD, tG, tQ)]
E += [salu('s_mul_i32', sT0, sW, 96 * 256, scc_w=False), salu('s_lshl_b32', sM0B, sW, 12), salu('s_lshl_b32', sM0Q, sW, 13), salu('s_add_u32', sM0Q, sM0Q, LDS_RING)]
E += [valu('v_add_u32', tA, sT0, tA), valu('v_lshl_add_u32', vQo, tG, 4, tA)]
E += [valu('v_lshlrev_b32', tB, 8, tG), valu('v_add_u32', tB, sM0B, tB)]
for i in range(4):
    E += [valu('v_xor_b32', tC, 4 * i, tD), valu('v_lshl_add_u32', dK[i], tC, 4, tB)]
def mk_srd(srd, k, nb): return [smov(srd[0], sARG[k]), salu('s_and_b32', srd[1], sARG[k + 1], '0xffff'), smov(srd[2], nb), smov(srd[3], '0x20000')]
E += [smov(srdQ[2], Q_BYTES), smov(srdQ[3], '0x20000'), smov(srdK[2], K_BYTES), smov(srdK[3], '0x20000')]
CPF_EARLY = len(E)
E += [raw("  s_waitcnt lgkmcnt(0)")]
E += [smov(srdQ[0], sARG[0]), salu('s_and_b32', srdQ[1], sARG[1], '0xffff'), smov(srdK[0], sARG[2]), salu('s_and_b32', srdK[1], sARG[3], '0xffff')]
blk['entry0'] = E
E = []
sPC = S(72, 2)
def cpf_code(dst):
    L = [salu('s_lshr_b32', sT1, sWG, 3), salu('s_lshl_b32', sT1, sT1, 2), salu('s_add_u32', sT1, sT1, sW)]
    if cfg.cpf == 1: L += [salu('s_and_b32', sT1, sT1, 31)]
    else: L += [salu('s_cmp_ge_u32', None, sT1, 23 + 10 * cfg.ramp + 8 * cfg.tail), branch('s_cbranch_scc1', 'L_nocpf')]
    L += [salu('s_lshl_b32', sT1, sT1, 10), valu('v_mbcnt_lo_u32_b32', dst[0], -1, 0), valu('v_mbcnt_hi_u32_b32', dst[0], -1, dst[0]),
          valu('v_lshlrev_b32', dst[0], 4, dst[0]), valu('v_add_u32', dst[0], sT1, dst[0]),
          raw(f"  v_min_u32 {dst[0]}, L_max_pre - L_pc - 16, {dst[0]}", kind='valu', rd=[dst[0]], wr=[dst[0]]),
          Inst(f"global_load_dwordx4 {dst[0:4]}, {dst[0]}, {sPC}", 'vmem_load', regs_of(dst[0]) + regs_of(sPC), regs_of(dst[0:4]), tag=('cpf',))]
    if cfg.cpf != 1:
        L[-1].optional = True
        L += [label('L_nocpf')]
    return L
if cfg.cpf == 4:
    blk['entry0'][CPF_EARLY:CPF_EARLY] = [raw(f"  s_getpc_b64 {sPC}", wr=[sPC]), label('L_pc')] + cpf_code(Y8[4:8])
elif cfg.cpf:
    E += [raw(f"  s_getpc_b64 {sPC}", wr=[sPC]), label('L_pc')]
    if cfg.cpf <= 2: E += cpf_code(Y8[4:8])
E += mk_srd(srdV, 4, K_BYTES) + mk_srd(srdO, 6, Q_BYTES)
E += [valu('v_lshlrev_b32', tA, 1, tG), valu('v_xor_b32', tA, tA, tQ)]
for i in range(2):
    E += [valu('v_xor_b32', tC, 8 * i, tA), valu('v_lshl_add_u32', dV[i], tC, 4, tB)]
E += [valu('v_lshlrev_b32', tB, 8, tQ)]
for j in range(4):
    E += [valu('v_xor_b32', tC, 4 * j, tD), valu('v_lshl_add_u32', aK[j], tC, 4, tB)]
E += [valu('v_lshrrev_b32', tA, 2, vTID), valu('v_and_b32', tC, 7, tA), valu('v_lshlrev_b32', tA, 8, tA),
      valu('v_and_b32', tB, 3, vTID), valu('v_lshl_add_u32', tA, tB, 3, tA), valu('v_add_u32', tA, 65536, tA)]
for db in range(8):
    E += [valu('v_xor_b32', tB, db, tC), valu('v_lshl_add_u32', aV[db], tB, 5, tA)]
E += [valu('v_lshlrev_b32', vOo, 4, vTID), valu('v_add_u32', vOo, sT0, vOo)]
E += [smov(sMa, sM0B), salu('s_add_u32', sMb, sM0B, 32768)]
E += [valu('v_lshrrev_b32', tA, 1, tG), valu('v_xor_b32', tA, tA, tQ), valu('v_lshlrev_b32', tA, 4, tA), valu('v_lshl_add_u32', tA, tQ, 8, tA),
      valu('v_and_b32', tB, 1, tG), valu('v_lshl_add_u32', tA, tB, 3, tA), valu('v_add_u32', tA, sM0Q, tA),
      Inst("v_accvgpr_write_b32 a254, " + str(tA), 'valu', regs_of(tA), regs_of(A(254))),
      valu('v_lshlrev_b32', tA, 4, tD), valu('v_lshl_add_u32', tA, tG, 8, tA), valu('v_add_u32', tA, sM0Q, tA),
      Inst("v_accvgpr_write_b32 a255, " + str(tA), 'valu', regs_of(tA), regs_of(A(255)))]
E += [valu('v_mov_b32', tA, '0x3f803f80')]
if cfg.ones1:
    E += [Inst(f"v_cmp_eq_u32 vcc, 0, {tQ}", 'valu', regs_of(tQ), [('x', 'vcc')]),
          Inst(f"v_cndmask_b32 {tA}, 0, {tA}, vcc", 'valu', regs_of(tA) + [('x', 'vcc')], regs_of(tA))]
E += [Inst(f"v_accvgpr_write_b32 {ONES[i]}, {tA}", 'valu', regs_of(tA), regs_of(ONES[i])) for i in range(4)]
E += [smov(sC[0], hex(f2u(SCALE))), smov(sC[1], hex(f2u(SCALE))), smov(sMASK, '0xffff0000'), smov(sTHR, hex(f2u(cfg.thr)))]
E += [salu('s_add_u32', sNEXT, sWG, NWG), smov(sMODE, 0), smov(sFLAGS, 0), smov(sBIT, 1), smov(sFIN, 0)]
E += minit_reset()
if cfg.stamps:
    E += [raw(f"  s_load_dwordx2 {srdW[0:2]}, s[0:1], {32 if cfg.stampdbg >= 0 else 40}", wr=[srdW[0:2]]), raw("  s_waitcnt lgkmcnt(0)"),
          salu('s_and_b32', srdW[1], srdW[1], '0xffff'), smov(srdW[2], 1 << 20), smov(srdW[3], '0x20000'),
          salu('s_lshl_b32', sSTO, sWG, 2), salu('s_add_u32', sSTO, sSTO, sW)]
    if cfg.stampdbg >= 0:
        E += [salu('s_cmp_eq_u32', None, sSTO, cfg.stampdbg), salu('s_cselect_b32', srdW[2], 64, 0, scc_w=False, scc_r=True), smov(sSTO, 0)]
    else: E += [salu('s_lshl_b32', sSTO, sSTO, 9)]
    E += [smov(sSTI, 0), smov(M0, 0), Inst('v_accvgpr_write_b32 a252, 0', 'valu', [], regs_of(A(252))), Inst('v_accvgpr_write_b32 a253, 0', 'valu', [], regs_of(A(253)))]
    E += stamp()
blk['entry'] = E

def q_place(q, early=False):
    if early == 'ramp': return [(sM0Q, 0), (sM0Q, 4096), (sM0B, 65536 + 49152), (sM0Q, 0), (sM0Q, 4096), (sM0B, 49152)][q]
    if q < 2: return (sM0Q, q * 4096) if early else (sM0B, 16384 * (q + 1))
    if q < 4: return (sM0Q, (q - 2) * 4096)
    return (sM0B, 65536 + 49152) if q == 4 else (sM0B, 49152)
def q_load_q(q, restore_m0=None, early=False):
    b, c = q_place(q, early)
    L = [salu('s_add_u32', sQO, sQH, q * 4096), salu('s_add_u32', M0, b, c)]
    for i in range(4):
        d = dma(dK[i], srdQ, sQO, i * 1024, ('q', q), cfg.q_flags, cfg.dma_cost); d.piece = i; L.append(d)
    if restore_m0: L.append(restore_m0)
    return L
def q_lds_read(dsts, q, early=False):
    b, c = q_place(q, early)
    L = [salu('s_add_u32', sT0, b, c)] + [valu('v_add_u32', X8[j], sT0, aK[j]) for j in range(4)]
    for n, d in enumerate(dsts):
        L += [ds_read('ds_read_b128', d[j], X8[j], n * 4096) for j in range(4)]
    return L
def q_unstage_acc(q):
    return [Inst(f"v_accvgpr_read_b32 {Qf[q][j][i]}, {QST[q][j][i]}", 'valu', regs_of(QST[q][j][i]), regs_of(Qf[q][j][i]))
            for j in range(4) for i in range(4)]
def q_scale_q(q):
    L = []
    for j in range(4):
        x = Qf[q][j]; t = X8
        for i in range(4):
            L.append(valu('v_lshlrev_b32', t[2 * i], 16, x[i]))
            L.append(valu('v_and_b32', t[2 * i + 1], sMASK, x[i]))
        for i in range(4):
            L.append(valu('v_pk_mul_f32', t[2 * i:2 * i + 2], t[2 * i:2 * i + 2], sC))
        for i in range(4):
            L.append(valu('v_cvt_pk_bf16_f32', x[i], t[2 * i], t[2 * i + 1]))
    return L
_ti = [0]
def epi_q(q, tsets):
    D = [salu('s_add_u32', sQO2, sOH, q * 4096)]
    D += [Inst(f"v_accvgpr_read_b32 {RL[1]}, {Lb[q][0]}", 'valu', regs_of(Lb[q][0]), regs_of(RL[1]))]
    if cfg.rowsum == 'mf4':
        D += [valu('v_mov_b32', RL[0], RL[1]), permswap('v_permlane32_swap_b32', RL[0], RL[1]), valu('v_add_f32', RL[1], RL[0], RL[1]),
              valu('v_mov_b32', RL[0], RL[1]), permswap('v_permlane16_swap_b32', RL[0], RL[1]), valu('v_add_f32', RL[1], RL[0], RL[1])]
    D += [valu('v_rcp_f32', RL[0], RL[1], trans=True)]
    if q == 0: D += [valu('v_mov_b32', vX, RL[1])]
    else: D += [valu('v_add_f32', vX, vX, RL[1])]
    for dp in range(4):
        if q < 4:
            t = tsets[dp % len(tsets)]
            for bi in range(2):
                o = Oblk(q, 2 * dp + bi)
                D += [Inst(f"v_accvgpr_read_b32 {t[4*bi+i]}, {o[i]}", 'valu', regs_of(o[i]), regs_of(t[4 * bi + i])) for i in range(4)]
        else:
            o = Oblk(q, 2 * dp); t = V(o.n, 8)
        for i in range(4):
            D += [valu('v_pk_mul_f32', t[2 * i:2 * i + 2], t[2 * i:2 * i + 2], RL, extra="op_sel_hi:[1,0]")]
        T = T4[_ti[0] % 2]; _ti[0] += 1
        for i in range(4): D += [valu('v_cvt_pk_bf16_f32', T[i], t[2 * i], t[2 * i + 1])]
        D += [permswap('v_permlane16_swap_b32', T[0], T[2]), permswap('v_permlane16_swap_b32', T[1], T[3])]
        D += [buf_store('buffer_store_dwordx4', T, vOo, srdO, sQO2, dp * 64, flags=cfg.st_flags)]
    return D
aWA, aRA = A(254), A(255)
def acc_read(d, a): return Inst(f"v_accvgpr_read_b32 {d}, {a}", 'valu', regs_of(a), regs_of(d))
def oreg(q, t):
    return Oblk(q, t)
def epi_a(q):
    half = (q & 1) * 4096
    D = [acc_read(RL[1], Lb[q][0])]
    if cfg.ones1:
        D += [valu('v_mov_b32', RL[0], RL[1]), permswap('v_permlane16_swap_b32', RL[0], RL[1]), valu('v_add_f32', RL[1], RL[0], RL[1]),
              valu('v_mov_b32', RL[0], RL[1]), permswap('v_permlane32_swap_b32', RL[0], RL[1]), valu('v_add_f32', RL[1], RL[0], RL[1])]
    D += [valu('v_rcp_f32', RL[0], RL[1], trans=True)]
    D += [valu('v_mov_b32', vX, RL[1]) if q == 0 else valu('v_add_f32', vX, vX, RL[1])]
    D += [acc_read(RL[1], aWA)]
    for dp in range(4):
        if q < 4:
            t = X8
            for bi in range(2):
                o = Oblk(q, 2 * dp + bi)
                D += [acc_read(t[4 * bi + i], o[i]) for i in range(4)]
        else:
            o = Oblk(q, 2 * dp); t = V(o.n, 8)
        mul = [Inst(f"v_pk_mul_f32 {t[2*i:2*i+2]}, {t[2*i:2*i+2]}, {RL} op_sel_hi:[1,0]", 'valu',
                    regs_of(t[2 * i:2 * i + 2]) + regs_of(RL[0]), regs_of(t[2 * i:2 * i + 2])) for i in range(4)]
        D += mul
        T = T4[dp % 2]
        D += [valu('v_cvt_pk_bf16_f32', T[i], t[2 * i], t[2 * i + 1]) for i in range(4)]
        for bi in range(2):
            db = 2 * dp + bi
            D += [ds_write('ds_write_b64', RL[1], T[2 * bi:2 * bi + 2], half)]
            if db < 7: D += [valu('v_xor_b32', RL[1], (db ^ (db + 1)) << 5, RL[1])]
    D += [acc_read(RL[1], aRA)]
    for t in range(4):
        D += [ds_read('ds_read_b128', oreg(q, t), RL[1], half + t * 1024)]
        if t < 3: D += [valu('v_xor_b32', RL[1], (t ^ (t + 1)) << 6, RL[1])]
    return D
def epi_b(q):
    D = [salu('s_add_u32', sQO2, sOH, q * 4096), waitl(*[oreg(q, t) for t in range(4)])]
    D += [buf_store('buffer_store_dwordx4', oreg(q, t), vOo, srdO, sQO2, t * 1024, flags=cfg.st_flags) for t in range(4)]
    return D
def fail_check():
    return [Inst(f"v_cmp_nge_f32 vcc, {sTHR}, {vX}", 'valu', regs_of(sTHR) + regs_of(vX), [('x', 'vcc')]),
            salu('s_cmp_lg_u64', None, 'vcc', 0), salu('s_cselect_b32', sT0, sBIT, 0, scc_w=False, scc_r=True),
            salu('s_or_b32', sFLAGS, sFLAGS, sT0)]

def is_pk(i): return 'v_pk_' in i.text
def vphase(mf, seq, start=0):
    n = len(seq); out = []
    if not mf: return list(seq)
    tot = sum(i.cost for i in seq if isinstance(i, Inst))
    step = (tot * (1.0 - start)) / len(mf)
    acc = 0.0; nxt = tot * start; k = 0
    for idx, i in enumerate(seq):
        if k < len(mf) and acc >= nxt:
            look = [x for x in seq[idx:idx + 3] if isinstance(x, Inst)]
            if not any(is_pk(x) for x in look):
                m = mf[k]; out += (m if isinstance(m, list) else [m]); k += 1; nxt += step
        out.append(i)
        if isinstance(i, Inst): acc += i.cost
    for m in mf[k:]: out += (m if isinstance(m, list) else [m])
    return out

class Cond:
    n = 0
    def __init__(self, first, body):
        self.first, self.body = first, body
        self.lab = f"L_c{Cond.n}"; Cond.n += 1
        self.head = [salu('s_cmp_eq_u32', None, sFIRST, 0), branch('s_cbranch_scc1' if first else 's_cbranch_scc0', self.lab)]
        self.tail = [label(self.lab)]
    def static(self):
        if cfg.ramp: return [] if self.first else self.body
        return self.head + self.body + self.tail
    def dyn(self, first):
        if cfg.ramp: return [] if self.first else self.body
        return self.head + (self.body if first == self.first else []) + self.tail
def flat_static(seq): return [y for x in seq for y in (x.static() if hasattr(x, 'static') else [x])]
def flat_dyn(seq, flag):
    out = []
    for x in seq:
        if hasattr(x, 'dyn'): out += x.dyn(flag)
        elif flag is True and getattr(x, 'nf_only', False): out.append(Ghost(x))
        else: out.append(x)
    return out
def waitv_nf(*tags):
    w = waitv(*tags); w.nf_only = True; return w

def tile_dma(part, t): return [set_m0(part, t)] + [dma_piece(part, t, i) for i in range(4)]
nxt_tile = lambda: [salu('s_add_u32', sDOFF, sDOFF, 16384)]

RE = 'ramp' if cfg.ramp else False
def stream_head():
    return [salu('s_mul_i32', sQH, sHEAD, QH, scc_w=False), salu('s_mul_i32', sT1, sW, 20480, scc_w=False), salu('s_add_u32', sQH, sQH, sT1),
            salu('s_mul_i32', sDOFF, sHEAD, KH, scc_w=False)] + q_load_q(0, early=RE) + tile_dma('K', 0) + q_load_q(1, early=RE)
blk['entry1'] = stream_head()
B = [label('L_stream')]
B += [salu('s_mul_i32', sNB, sNEXT, KH, scc_w=False), salu('s_cmp_lt_u32', None, sNEXT, 512),
      salu('s_cselect_b32', sNB, sNB, OOB, scc_w=False, scc_r=True),
      salu('s_cselect_b32', sQP, 12 // cfg.bt, 99, scc_w=False, scc_r=True), salu('s_cselect_b32', sTP, 99, 3, scc_w=False, scc_r=True), salu('s_add_u32', sQP1, sQP, 1),
      smov(sFIRST, 1), smov(sOH, OOB), smov(sBITN, sBIT), smov(sBIT, 0)]
blk['stream'] = B

zero_init = [valu('v_mov_b32', Oblk(5, db)[i], 0) for db in range(8) for i in range(4)]
zero_init += [Inst(f"v_accvgpr_write_b32 {Lb[5][i]}, 0", 'valu', [], regs_of(Lb[5][i])) for i in range(4)]
FU = [label('L_fuse'), smov(sPASS, 0)] + stamp()
def st2(): return stamp() if cfg.stamps >= 2 else []
GR = [('q', 0), ('t', 0, 'K'), ('q', 1), ('q', 2), ('q', 3), ('t', 0, 'V'), ('q', 4), ('q', 5),
      ('t', 1, 'K'), ('t', 1, 'V'), ('t', 2, 'K'), ('t', 2, 'V')]
def issue(k):
    t = GR[k]
    if t[0] == 'q': return q_load_q(t[1])
    return tile_dma(t[2], t[1]) + (nxt_tile() if t[2] == 'V' else [])
def top(k, extra=()): return [Cond(True, ([waitv(GR[k - 3])] if k <= 10 else []) + issue(k) + list(extra))]
def qscale(q): return [waitl(*Qf[q])] + q_scale_q(q)
class EpiBlk:
    def __init__(self, n, body, last=False):
        self.head = [] if cfg.ramp else [salu('s_cmp_eq_u32', None, sFIRST, 0), branch('s_cbranch_scc0', f'L_epx{n}')]
        self.body = [label(f'L_epi{n}')] + body
        self.chain = [salu('s_cmp_lg_u32', None, sFIN, 0), branch('s_cbranch_scc1', 'L_end' if last else f'L_epi{n+1}')]
        self.tail = [label(f'L_epx{n}')]
    def static(self): return self.head + self.body + self.chain + self.tail
    def dyn(self, first): return self.head + ([] if first else self.body + self.chain) + self.tail
    def fin(self): return self.body + self.chain
EPIS = [EpiBlk(0, epi_a(0) + epi_a(1) + epi_b(0)), EpiBlk(1, epi_a(2) + epi_b(1)), EpiBlk(2, epi_a(3) + epi_b(2)),
        EpiBlk(3, epi_a(4) + epi_b(3) + epi_a(5) + fail_check() + epi_b(4)), EpiBlk(4, epi_b(5), last=True)]
QK0 = lambda q: qk_mfmas(q, S0[q], 0)
PV0 = lambda q: pv_mfmas(q, Pb[q % 2], first=True)
SM0 = lambda q: sm_valu(S0[q], Pb[q % 2])
pv = pv_mfmas(5, Pb[1])
def pv_db(m):
    for db in range(8):
        if VF[db].regs()[0] in m.ab: return db
    return None
mf0 = [([m] + v_reads(pv_db(m), 0, 0)) if pv_db(m) is not None else [m] for m in pv]
for m in mf0:
    for r in m[1:]: r.tag = ('tx', 0, 'V')
def qs01(q): return [Cond(False, q_unstage_acc(q)), Cond(True, [waitl(*Qf[q])])] + q_scale_q(q)
FU += vphase(mf0, top(3, q_lds_read([Qf[0]], 0)) + qs01(0)
             + top(4, [barrier()] + [k_read(kb, j, 0, 0) for kb in range(2) for j in range(4)])
             + top(5, q_lds_read([Qf[1]], 1)) + qs01(1)) + st2()
FU += [waitl(*ALLK)]
FU += vphase(QK0(0) + QK0(1), top(6) + top(7) + [waitv_nf(('q', 3))] + q_lds_read([Qf[2], Qf[3]], 2) + qscale(2)
             + top(8, [barrier()] + [r for db in range(8) for r in v_reads(db, 0, 0)]) + qscale(3)) + st2()
FU += vphase(QK0(2), max_valu(0) + SM0(0) + max_valu(1) + SM0(1)) + st2()
FU += [EPIS[0]] + st2()
FU += [waitl(*VF)]
FU += vphase(QK0(3) + PV0(0), top(9) + [waitv_nf(('q', 4))] + q_lds_read([Qf[4]], 4) + max_valu(2) + qscale(4)) + [EPIS[1]] + st2()
FU += vphase(QK0(4) + PV0(1), top(10) + [waitv_nf(('q', 5))] + q_lds_read([Qf[5]], 5) + SM0(2) + qscale(5) + max_valu(3)) + [EPIS[2]] + st2()
qk5 = QK0(5); qk5 = [[qk5[kb * 4 + j], k_read(kb, j, 0, 1)] for kb in range(2) for j in range(4)]
FU += vphase(qk5 + PV0(2), SM0(3) + max_valu(4) + top(11, cpf_code(T4[1]) if cfg.cpf == 3 else [])) + [EPIS[3]] + st2()
FU += vphase(PV0(3), SM0(4) + max_valu(5)) + [EPIS[4]] + st2()
FU += [waitl(*ALLK)]
FU += vphase(qk_mfmas(0, Sb[0], NEGM[0]) + PV0(4),
             [set_m0('K', 3), dma_piece('K', 3, 0)] + SM0(5) + [dma_piece('K', 3, 1)] + zero_init[:12] + [dma_piece('K', 3, 2)] + zero_init[12:24]
             + [dma_piece('K', 3, 3)] + zero_init[24:] + [set_m0('V', 3), dma_piece('V', 3, 0)])
if cfg.otouch:
    FU += [salu('s_mul_i32', sT0, sHEAD, QH, scc_w=False), salu('s_mul_i32', sT1, sW, 96 * 256, scc_w=False), salu('s_add_u32', sT0, sT0, sT1),
           Inst(f"buffer_load_dword {V(0)}, off, {srdO}, {sT0}", 'vmem_load', regs_of(srdO) + regs_of(sT0), regs_of(V(0)), tag=('ot',))]
if cfg.sched == 2: FU += [valu('v_exp_f32', Sb[0][i], Sb[0][i], trans=True) for i in range(cfg.hv)]
FU += [smov(sFIRST, 0), smov(sBIT, sBITN), salu('s_mul_i32', sQH, sNEXT, QH, scc_w=False), salu('s_mul_i32', sT1, sW, 20480, scc_w=False), salu('s_add_u32', sQH, sQH, sT1)] + stamp() + [branch('s_branch', 'L_body1')]
blk['fuse'] = FU

RP = [label('L_ramp'), smov(sPASS, 0), smov(sFIRST, 0), smov(sBIT, sBITN)] + stamp()
U = [(n, q) for n in range(4) for q in range(3)] + [(n, q) for n in range(4) for q in range(3, 6)] + [(4, 0)]
def rq_load(q): return q_load_q(q, early='ramp')
def rq_fetch(q): return [waitv(('q', q))] + q_lds_read([Qf[q]], q, early='ramp')
def tV(t): return tile_dma('V', t) + nxt_tile()
kall = lambda n: [k_read(kb, j, n // 2, n % 2) for kb in range(2) for j in range(4)]
RP += rq_fetch(0) + rq_load(2) + qscale(0)
RP += [waitv(('t', 0, 'K')), barrier()] + kall(0) + tV(0)
RP += rq_fetch(1) + tile_dma('K', 1)
extra = {
    -1: ([], qscale(1) + rq_fetch(2) + tV(1)),
    0: ([], qscale(2) + [waitv(('t', 0, 'V')), barrier()] + [r for db in range(8) for r in v_reads(db, 0, 0)] + rq_load(3)),
    2: ([], [waitv(('t', 1, 'K'))] + rq_load(4)),
    4: (rq_load(5), []),
    7: ([], [waitv(('q', 3))] + tile_dma('K', 2)),
    9: (rq_fetch(3), tV(2)),
    10: (rq_fetch(4), qscale(3)),
    11: (rq_fetch(5), qscale(4)),
    12: ([], qscale(5) + tile_dma('K', 3)),
    14: ([], tV(3)),
    22: ([], [set_m0('K', 0)] + [dma_piece('K', 0, i) for i in range(4)]),
    23: ([set_m0('V', 0)] + [dma_piece('V', 0, i) for i in range(2)], [dma_piece('V', 0, i) for i in range(2, 4)] + nxt_tile() + [set_m0('K', 1), dma_piece('K', 1, 0)]),
}
needK = True; needV = True
heavy = {-1, 0, 1, 2, 9, 10, 11, 12, 13, 14}
def r_items(i):
    S_, P_ = Sb[i % 2], Pb[i % 2]
    return ([(x, valu('v_exp_f32', S_[x], S_[x], trans=True)) for x in range(8)],
            [(x, valu('v_cvt_pk_bf16_f32', P_[x], S_[2 * x], S_[2 * x + 1])) for x in range(4)])
RI = {i: r_items(i) for i in range(0, 24)}
def vrel(i): return 1 <= i <= 23 and U[i][0] != U[i - 1][0]
def rho(i): return 2 if (vrel(i) and i not in heavy and (i - 1) not in heavy) else 0
for i in range(-1, 24):
    pre = []; mf = []; fb = []
    n1, q1 = U[i + 1]
    light = i not in heavy
    if i == 4: pre += [waitv(('t', 1, 'V')), barrier()]
    if i == 22: pre += [waitl(*VF), waitv(('t', 2, 'V')), barrier()]; needV = False
    if needK: pre += [waitl(*ALLK)]; needK = False
    qk = qk_mfmas(q1, Sb[(i + 1) % 2], 0 if n1 == 0 else NEGM[q1])
    if i + 2 < len(U) and U[i + 2][0] != n1:
        kr = kall(U[i + 2][0]); needK = True
        if light: fb += [(2 * x + 1, kr[2 * x:2 * x + 2]) for x in range(4)]
        else: qk = [[qk[x], kr[x]] for x in range(8)]
    mf += qk
    if i >= 1:
        n0, q0 = U[i - 1]
        pvm = pv_mfmas(q0, Pb[(i - 1) % 2], first=(n0 == 0))
        rel = vrel(i)
        if light:
            if needV: fb.append((6, [waitl(*VF)])); needV = False
            if rel: fb += [(8 + x, v_reads(pv_db(m), U[i][0] // 2, U[i][0] % 2)) for x, m in enumerate(pvm) if pv_db(m) is not None]
            pl = pvm
        else:
            pl = [([m] + v_reads(pv_db(m), U[i][0] // 2, U[i][0] % 2)) if (rel and pv_db(m) is not None) else [m] for m in pvm]
            if needV: pl[0] = [waitl(*VF)] + pl[0]; needV = False
        if rel: needV = True
        mf += pl
    eh, et = extra.get(i, ([], []))
    if light:
        ex = list(eh) + list(et); gp = 2
        while ex:
            grp = []
            while ex and (not grp or grp[-1].kind != 'dma'): grp.append(ex.pop(0))
            fb.append((min(gp, 16), grp)); gp += 2
        hoist = RI[i + 1][0][:rho(i + 1)] if i + 1 <= 23 else []
        RP += phase2(pre, mf, RI[i][0][rho(i):], RI[i][1], fb, hoist)
    else:
        seq = list(eh)
        if i >= 0:
            n, q = U[i]
            if n == 0: seq += max_valu(q, Sb[i % 2])
            seq += sm_valu(Sb[i % 2], Pb[i % 2])
        seq += et
        RP += pre + vphase(mf, seq)
    if cfg.stamps >= 2 and i in (-1, 0, 2, 5, 8, 11, 13, 17): RP += stamp()
RP += [valu('v_exp_f32', Sb[0][i], Sb[0][i], trans=True) for i in range(cfg.hv)]
RP += [salu('s_mul_i32', sQH, sNEXT, QH, scc_w=False), salu('s_mul_i32', sT1, sW, 20480, scc_w=False), salu('s_add_u32', sQH, sQH, sT1)]
RP += stamp() + [branch('s_branch', 'L_body2')]
blk['ramp'] = RP if cfg.ramp else []

class CondQ:
    n = 0
    def __init__(self, body, dp):
        self.body = body; self.lab = f"L_q{CondQ.n}"; CondQ.n += 1; self.dp = dp
        self.head = [salu('s_cmp_eq_u32', None, sPASS, sQP if dp == 0 else sQP1), branch('s_cbranch_scc0', self.lab)]
        self.tail = [label(self.lab)]
        self.cost = 8
    def static(self): return self.head + self.body + self.tail
    def dyn(self, flag): return self.head + (self.body if flag == self.dp else []) + self.tail

class CondL:
    def __init__(self, body):
        self.body = body; self.lab = "L_nl"
        self.head = [salu('s_cmp_eq_u32', None, sPASS, 3), branch('s_cbranch_scc1', self.lab)]
        self.tail = [label(self.lab)]
        self.cost = 16
    def static(self): return self.head + self.body + self.tail
    def dyn(self, flag): return self.head + ([] if LASTPASS[0] else self.body) + self.tail
LASTPASS = [False]
BT = cfg.bt
NIT = 16 // BT
def set_m0r(part, r):
    if BT == 4: return set_m0(part, r)
    return salu('s_add_u32', M0, sMa if r < 2 else sMb, (65536 if part == 'V' else 0) + (r & 1) * 16384)
def k_read_r(kb, j, r, sub):
    d = k_read(kb, j, r % BT if BT == 2 else r, sub); d.tag = ('t', r, 'K'); return d

def HO(lp): return {0: cfg.hv, 6: cfg.hv, 4: cfg.hk, 10: cfg.hk}.get(lp, 0)
_smi = {}
def sm_items(k, lp):
    if (k, lp) not in _smi:
        q = lp % 6; Ssrc, P = Sb[q % 2], Pb[q % 2]
        _smi[(k, lp)] = ([(i, valu('v_exp_f32_e64' if cfg.exp64 else 'v_exp_f32', Ssrc[i], Ssrc[i], trans=True)) for i in range(8)],
                         [(i, valu('v_cvt_pk_bf16_f32', P[i], Ssrc[2 * i], Ssrc[2 * i + 1])) for i in range(4)])
    return _smi[(k, lp)]
def body_phase(k, lp):
    sub, q = divmod(lp, 6)
    qn = (q + 1) % 6; qp = (q - 1) % 6
    pre = []; fb = []
    mf = qk_mfmas(qn, Sb[(q + 1) % 2], NEGM[qn]) + pv_mfmas(qp, Pb[(q - 1) % 2])
    fa = sm_valu(Sb[q % 2], Pb[q % 2], X8[q] if cfg.rowsum == 'valu' else None)
    if q == 4:
        slot, s2 = (k, 1) if sub == 0 else ((k + 1) % 4, 0)
        if sub == 1: pre += [waitv(('t', slot, 'V')), barrier()]
        for kb in range(2):
            for j in range(4): fb.append((kb * 4 + j, [k_read_r(kb, j, slot, s2)]))
    if q == 5: pre += [waitl(*ALLK)]
    if q == 0:
        for gi, m in enumerate(mf):
            if gi >= 8 and pv_db(m) is not None: fb.append((gi, v_reads(pv_db(m), k, sub)))
    if q == 1: fb.append((7, [waitl(*VF)]))
    x3 = (k + 3) % 4
    G = cfg.dgap
    if cfg.dgrp == 1:
        if lp in (1, 2, 3): fb.append((G, [dma_piece('K', x3, lp)]))
        if lp == 5: fb.append((G - 1, [set_m0r('V', x3)])); fb.append((G, [dma_piece('V', x3, 0)]))
        if lp in (7, 8, 9): fb.append((G, [dma_piece('V', x3, lp - 6)]))
    elif cfg.dgrp == 2:
        if lp == 2: fb.append((G, [dma_piece('K', x3, 1), dma_piece('K', x3, 2), dma_piece('K', x3, 3)]))
        if lp == 5: fb.append((G - 1, [set_m0r('V', x3)])); fb.append((G, [dma_piece('V', x3, 0)]))
        if lp == 8: fb.append((G, [dma_piece('V', x3, 1), dma_piece('V', x3, 2), dma_piece('V', x3, 3)]))
    assert BT == 4
    cur_m0 = set_m0r('K', x3) if lp < 5 else set_m0r('V', x3)
    if (k, lp) == (0, 8): fb.append((12, [CondQ(q_load_q(0, cur_m0, early=True), 0)]))
    if (k, lp) == (1, 2): fb.append((12, [CondQ(q_load_q(1, cur_m0, early=True), 0)]))
    if (k, lp) == (1, 9): fb.append((12, [CondQ([waitv(('q', 1))] + q_lds_read([QST[0], QST[1]], 0, early=True), 0)]))
    if (k, lp) == (2, 2): fb.append((12, [CondQ([waitl(*QST[0], *QST[1])] + q_load_q(2, cur_m0), 0)]))
    if (k, lp) == (2, 8): fb.append((12, [CondQ(q_load_q(3, cur_m0), 0)]))
    if (k, lp) == (3, 10): fb.append((12, [CondQ(q_load_q(4), 0)]))
    if BT == 2 and k == 1:
        if lp == 7:
            for j in range(4): fb.append((11 + j, [valu('v_xor_b32', aK[j], 32768, aK[j])]))
        if lp in (8, 9):
            for d in range(4): fb.append((9 + 2 * d if lp == 9 else 9 + d // 2 + 6 * (d // 2), [valu('v_xor_b32', aV[4 * (lp - 8) + d], 32768, aV[4 * (lp - 8) + d])]))
    if lp == 11:
        upd = [salu('s_add_u32', sDOFF, sDOFF, 16384)]
        if k == 0:
            upd += [salu('s_cmp_eq_u32', None, sPASS, 12 // BT), salu('s_cselect_b32', sDOFF, sNB, sDOFF, scc_w=False, scc_r=True)]
        fb.append((0, upd[:2]))
        if len(upd) > 2: fb.append((1, upd[2:]))
        if k == 3:
            fb.append((2, [CondL([set_m0r('K', k), dma_piece('K', k, 0)])]))
            fb.append((12, [CondQ(q_load_q(5), 0)]))
        else: fb.append((max(G - 1, 1), [set_m0r('K', k)])); fb.append((max(G, 2), [dma_piece('K', k, 0)]))
        if BT == 2 and k == 1:
            fb.append((13, [salu('s_xor_b32', sMa, sMa, 32768), salu('s_xor_b32', sMb, sMb, 32768)]))
    if cfg.sched == 1: return phase(pre, mf, fa, fb)
    ex, cv = sm_items(k, lp)
    nk, nlp = (k, lp + 1) if lp < 11 else ((k + 1) % BT, 0)
    return phase2(pre, mf, ex[HO(lp):], cv, fb, sm_items(nk, nlp)[0][:HO(nlp)])

BA = [raw(".p2align 6"), label('L_body0')]
for lp in range(6): BA += body_phase(0, lp)
blk['body_a'] = BA
BB = [label('L_body1')]
for lp in range(6, 12): BB += body_phase(0, lp)
for lp in range(12): BB += body_phase(1, lp)
blk['body_b'] = BB
BB = [label('L_body2')]
blk['body_t'] = [salu('s_cmp_eq_u32', None, sPASS, sTP), branch('s_cbranch_scc1', 'L_tail')] if cfg.tail else []
blk['body_c0'] = BB
BB = []
for k in range(2, BT):
    for lp in range(12): BB += body_phase(k, lp)
BB += stamp() + [salu('s_add_u32', sPASS, sPASS, 1), salu('s_cmp_lt_u32', None, sPASS, NIT), branch('s_cbranch_scc1', 'L_body0')]
blk['body_c'] = BB

TL = [label('L_tail'), salu('s_mul_i32', sOH, sHEAD, QH, scc_w=False) if not cfg.nostore else smov(sOH, OOB)]
T = [(n, q) for n in range(28, 32) for q in range(3)] + [(n, q) for n in range(28, 32) for q in range(3, 6)]
TP = lambda i: (27, 5) if i < 0 else T[i]
loc = lambda n: ((n // 2) % 4, n % 2)
ea = {q: epi_a(q) for q in range(3)}; eb = {q: epi_b(q) for q in range(2)}
def cut(L, n, k): return L[len(L) * k // n: len(L) * (k + 1) // n]
textra = {}
stream = ea[0] + ea[1] + eb[0] + ea[2] + eb[1]
TH0 = 13
nh = 24 - TH0
for k in range(nh): textra[TH0 + k] = cut(stream, nh, k)
TI = {i: r_items(i) for i in range(24)}
def tvrel(i): return TP(i)[0] != TP(i - 1)[0]
def tho(i):
    if i == 0: return HO(0)
    return 2 if (tvrel(i) and i < TH0) else 0
needK = False; needV = False
for i in range(24):
    pre = []; mf = []; fb = []
    light = i < TH0
    if i == 4: pre += [waitv(('t', 3, 'V')), barrier()]
    if needK: pre += [waitl(*ALLK)]; needK = False
    if i + 1 < 24:
        n1, q1 = T[i + 1]
        qk = qk_mfmas(q1, Sb[(i + 1) % 2], NEGM[q1])
        if i + 2 < 24 and T[i + 2][0] != n1:
            kr = [k_read(kb, j, *loc(T[i + 2][0])) for kb in range(2) for j in range(4)]; needK = True
            if light: fb += [(2 * x + 1, kr[2 * x:2 * x + 2]) for x in range(4)]
            else: qk = [[qk[x], kr[x]] for x in range(8)]
        mf += qk
    n0, q0 = TP(i - 1)
    pvm = pv_mfmas(q0, Pb[(i - 1) % 2])
    rel = tvrel(i)
    if light:
        if needV: fb.append((6, [waitl(*VF)])); needV = False
        if rel: fb += [(8 + x, v_reads(pv_db(m), *loc(T[i][0]))) for x, m in enumerate(pvm) if pv_db(m) is not None]
        pl = pvm
    else:
        pl = [([m] + v_reads(pv_db(m), *loc(T[i][0]))) if (rel and pv_db(m) is not None) else [m] for m in pvm]
        if needV: pl[0] = [waitl(*VF)] + pl[0]; needV = False
    if rel: needV = True
    mf += pl
    if light:
        hoist = TI[i + 1][0][:tho(i + 1)]
        TL += phase2(pre, mf, TI[i][0][tho(i):], TI[i][1], fb, hoist)
    else:
        TL += pre + vphase(mf, sm_valu(Sb[i % 2], Pb[i % 2]) + textra[i])
TL += pv_mfmas(5, Pb[1]) + stamp() + [smov(sFIN, 1), branch('s_branch', 'L_epi2')]
blk['tail'] = TL if cfg.tail else []

D1 = [salu('s_mul_i32', sOH, sHEAD, QH, scc_w=False) if not cfg.nostore else smov(sOH, OOB), salu('s_cmp_ge_u32', None, sNEXT, 512), branch('s_cbranch_scc1', 'L_drain')]
blk['bnd_chk'] = D1
N = [smov(sHEAD, sNEXT), smov(sNEXT, '0xffff'), smov(sNB, OOB), smov(sBITN, 2), smov(sQP, 99), smov(sQP1, 99), smov(sTP, 3)] + minit_reset() + [branch('s_branch', 'L_fuse')]
blk['bnd_next'] = N
D = [label('L_drain')] + pv_mfmas(5, Pb[1]) + [smov(sFIN, 1), branch('s_branch', 'L_epi0')]
blk['drain'] = D

F = [label('L_end')] + stamp() + [smov(sFIN, 0)]
F += [valu('v_mov_b32', tA, sFLAGS), valu('v_mov_b32', tB, sM0Q), valu('v_mov_b32', tC, LDS_RING),
      ds_write('ds_write_b32', tB, tA, 0), raw("  s_waitcnt lgkmcnt(0)"), barrier()] + [
      ds_read('ds_read_b32', Y8[i], tC, i * 8192) for i in range(4)] + [raw("  s_waitcnt lgkmcnt(0)"),
      valu('v_or_b32', tA, Y8[0], Y8[1]), valu('v_or3_b32', tA, tA, Y8[2], Y8[3]),
      Inst(f"v_readfirstlane_b32 {sFLAGS}, {tA}", 'valu', regs_of(tA), regs_of(sFLAGS)),
      ] + stamp() + stamp_dump() + [salu('s_cmp_eq_u32', None, sFLAGS, 0), branch('s_cbranch_scc1', 'L_exit')]
blk['end'] = F
M = [label('L_max_pre'), raw('  s_waitcnt vmcnt(0)'), barrier()]
M += [salu('s_and_b32', sT0, sFLAGS, 1), salu('s_add_u32', sT1, sWG, NWG), salu('s_cmp_lg_u32', None, sT0, 0),
      salu('s_cselect_b32', sHEAD, sWG, sT1, scc_w=False, scc_r=True),
      salu('s_cselect_b32', sT0, 1, 2, scc_w=False, scc_r=True), salu('s_andn2_b32', sFLAGS, sFLAGS, sT0),
      smov(sMODE, 1), smov(sBIT, 0), smov(sNEXT, '0xffff')]
M += [salu('s_mul_i32', sQO, sHEAD, QH, scc_w=False)]
for q in range(6):
    M += [buf_load('buffer_load_dwordx4', Qf[q][j], vQo, srdQ, sQO, j * 64, tag=('mq',)) for j in range(4)]
    M += [salu('s_add_u32', sQO, sQO, 4096)]
M += [waitv(('mq',))]
for q in range(6): M += q_scale_q(q)
M += minit_reset()
M += [valu('v_mbcnt_lo_u32_b32', tC, -1, 0), valu('v_mbcnt_hi_u32_b32', tC, -1, tC),
      valu('v_and_b32', tA, 15, tC), valu('v_lshrrev_b32', tB, 4, tC), valu('v_lshlrev_b32', tA, 8, tA),
      valu('v_lshl_add_u32', vX, tB, 4, tA)]
M += [salu('s_mul_i32', sT1, sHEAD, KH, scc_w=False), smov(sIT, 0)]
blk['max_pre'] = M
ML = [label('L_maxloop')]
ML += [buf_load('buffer_load_dwordx4', KF[0][j], vX, srdK, sT1, j * 64, tag=('mk',)) for j in range(4)]
ML += [waitv(('mk',))]
MS = [Sb[0][0:4], Sb[0][4:8], Sb[1][0:4], Sb[1][4:8], X8[0:4], X8[4:8]]
for q in range(6):
    for j in range(4): ML.append(mfma16(MS[q], KF[0][j], Qf[q][j], 0 if j == 0 else MS[q]))
for q in range(6):
    m = NEGM[q][3]
    ML += [valu('v_max3_f32', m, MS[q][0], MS[q][1], m), valu('v_max3_f32', m, MS[q][2], MS[q][3], m)]
ML += [salu('s_add_u32', sT1, sT1, 4096), salu('s_add_u32', sIT, sIT, 1), salu('s_cmp_lt_u32', None, sIT, 64),
       branch('s_cbranch_scc1', 'L_maxloop')]
blk['max_loop'] = ML
blk['max_post'] = stream_head() + [branch('s_branch', 'L_stream')]
blk['exit'] = [label('L_exit'), raw("  s_endpgm")]

def head_trace(first, has_next):
    rp = first and cfg.ramp
    t = list(blk['ramp']) if rp else flat_dyn(blk['fuse'], first)
    for p in range(NIT):
        qf = (p - 12 // BT) if (has_next and p >= 12 // BT) else None
        LASTPASS[0] = (p == NIT - 1)
        b = flat_dyn((blk['body_a'] if p else []) + ([] if (rp and p == 0) else blk['body_b']) + blk['body_c0'] + blk['body_t'], qf)
        if cfg.tail and not has_next and p == NIT - 1:
            return t + b + blk['tail'] + [i for e in EPIS[2:] for i in e.fin()] + blk['end']
        t += b + flat_dyn(blk['body_c'], qf)
    t += blk['bnd_chk'] + (blk['bnd_next'] if has_next else blk['drain'] + [i for e in EPIS for i in e.fin()] + blk['end'])
    return t
trace = blk['entry0'] + blk['entry1'] + blk['entry'] + blk['stream'] + head_trace(True, True) + head_trace(False, False)
for _ in range(2):
    trace += blk['max_pre'] + blk['max_loop'] * 3 + blk['max_post'] + blk['stream'] + head_trace(True, False)
trace += blk['exit']
for b in blk: blk[b] = flat_static(blk[b])

written = {('s', 0), ('s', 1), ('s', 2), ('v', 0)}
for i in trace:
    for r in i.rd:
        if r not in written and (r[0] in 'sx' or i.kind in ('ds_read', 'dma', 'vmem_load')):
            print("UNINIT read", r, "in", i.render().strip()); written.add(r)
    written.update(i.wr)
resolve_waits(trace)
for it in range(10):
    n = check_trace(trace, fix=True, verbose=False)
    if n == 0: break
    if n >= 1000: sys.exit("pending-load errors")
assert check_trace(trace, fix=False) == 0
assert check_lds_protocol(trace)

order = ['entry0', 'entry1', 'entry', 'stream', 'ramp', 'fuse', 'body_a', 'body_b', 'body_c0', 'body_t', 'body_c', 'bnd_chk', 'bnd_next', 'drain', 'tail', 'end',
         'max_pre', 'max_loop', 'max_post', 'exit']
NAME = "standalone__mha_softmax__near_ridge_kernel"
out = f"""; MHA forward (B16 H32 Sq384 Sk1024 D128, bf16) - generated by gen/gen.py (hand-written generator)
; @launch grid=({NWG},1,1) block=(256,1,1) lds={LDS_TOTAL}
.amdgcn_target "amdgcn-amd-amdhsa--gfx950"
.text
.globl {NAME}
.p2align 8
.type {NAME},@function
{NAME}:
"""
for b in order:
    out += f"; ---- {b}\n"
    for i in blk[b]: out += i.render()
out += f""".section .rodata,"a"
.p2align 6
.amdhsa_kernel {NAME}
  .amdhsa_next_free_vgpr 512
  .amdhsa_next_free_sgpr 80
  .amdhsa_accum_offset 256
  .amdhsa_group_segment_fixed_size 0
  .amdhsa_kernarg_size 48
  .amdhsa_user_sgpr_count 2
  .amdhsa_user_sgpr_kernarg_segment_ptr 1
  .amdhsa_system_sgpr_workgroup_id_x 1
.end_amdhsa_kernel
"""
open(sys.argv[1], 'w').write(out)
nn = sum(i.pre_nop for b in ('body_a', 'body_b', 'body_c') for i in blk[b])
print("emitted", sys.argv[1], "insts:", {b: len(blk[b]) for b in order}, "body nops:", nn)
```

```python
import sys, math, struct
from asmlib import *

def f2u(f): return struct.unpack('<I', struct.pack('<f', f))[0]

class Cfg:
    dma_flags = " nt"
    q_flags = " nt"
    st_flags = " nt"
    dma_cost = 8
    thr = 2.0 ** 32
    stamps = 0
    otouch = 0
    nostore = 0
    rowsum = 'mfma'
    bt = 4
    stampdbg = -1
    sched = 2
    hv = 2
    hk = 4
    dgrp = 1
    dgap = 2
    exp64 = 0
    ones1 = 0
    cpf = 2
    ramp = 1
    tail = 1
    kpair = 0
    th0 = 13
    q45late = 0
cfg = Cfg()
for a in sys.argv[2:]:
    k, v = a.split('=', 1)
    cur = getattr(cfg, k)
    setattr(cfg, k, type(cur)(v) if not isinstance(cur, str) else v.replace('_', ' '))

NWG = 256
QH = 98304
KH = 262144
Q_BYTES = 512 * QH
K_BYTES = 512 * KH
OOB = 0x10000000
LDS_RING = 131072
LDS_TOTAL = LDS_RING + 32768
SCALE = (128 ** -0.5) * math.log2(math.e)

vTID = V(0)
aK = [V(1 + j) for j in range(4)]
aV = [V(5 + d) for d in range(8)]
dK = [V(13 + i) for i in range(4)]
dV = [V(17 + i) for i in range(2)]
vQo, vOo = V(19), V(20)
vX = V(21)
RL = V(22, 2)
T4 = [V(24, 4), V(28, 4)]
Sb = [V(32, 8), V(40, 8)]
Pb = [V(48, 4), V(52, 4)]
NEGM = [V(56 + 4 * q, 4) for q in range(6)]
Qf = [[V(80 + (q * 4 + j) * 4, 4) for j in range(4)] for q in range(6)]
def Oblk(q, db):
    if q < 4: return A((q * 8 + db) * 4, 4)
    return V(176 + ((q - 4) * 8 + db) * 4, 4)
X8 = V(240, 8)
Y8 = V(248, 8)
KF = [[A(128 + (kb * 4 + j) * 4, 4) for j in range(4)] for kb in range(2)]
VF = [A(160 + db * 4, 4) for db in range(8)]
Lb = [A(192 + 4 * q, 4) for q in range(6)]
ONES = A(216, 4)
S0 = [Sb[0], Y8, Sb[1], Sb[0], Y8, Sb[1]]
QST = [[A(220 + (q * 4 + j) * 4, 4) for j in range(4)] for q in range(2)]
vQs = V(0)

srdQ, srdK, srdV, srdO = S(8, 4), S(12, 4), S(16, 4), S(20, 4)
sWG = S(2)
sW, sM0B, sHEAD, sNEXT, sDOFF, sNB, sPASS, sMODE, sFLAGS, sQO, sBIT, sTHR = [S(24 + i) for i in range(12)]
sARG = S(36, 8)
sC = S(44, 2)
sMASK, sFIRST, sT0, sT1, sIT, sOH, sQH, sQP = S(46), S(47), S(48), S(49), S(50), S(51), S(62), S(63)
M0 = 'm0'
sQO2, sM0Q, sBITN, M0S, sFIN, sMa, sMb, sQP1 = [S(64 + i) for i in range(8)]
sTP = S(74)

def smov(d, x): return salu('s_mov_b32', d, x, scc_w=False)
srdW = S(56, 4); sST = S(52, 2); sSTO = S(54); sST2 = S(60, 2)
sSTI = S(55)
def stamp():
    if not cfg.stamps: return []
    t0, t1 = T4[0][0], T4[0][1]
    def acc_r(d, a): return Inst(f"v_accvgpr_read_b32 {d}, {a}", 'valu', regs_of(a), regs_of(d))
    def acc_w(a, d): return Inst(f"v_accvgpr_write_b32 {a}, {d}", 'valu', regs_of(d), regs_of(a))
    def wl(d, s): return Inst(f"v_writelane_b32 {d}, {s}, {sSTI}", 'valu', regs_of(d) + regs_of(s) + regs_of(sSTI), regs_of(d))
    return [raw(f"  s_memtime {sST}", wr=[sST]), raw(f"  s_memrealtime {sST2}", wr=[sST2]), acc_r(t0, A(252)), acc_r(t1, A(253)),
            raw("  s_waitcnt lgkmcnt(0)"), smov(M0S, M0), smov(M0, sSTI), nop(1),
            Inst(f"v_writelane_b32 {t0}, {sST[0]}, m0", 'valu', regs_of(t0), regs_of(t0)),
            Inst(f"v_writelane_b32 {t1}, {sST2[0]}, m0", 'valu', regs_of(t1), regs_of(t1)),
            smov(M0, M0S), acc_w(A(252), t0), acc_w(A(253), t1), salu('s_add_u32', sSTI, sSTI, 1)]
def stamp_dump():
    if not cfg.stamps: return []
    t = T4[0]
    st = Inst(f"buffer_store_dwordx2 {t[0:2]}, {t[2]}, {srdW}, {sSTO} offen", 'vmem_store', regs_of(t[0:3]) + regs_of(srdW) + regs_of(sSTO), [])
    st.sdata = regs_of(t[0:2])
    if cfg.stampdbg >= 0:
        st = Inst(f"buffer_store_dword {t[1]}, {t[2]}, {srdW}, {sSTO} offen", 'vmem_store', regs_of(t[0:3]) + regs_of(srdW) + regs_of(sSTO), [])
        st.sdata = regs_of(t[1])
        return [Inst(f"v_accvgpr_read_b32 {t[1]}, a253", 'valu', regs_of(A(253)), regs_of(t[1])),
                valu('v_mbcnt_lo_u32_b32', t[2], -1, 0), valu('v_mbcnt_hi_u32_b32', t[2], -1, t[2]), valu('v_lshlrev_b32', t[2], 2, t[2]), st]
    return [Inst(f"v_accvgpr_read_b32 {t[0]}, a252", 'valu', regs_of(A(252)), regs_of(t[0])),
            Inst(f"v_accvgpr_read_b32 {t[1]}, a253", 'valu', regs_of(A(253)), regs_of(t[1])),
            valu('v_mbcnt_lo_u32_b32', t[2], -1, 0), valu('v_mbcnt_hi_u32_b32', t[2], -1, t[2]), valu('v_lshlrev_b32', t[2], 3, t[2]), st]

def phase(pre, mf, fa, fb=(), fa_start=0):
    out = list(pre)
    fb = sorted(fb, key=lambda x: x[0])
    total = sum(i.cost for i in fa) + sum(i.cost for _, l in fb for i in l)
    ng = len(mf)
    budget = max(8, int(math.ceil(total / max(ng - fa_start, 1) / 4.0)) * 4)
    ia = 0
    fb = list(fb)
    for g, m in enumerate(mf):
        out.append(m)
        rem = budget
        while fb and fb[0][0] <= g:
            c = sum(i.cost for i in fb[0][1])
            if c <= rem or rem == budget:
                out += fb[0][1]; rem -= c; fb.pop(0)
            else: break
        while g >= fa_start and ia < len(fa) and fa[ia].cost <= rem:
            out.append(fa[ia]); rem -= fa[ia].cost; ia += 1
    for _, l in fb: out += l
    out += fa[ia:]
    return out

def phase2(pre, mf, exps, cvts, fb, hoist):
    out = list(pre)
    fb = sorted(fb, key=lambda x: x[0])
    exps = list(exps); cvts = list(cvts); hoist = list(hoist)
    done = {i: -1 for i in range(8)}
    for i, _ in exps: done.pop(i)
    ng = len(mf)
    for g, m in enumerate(mf):
        out.append(m)
        rem = 8
        while fb and fb[0][0] <= g:
            c = sum(i.cost for i in fb[0][1])
            if c <= rem or rem == 8:
                out += fb[0][1]; rem -= c; fb.pop(0)
            else: break
        def ready_cvt():
            for n, (i, c) in enumerate(cvts):
                if done.get(2 * i, g) < g and done.get(2 * i + 1, g) < g: return n
            return None
        while rem > 0:
            rc = ready_cvt()
            nready = sum(1 for (i, c) in cvts if done.get(2 * i, g) < g and done.get(2 * i + 1, g) < g)
            if rem == 8 and exps and not (nready >= 2 and len(exps) <= cfg_tail(g, ng, exps, cvts)):
                i, e = exps.pop(0); out.append(e); done[i] = g; rem -= 8
            elif rc is not None:
                out.append(cvts.pop(rc)[1]); rem -= 4
            elif rem == 8 and hoist and g >= (9 if hoist[0][0] < 4 else 12):
                out.append(hoist.pop(0)[1]); rem -= 8
            else: break
    for _, l in fb: out += l
    out += [e for _, e in exps] + [c for _, c in cvts] + [e for _, e in hoist]
    return out
def cfg_tail(g, ng, exps, cvts): return 4

def qk_mfmas(q, Sdst, cinit):
    L = []
    for kb in range(2):
        d = Sdst[4 * kb:4 * kb + 4]
        for j in range(4):
            L.append(mfma16(d, KF[kb][j], Qf[q][j], (cinit if j == 0 else d)))
    return L
def pv_mfmas(q, P, first=False):
    L = [mfma16(Oblk(q, db), VF[db], P, 0 if first else Oblk(q, db)) for db in range(8)]
    if cfg.rowsum == 'mf4':
        L.insert(4, mfma4(Lb[q], ONES[0:2], P[0:2], 0 if first else Lb[q]))
        L.append(mfma4(Lb[q], ONES[0:2], P[2:4], Lb[q]))
    elif cfg.rowsum == 'mfma' or first: L.append(mfma16(Lb[q], ONES, P, 0 if first else Lb[q]))
    return L
def sm_valu(Ssrc, P, lacc=None):
    e = [valu('v_exp_f32', Ssrc[i], Ssrc[i], trans=True) for i in range(8)]
    c = [valu('v_cvt_pk_bf16_f32', P[i], Ssrc[2 * i], Ssrc[2 * i + 1]) for i in range(4)]
    if lacc is not None:
        a = [valu('v_add_f32', lacc, lacc, Ssrc[i]) for i in range(8)]
        return [e[0], e[1], a[0], c[0], e[2], a[1], a[2], e[3], e[4], a[3], c[1], e[5], a[4], a[5], e[6], e[7], c[2], a[6], a[7], c[3]]
    return [e[0], e[1], e[2], c[0], e[3], e[4], c[1], e[5], e[6], c[2], e[7], c[3]]
def k_read(kb, j, slot, sub):
    return ds_read('ds_read_b128', KF[kb][j], aK[j], slot * 16384 + sub * 8192 + kb * 4096, tag=('t', slot, 'K'))
def v_reads(db, slot, sub):
    return [ds_read('ds_read_b64_tr_b16', VF[db][2 * h:2 * h + 2], aV[db], slot * 16384 + sub * 8192 + h * 4096, tag=('t', slot, 'V'))
            for h in range(2)]
def dma_piece(part, slot, idx):
    if part == 'K': d = dma(dK[idx], srdK, sDOFF, idx * 1024, ('t', slot, 'K'), cfg.dma_flags, cfg.dma_cost)
    else: d = dma(dV[idx & 1], srdV, sDOFF, idx * 1024, ('t', slot, 'V'), cfg.dma_flags, cfg.dma_cost)
    d.piece = idx
    return d
def set_m0(part, slot):
    return salu('s_add_u32', M0, sM0B, (65536 if part == 'V' else 0) + slot * 16384)
ALLK = [KF[kb][j] for kb in range(2) for j in range(4)]

def q_loads():
    L = [salu('s_mul_i32', sQO, sHEADQ, QH, scc_w=False)]
    for q in range(6):
        for j in range(4):
            L.append(buf_load('buffer_load_dwordx4', Qf[q][j], vQo, srdQ, sQO, j * 64, tag=('q', q), flags=cfg.q_flags))
        if q < 5: L.append(salu('s_add_u32', sQO, sQO, 4096))
    return L
def q_scale():
    L = []
    for q in range(6):
        L.append(waitv(('q', q)))
        for j in range(4):
            x = Qf[q][j]; t = X8 if (j & 1) == 0 else Y8
            for i in range(4):
                L.append(valu('v_lshlrev_b32', t[2 * i], 16, x[i]))
                L.append(valu('v_and_b32', t[2 * i + 1], sMASK, x[i]))
            for i in range(4):
                L.append(valu('v_pk_mul_f32', t[2 * i:2 * i + 2], t[2 * i:2 * i + 2], sC))
            for i in range(4):
                L.append(valu('v_cvt_pk_bf16_f32', x[i], t[2 * i], t[2 * i + 1]))
    return L
def minit_reset():
    return [valu('v_mov_b32', NEGM[q][3], '0xff800000') for q in range(6)]

def max_valu(q, s=None):
    s = S0[q] if s is None else s; m = NEGM[q][3]; t = RL[q & 1]
    L = [valu('v_max3_f32', m, s[0], s[1], m), valu('v_max3_f32', m, s[2], s[3], m),
         valu('v_max3_f32', m, s[4], s[5], m), valu('v_max3_f32', m, s[6], s[7], m),
         valu('v_mov_b32', t, m), permswap('v_permlane32_swap_b32', t, m), valu('v_max_f32', m, t, m),
         valu('v_mov_b32', t, m), permswap('v_permlane16_swap_b32', t, m), valu('v_max_f32', t, t, m)]
    L += [valu('v_sub_f32', s[i], s[i], t) for i in range(8)]
    L += [valu('v_sub_f32', NEGM[q][i], 0, t) for i in range(4)]
    return L

blk = {}
E = []
E += [salu('s_cmp_ge_u32', None, sWG, NWG), branch('s_cbranch_scc1', 'L_exit')]
E += [raw(f"  s_load_dwordx8 {sARG}, s[0:1], 0", wr=[sARG])]
E += [valu('v_lshrrev_b32', vX, 6, vTID), valu('v_and_b32', vTID, 63, vTID)]
E += [Inst(f"v_readfirstlane_b32 {sW}, {vX}", 'valu', regs_of(vX), regs_of(sW))]
tA, tB, tC, tD = X8[0], X8[1], X8[2], X8[3]
tQ, tG = X8[4], X8[5]
E += [valu('v_and_b32', tQ, 15, vTID), valu('v_lshrrev_b32', tG, 4, vTID)]
E += [smov(sHEAD, sWG), valu('v_lshlrev_b32', tA, 8, tQ), valu('v_xor_b32', tD, tG, tQ)]
E += [salu('s_mul_i32', sT0, sW, 96 * 256, scc_w=False), salu('s_lshl_b32', sM0B, sW, 12), salu('s_lshl_b32', sM0Q, sW, 13), salu('s_add_u32', sM0Q, sM0Q, LDS_RING)]
E += [valu('v_add_u32', tA, sT0, tA), valu('v_lshl_add_u32', vQo, tG, 4, tA)]
E += [valu('v_lshlrev_b32', tB, 8, tG), valu('v_add_u32', tB, sM0B, tB)]
for i in range(4):
    E += [valu('v_xor_b32', tC, 4 * i, tD), valu('v_lshl_add_u32', dK[i], tC, 4, tB)]
def mk_srd(srd, k, nb): return [smov(srd[0], sARG[k]), salu('s_and_b32', srd[1], sARG[k + 1], '0xffff'), smov(srd[2], nb), smov(srd[3], '0x20000')]
E += [smov(srdQ[2], Q_BYTES), smov(srdQ[3], '0x20000'), smov(srdK[2], K_BYTES), smov(srdK[3], '0x20000')]
CPF_EARLY = len(E)
E += [raw("  s_waitcnt lgkmcnt(0)")]
E += [smov(srdQ[0], sARG[0]), salu('s_and_b32', srdQ[1], sARG[1], '0xffff'), smov(srdK[0], sARG[2]), salu('s_and_b32', srdK[1], sARG[3], '0xffff')]
blk['entry0'] = E
E = []
sPC = S(72, 2)
def cpf_code(dst):
    L = [salu('s_lshr_b32', sT1, sWG, 3), salu('s_lshl_b32', sT1, sT1, 2), salu('s_add_u32', sT1, sT1, sW)]
    if cfg.cpf == 1: L += [salu('s_and_b32', sT1, sT1, 31)]
    else: L += [salu('s_cmp_ge_u32', None, sT1, 23 + 10 * cfg.ramp + 8 * cfg.tail), branch('s_cbranch_scc1', 'L_nocpf')]
    L += [salu('s_lshl_b32', sT1, sT1, 10), valu('v_mbcnt_lo_u32_b32', dst[0], -1, 0), valu('v_mbcnt_hi_u32_b32', dst[0], -1, dst[0]),
          valu('v_lshlrev_b32', dst[0], 4, dst[0]), valu('v_add_u32', dst[0], sT1, dst[0]),
          raw(f"  v_min_u32 {dst[0]}, L_max_pre - L_pc - 16, {dst[0]}", kind='valu', rd=[dst[0]], wr=[dst[0]]),
          Inst(f"global_load_dwordx4 {dst[0:4]}, {dst[0]}, {sPC}", 'vmem_load', regs_of(dst[0]) + regs_of(sPC), regs_of(dst[0:4]), tag=('cpf',))]
    if cfg.cpf != 1:
        L[-1].optional = True
        L += [label('L_nocpf')]
    return L
if cfg.cpf == 4:
    blk['entry0'][CPF_EARLY:CPF_EARLY] = [raw(f"  s_getpc_b64 {sPC}", wr=[sPC]), label('L_pc')] + cpf_code(Y8[4:8])
elif cfg.cpf:
    E += [raw(f"  s_getpc_b64 {sPC}", wr=[sPC]), label('L_pc')]
    if cfg.cpf <= 2: E += cpf_code(Y8[4:8])
E += mk_srd(srdV, 4, K_BYTES) + mk_srd(srdO, 6, Q_BYTES)
E += [valu('v_lshlrev_b32', tA, 1, tG), valu('v_xor_b32', tA, tA, tQ)]
for i in range(2):
    E += [valu('v_xor_b32', tC, 8 * i, tA), valu('v_lshl_add_u32', dV[i], tC, 4, tB)]
E += [valu('v_lshlrev_b32', tB, 8, tQ)]
for j in range(4):
    E += [valu('v_xor_b32', tC, 4 * j, tD), valu('v_lshl_add_u32', aK[j], tC, 4, tB)]
E += [valu('v_lshrrev_b32', tA, 2, vTID), valu('v_and_b32', tC, 7, tA), valu('v_lshlrev_b32', tA, 8, tA),
      valu('v_and_b32', tB, 3, vTID), valu('v_lshl_add_u32', tA, tB, 3, tA), valu('v_add_u32', tA, 65536, tA)]
for db in range(8):
    E += [valu('v_xor_b32', tB, db, tC), valu('v_lshl_add_u32', aV[db], tB, 5, tA)]
E += [valu('v_lshlrev_b32', vOo, 4, vTID), valu('v_add_u32', vOo, sT0, vOo)]
E += [smov(sMa, sM0B), salu('s_add_u32', sMb, sM0B, 32768)]
E += [valu('v_lshrrev_b32', tA, 1, tG), valu('v_xor_b32', tA, tA, tQ), valu('v_lshlrev_b32', tA, 4, tA), valu('v_lshl_add_u32', tA, tQ, 8, tA),
      valu('v_and_b32', tB, 1, tG), valu('v_lshl_add_u32', tA, tB, 3, tA), valu('v_add_u32', tA, sM0Q, tA),
      Inst("v_accvgpr_write_b32 a254, " + str(tA), 'valu', regs_of(tA), regs_of(A(254))),
      valu('v_lshlrev_b32', tA, 4, tD), valu('v_lshl_add_u32', tA, tG, 8, tA), valu('v_add_u32', tA, sM0Q, tA),
      Inst("v_accvgpr_write_b32 a255, " + str(tA), 'valu', regs_of(tA), regs_of(A(255)))]
E += [valu('v_mov_b32', tA, '0x3f803f80')]
if cfg.ones1:
    E += [Inst(f"v_cmp_eq_u32 vcc, 0, {tQ}", 'valu', regs_of(tQ), [('x', 'vcc')]),
          Inst(f"v_cndmask_b32 {tA}, 0, {tA}, vcc", 'valu', regs_of(tA) + [('x', 'vcc')], regs_of(tA))]
E += [Inst(f"v_accvgpr_write_b32 {ONES[i]}, {tA}", 'valu', regs_of(tA), regs_of(ONES[i])) for i in range(4)]
E += [smov(sC[0], hex(f2u(SCALE))), smov(sC[1], hex(f2u(SCALE))), smov(sMASK, '0xffff0000'), smov(sTHR, hex(f2u(cfg.thr)))]
E += [salu('s_add_u32', sNEXT, sWG, NWG), smov(sMODE, 0), smov(sFLAGS, 0), smov(sBIT, 1), smov(sFIN, 0)]
E += minit_reset()
if cfg.stamps:
    E += [raw(f"  s_load_dwordx2 {srdW[0:2]}, s[0:1], {32 if cfg.stampdbg >= 0 else 40}", wr=[srdW[0:2]]), raw("  s_waitcnt lgkmcnt(0)"),
          salu('s_and_b32', srdW[1], srdW[1], '0xffff'), smov(srdW[2], 1 << 20), smov(srdW[3], '0x20000'),
          salu('s_lshl_b32', sSTO, sWG, 2), salu('s_add_u32', sSTO, sSTO, sW)]
    if cfg.stampdbg >= 0:
        E += [salu('s_cmp_eq_u32', None, sSTO, cfg.stampdbg), salu('s_cselect_b32', srdW[2], 64, 0, scc_w=False, scc_r=True), smov(sSTO, 0)]
    else: E += [salu('s_lshl_b32', sSTO, sSTO, 9)]
    E += [smov(sSTI, 0), smov(M0, 0), Inst('v_accvgpr_write_b32 a252, 0', 'valu', [], regs_of(A(252))), Inst('v_accvgpr_write_b32 a253, 0', 'valu', [], regs_of(A(253)))]
    E += stamp()
blk['entry'] = E

def q_place(q, early=False):
    if early == 'ramp': return [(sM0Q, 0), (sM0Q, 4096), (sM0B, 65536 + 49152), (sM0Q, 0), (sM0Q, 4096), (sM0B, 49152)][q]
    if q < 2: return (sM0Q, q * 4096) if early else (sM0B, 16384 * (q + 1))
    if q < 4: return (sM0Q, (q - 2) * 4096)
    return (sM0B, 65536 + 49152) if q == 4 else (sM0B, 49152)
def q_load_q(q, restore_m0=None, early=False):
    b, c = q_place(q, early)
    L = [salu('s_add_u32', sQO, sQH, q * 4096), salu('s_add_u32', M0, b, c)]
    for i in range(4):
        d = dma(dK[i], srdQ, sQO, i * 1024, ('q', q), cfg.q_flags, cfg.dma_cost); d.piece = i; L.append(d)
    if restore_m0: L.append(restore_m0)
    return L
def q_lds_read(dsts, q, early=False):
    b, c = q_place(q, early)
    L = [salu('s_add_u32', sT0, b, c)] + [valu('v_add_u32', X8[j], sT0, aK[j]) for j in range(4)]
    for n, d in enumerate(dsts):
        L += [ds_read('ds_read_b128', d[j], X8[j], n * 4096) for j in range(4)]
    return L
def q_unstage_acc(q):
    return [Inst(f"v_accvgpr_read_b32 {Qf[q][j][i]}, {QST[q][j][i]}", 'valu', regs_of(QST[q][j][i]), regs_of(Qf[q][j][i]))
            for j in range(4) for i in range(4)]
def q_scale_q(q):
    L = []
    for j in range(4):
        x = Qf[q][j]; t = X8
        for i in range(4):
            L.append(valu('v_lshlrev_b32', t[2 * i], 16, x[i]))
            L.append(valu('v_and_b32', t[2 * i + 1], sMASK, x[i]))
        for i in range(4):
            L.append(valu('v_pk_mul_f32', t[2 * i:2 * i + 2], t[2 * i:2 * i + 2], sC))
        for i in range(4):
            L.append(valu('v_cvt_pk_bf16_f32', x[i], t[2 * i], t[2 * i + 1]))
    return L
_ti = [0]
def epi_q(q, tsets):
    D = [salu('s_add_u32', sQO2, sOH, q * 4096)]
    D += [Inst(f"v_accvgpr_read_b32 {RL[1]}, {Lb[q][0]}", 'valu', regs_of(Lb[q][0]), regs_of(RL[1]))]
    if cfg.rowsum == 'mf4':
        D += [valu('v_mov_b32', RL[0], RL[1]), permswap('v_permlane32_swap_b32', RL[0], RL[1]), valu('v_add_f32', RL[1], RL[0], RL[1]),
              valu('v_mov_b32', RL[0], RL[1]), permswap('v_permlane16_swap_b32', RL[0], RL[1]), valu('v_add_f32', RL[1], RL[0], RL[1])]
    D += [valu('v_rcp_f32', RL[0], RL[1], trans=True)]
    if q == 0: D += [valu('v_mov_b32', vX, RL[1])]
    else: D += [valu('v_add_f32', vX, vX, RL[1])]
    for dp in range(4):
        if q < 4:
            t = tsets[dp % len(tsets)]
            for bi in range(2):
                o = Oblk(q, 2 * dp + bi)
                D += [Inst(f"v_accvgpr_read_b32 {t[4*bi+i]}, {o[i]}", 'valu', regs_of(o[i]), regs_of(t[4 * bi + i])) for i in range(4)]
        else:
            o = Oblk(q, 2 * dp); t = V(o.n, 8)
        for i in range(4):
            D += [valu('v_pk_mul_f32', t[2 * i:2 * i + 2], t[2 * i:2 * i + 2], RL, extra="op_sel_hi:[1,0]")]
        T = T4[_ti[0] % 2]; _ti[0] += 1
        for i in range(4): D += [valu('v_cvt_pk_bf16_f32', T[i], t[2 * i], t[2 * i + 1])]
        D += [permswap('v_permlane16_swap_b32', T[0], T[2]), permswap('v_permlane16_swap_b32', T[1], T[3])]
        D += [buf_store('buffer_store_dwordx4', T, vOo, srdO, sQO2, dp * 64, flags=cfg.st_flags)]
    return D
aWA, aRA = A(254), A(255)
def acc_read(d, a): return Inst(f"v_accvgpr_read_b32 {d}, {a}", 'valu', regs_of(a), regs_of(d))
def oreg(q, t):
    return Oblk(q, t)
def epi_a(q):
    half = (q & 1) * 4096
    D = [acc_read(RL[1], Lb[q][0])]
    if cfg.ones1:
        D += [valu('v_mov_b32', RL[0], RL[1]), permswap('v_permlane16_swap_b32', RL[0], RL[1]), valu('v_add_f32', RL[1], RL[0], RL[1]),
              valu('v_mov_b32', RL[0], RL[1]), permswap('v_permlane32_swap_b32', RL[0], RL[1]), valu('v_add_f32', RL[1], RL[0], RL[1])]
    D += [valu('v_rcp_f32', RL[0], RL[1], trans=True)]
    D += [valu('v_mov_b32', vX, RL[1]) if q == 0 else valu('v_add_f32', vX, vX, RL[1])]
    D += [acc_read(RL[1], aWA)]
    for dp in range(4):
        if q < 4:
            t = X8
            for bi in range(2):
                o = Oblk(q, 2 * dp + bi)
                D += [acc_read(t[4 * bi + i], o[i]) for i in range(4)]
        else:
            o = Oblk(q, 2 * dp); t = V(o.n, 8)
        mul = [Inst(f"v_pk_mul_f32 {t[2*i:2*i+2]}, {t[2*i:2*i+2]}, {RL} op_sel_hi:[1,0]", 'valu',
                    regs_of(t[2 * i:2 * i + 2]) + regs_of(RL[0]), regs_of(t[2 * i:2 * i + 2])) for i in range(4)]
        D += mul
        T = T4[dp % 2]
        D += [valu('v_cvt_pk_bf16_f32', T[i], t[2 * i], t[2 * i + 1]) for i in range(4)]
        for bi in range(2):
            db = 2 * dp + bi
            D += [ds_write('ds_write_b64', RL[1], T[2 * bi:2 * bi + 2], half)]
            if db < 7: D += [valu('v_xor_b32', RL[1], (db ^ (db + 1)) << 5, RL[1])]
    D += [acc_read(RL[1], aRA)]
    for t in range(4):
        D += [ds_read('ds_read_b128', oreg(q, t), RL[1], half + t * 1024)]
        if t < 3: D += [valu('v_xor_b32', RL[1], (t ^ (t + 1)) << 6, RL[1])]
    return D
def epi_b(q):
    D = [salu('s_add_u32', sQO2, sOH, q * 4096), waitl(*[oreg(q, t) for t in range(4)])]
    D += [buf_store('buffer_store_dwordx4', oreg(q, t), vOo, srdO, sQO2, t * 1024, flags=cfg.st_flags) for t in range(4)]
    return D
def fail_check():
    return [Inst(f"v_cmp_nge_f32 vcc, {sTHR}, {vX}", 'valu', regs_of(sTHR) + regs_of(vX), [('x', 'vcc')]),
            salu('s_cmp_lg_u64', None, 'vcc', 0), salu('s_cselect_b32', sT0, sBIT, 0, scc_w=False, scc_r=True),
            salu('s_or_b32', sFLAGS, sFLAGS, sT0)]

def is_pk(i): return 'v_pk_' in i.text
def vphase(mf, seq, start=0):
    n = len(seq); out = []
    if not mf: return list(seq)
    tot = sum(i.cost for i in seq if isinstance(i, Inst))
    step = (tot * (1.0 - start)) / len(mf)
    acc = 0.0; nxt = tot * start; k = 0
    for idx, i in enumerate(seq):
        if k < len(mf) and acc >= nxt:
            look = [x for x in seq[idx:idx + 3] if isinstance(x, Inst)]
            if not any(is_pk(x) for x in look):
                m = mf[k]; out += (m if isinstance(m, list) else [m]); k += 1; nxt += step
        out.append(i)
        if isinstance(i, Inst): acc += i.cost
    for m in mf[k:]: out += (m if isinstance(m, list) else [m])
    return out

class Cond:
    n = 0
    def __init__(self, first, body):
        self.first, self.body = first, body
        self.lab = f"L_c{Cond.n}"; Cond.n += 1
        self.head = [salu('s_cmp_eq_u32', None, sFIRST, 0), branch('s_cbranch_scc1' if first else 's_cbranch_scc0', self.lab)]
        self.tail = [label(self.lab)]
    def static(self):
        if cfg.ramp: return [] if self.first else self.body
        return self.head + self.body + self.tail
    def dyn(self, first):
        if cfg.ramp: return [] if self.first else self.body
        return self.head + (self.body if first == self.first else []) + self.tail
def flat_static(seq): return [y for x in seq for y in (x.static() if hasattr(x, 'static') else [x])]
def flat_dyn(seq, flag):
    out = []
    for x in seq:
        if hasattr(x, 'dyn'): out += x.dyn(flag)
        elif flag is True and getattr(x, 'nf_only', False): out.append(Ghost(x))
        else: out.append(x)
    return out
def waitv_nf(*tags):
    w = waitv(*tags); w.nf_only = True; return w

def tile_dma(part, t): return [set_m0(part, t)] + [dma_piece(part, t, i) for i in range(4)]
nxt_tile = lambda: [salu('s_add_u32', sDOFF, sDOFF, 16384)]

RE = 'ramp' if cfg.ramp else False
def stream_head():
    return [salu('s_mul_i32', sQH, sHEAD, QH, scc_w=False), salu('s_mul_i32', sT1, sW, 20480, scc_w=False), salu('s_add_u32', sQH, sQH, sT1),
            salu('s_mul_i32', sDOFF, sHEAD, KH, scc_w=False)] + q_load_q(0, early=RE) + tile_dma('K', 0) + q_load_q(1, early=RE)
blk['entry1'] = stream_head()
B = [label('L_stream')]
B += [salu('s_mul_i32', sNB, sNEXT, KH, scc_w=False), salu('s_cmp_lt_u32', None, sNEXT, 512),
      salu('s_cselect_b32', sNB, sNB, OOB, scc_w=False, scc_r=True),
      salu('s_cselect_b32', sQP, 12 // cfg.bt, 99, scc_w=False, scc_r=True), salu('s_cselect_b32', sTP, 99, 3, scc_w=False, scc_r=True), salu('s_add_u32', sQP1, sQP, 1),
      smov(sFIRST, 1), smov(sOH, OOB), smov(sBITN, sBIT), smov(sBIT, 0)]
blk['stream'] = B

zero_init = [valu('v_mov_b32', Oblk(5, db)[i], 0) for db in range(8) for i in range(4)]
zero_init += [Inst(f"v_accvgpr_write_b32 {Lb[5][i]}, 0", 'valu', [], regs_of(Lb[5][i])) for i in range(4)]
FU = [label('L_fuse'), smov(sPASS, 0)] + stamp()
def st2(): return stamp() if cfg.stamps >= 2 else []
GR = [('q', 0), ('t', 0, 'K'), ('q', 1), ('q', 2), ('q', 3), ('t', 0, 'V'), ('q', 4), ('q', 5),
      ('t', 1, 'K'), ('t', 1, 'V'), ('t', 2, 'K'), ('t', 2, 'V')]
def issue(k):
    t = GR[k]
    if t[0] == 'q': return q_load_q(t[1])
    return tile_dma(t[2], t[1]) + (nxt_tile() if t[2] == 'V' else [])
def top(k, extra=()): return [Cond(True, ([waitv(GR[k - 3])] if k <= 10 else []) + issue(k) + list(extra))]
def qscale(q): return [waitl(*Qf[q])] + q_scale_q(q)
class EpiBlk:
    def __init__(self, n, body, last=False):
        self.head = [] if cfg.ramp else [salu('s_cmp_eq_u32', None, sFIRST, 0), branch('s_cbranch_scc0', f'L_epx{n}')]
        self.body = [label(f'L_epi{n}')] + body
        self.chain = [salu('s_cmp_lg_u32', None, sFIN, 0), branch('s_cbranch_scc1', 'L_end' if last else f'L_epi{n+1}')]
        self.tail = [label(f'L_epx{n}')]
    def static(self): return self.head + self.body + self.chain + self.tail
    def dyn(self, first): return self.head + ([] if first else self.body + self.chain) + self.tail
    def fin(self): return self.body + self.chain
EPIS = [EpiBlk(0, epi_a(0) + epi_a(1) + epi_b(0)), EpiBlk(1, epi_a(2) + epi_b(1)), EpiBlk(2, epi_a(3) + epi_b(2)),
        EpiBlk(3, epi_a(4) + epi_b(3) + epi_a(5) + fail_check() + epi_b(4)), EpiBlk(4, epi_b(5), last=True)]
QK0 = lambda q: qk_mfmas(q, S0[q], 0)
PV0 = lambda q: pv_mfmas(q, Pb[q % 2], first=True)
SM0 = lambda q: sm_valu(S0[q], Pb[q % 2])
pv = pv_mfmas(5, Pb[1])
def pv_db(m):
    for db in range(8):
        if VF[db].regs()[0] in m.ab: return db
    return None
mf0 = [([m] + v_reads(pv_db(m), 0, 0)) if pv_db(m) is not None else [m] for m in pv]
for m in mf0:
    for r in m[1:]: r.tag = ('tx', 0, 'V')
def qs01(q): return [Cond(False, q_unstage_acc(q)), Cond(True, [waitl(*Qf[q])])] + q_scale_q(q)
FU += vphase(mf0, top(3, q_lds_read([Qf[0]], 0)) + qs01(0)
             + top(4, [barrier()] + [k_read(kb, j, 0, 0) for kb in range(2) for j in range(4)])
             + top(5, q_lds_read([Qf[1]], 1)) + qs01(1)) + st2()
FU += [waitl(*ALLK)]
FU += vphase(QK0(0) + QK0(1), top(6) + top(7) + [waitv_nf(('q', 3))] + q_lds_read([Qf[2], Qf[3]], 2) + qscale(2)
             + top(8, [barrier()] + [r for db in range(8) for r in v_reads(db, 0, 0)]) + qscale(3)) + st2()
FU += vphase(QK0(2), max_valu(0) + SM0(0) + max_valu(1) + SM0(1)) + st2()
FU += [EPIS[0]] + st2()
FU += [waitl(*VF)]
FU += vphase(QK0(3) + PV0(0), top(9) + [waitv_nf(('q', 4))] + q_lds_read([Qf[4]], 4) + max_valu(2) + qscale(4)) + [EPIS[1]] + st2()
FU += vphase(QK0(4) + PV0(1), top(10) + [waitv_nf(('q', 5))] + q_lds_read([Qf[5]], 5) + SM0(2) + qscale(5) + max_valu(3)) + [EPIS[2]] + st2()
qk5 = QK0(5); qk5 = [[qk5[kb * 4 + j], k_read(kb, j, 0, 1)] for kb in range(2) for j in range(4)]
FU += vphase(qk5 + PV0(2), SM0(3) + max_valu(4) + top(11, cpf_code(T4[1]) if cfg.cpf == 3 else [])) + [EPIS[3]] + st2()
FU += vphase(PV0(3), SM0(4) + max_valu(5)) + [EPIS[4]] + st2()
FU += [waitl(*ALLK)]
FU += vphase(qk_mfmas(0, Sb[0], NEGM[0]) + PV0(4),
             [set_m0('K', 3), dma_piece('K', 3, 0)] + SM0(5) + [dma_piece('K', 3, 1)] + zero_init[:12] + [dma_piece('K', 3, 2)] + zero_init[12:24]
             + [dma_piece('K', 3, 3)] + zero_init[24:] + [set_m0('V', 3), dma_piece('V', 3, 0)])
if cfg.otouch:
    FU += [salu('s_mul_i32', sT0, sHEAD, QH, scc_w=False), salu('s_mul_i32', sT1, sW, 96 * 256, scc_w=False), salu('s_add_u32', sT0, sT0, sT1),
           Inst(f"buffer_load_dword {V(0)}, off, {srdO}, {sT0}", 'vmem_load', regs_of(srdO) + regs_of(sT0), regs_of(V(0)), tag=('ot',))]
if cfg.sched == 2: FU += [valu('v_exp_f32', Sb[0][i], Sb[0][i], trans=True) for i in range(cfg.hv)]
FU += [smov(sFIRST, 0), smov(sBIT, sBITN), salu('s_mul_i32', sQH, sNEXT, QH, scc_w=False), salu('s_mul_i32', sT1, sW, 20480, scc_w=False), salu('s_add_u32', sQH, sQH, sT1)] + stamp() + [branch('s_branch', 'L_body1')]
blk['fuse'] = FU

RP = [label('L_ramp'), smov(sPASS, 0), smov(sFIRST, 0), smov(sBIT, sBITN)] + stamp()
U = [(n, q) for n in range(4) for q in range(3)] + [(n, q) for n in range(4) for q in range(3, 6)] + [(4, 0)]
def rq_load(q): return q_load_q(q, early='ramp')
def rq_fetch(q): return [waitv(('q', q))] + q_lds_read([Qf[q]], q, early='ramp')
def tV(t): return tile_dma('V', t) + nxt_tile()
kall = lambda n: [k_read(kb, j, n // 2, n % 2) for kb in range(2) for j in range(4)]
RP += rq_fetch(0) + rq_load(2) + qscale(0)
RP += [waitv(('t', 0, 'K')), barrier()] + kall(0) + tV(0)
RP += rq_fetch(1) + tile_dma('K', 1)
extra = {
    -1: ([], qscale(1) + rq_fetch(2) + tV(1)),
    0: ([], qscale(2) + [waitv(('t', 0, 'V')), barrier()] + [r for db in range(8) for r in v_reads(db, 0, 0)] + rq_load(3)),
    2: ([], [waitv(('t', 1, 'K'))] + rq_load(4)),
    4: (rq_load(5), []),
    7: ([], [waitv(('q', 3))] + tile_dma('K', 2)),
    9: (rq_fetch(3), tV(2)),
    10: (rq_fetch(4), qscale(3)),
    11: (rq_fetch(5), qscale(4)),
    12: ([], qscale(5) + tile_dma('K', 3)),
    14: ([], tV(3)),
    22: ([], [set_m0('K', 0)] + [dma_piece('K', 0, i) for i in range(4)]),
    23: ([set_m0('V', 0)] + [dma_piece('V', 0, i) for i in range(2)], [dma_piece('V', 0, i) for i in range(2, 4)] + nxt_tile() + [set_m0('K', 1), dma_piece('K', 1, 0)]),
}
needK = True; needV = True
heavy = {-1, 0, 1, 2, 9, 10, 11, 12, 13, 14}
def r_items(i):
    S_, P_ = Sb[i % 2], Pb[i % 2]
    return ([(x, valu('v_exp_f32', S_[x], S_[x], trans=True)) for x in range(8)],
            [(x, valu('v_cvt_pk_bf16_f32', P_[x], S_[2 * x], S_[2 * x + 1])) for x in range(4)])
RI = {i: r_items(i) for i in range(0, 24)}
def vrel(i): return 1 <= i <= 23 and U[i][0] != U[i - 1][0]
def rho(i): return 2 if (vrel(i) and i not in heavy and (i - 1) not in heavy) else 0
for i in range(-1, 24):
    pre = []; mf = []; fb = []
    n1, q1 = U[i + 1]
    light = i not in heavy
    if i == 4: pre += [waitv(('t', 1, 'V')), barrier()]
    if i == 22: pre += [waitl(*VF), waitv(('t', 2, 'V')), barrier()]; needV = False
    if needK: pre += [waitl(*ALLK)]; needK = False
    qk = qk_mfmas(q1, Sb[(i + 1) % 2], 0 if n1 == 0 else NEGM[q1])
    if i + 2 < len(U) and U[i + 2][0] != n1:
        kr = kall(U[i + 2][0]); needK = True
        if light: fb += [(2 * x + 1, kr[2 * x:2 * x + 2]) for x in range(4)]
        else: qk = [[qk[x], kr[x]] for x in range(8)]
    mf += qk
    if i >= 1:
        n0, q0 = U[i - 1]
        pvm = pv_mfmas(q0, Pb[(i - 1) % 2], first=(n0 == 0))
        rel = vrel(i)
        if light:
            if needV: fb.append((6, [waitl(*VF)])); needV = False
            if rel: fb += [(8 + x, v_reads(pv_db(m), U[i][0] // 2, U[i][0] % 2)) for x, m in enumerate(pvm) if pv_db(m) is not None]
            pl = pvm
        else:
            pl = [([m] + v_reads(pv_db(m), U[i][0] // 2, U[i][0] % 2)) if (rel and pv_db(m) is not None) else [m] for m in pvm]
            if needV: pl[0] = [waitl(*VF)] + pl[0]; needV = False
        if rel: needV = True
        mf += pl
    eh, et = extra.get(i, ([], []))
    if light:
        ex = list(eh) + list(et); gp = 2
        while ex:
            grp = []
            while ex and (not grp or grp[-1].kind != 'dma'): grp.append(ex.pop(0))
            fb.append((min(gp, 16), grp)); gp += 2
        hoist = RI[i + 1][0][:rho(i + 1)] if i + 1 <= 23 else []
        RP += phase2(pre, mf, RI[i][0][rho(i):], RI[i][1], fb, hoist)
    else:
        seq = list(eh)
        if i >= 0:
            n, q = U[i]
            if n == 0: seq += max_valu(q, Sb[i % 2])
            seq += sm_valu(Sb[i % 2], Pb[i % 2])
        seq += et
        RP += pre + vphase(mf, seq)
    if cfg.stamps >= 2 and i in (-1, 0, 2, 5, 8, 11, 13, 17): RP += stamp()
RP += [valu('v_exp_f32', Sb[0][i], Sb[0][i], trans=True) for i in range(cfg.hv)]
RP += [salu('s_mul_i32', sQH, sNEXT, QH, scc_w=False), salu('s_mul_i32', sT1, sW, 20480, scc_w=False), salu('s_add_u32', sQH, sQH, sT1)]
RP += stamp() + [branch('s_branch', 'L_body2')]
blk['ramp'] = RP if cfg.ramp else []

class CondQ:
    n = 0
    def __init__(self, body, dp):
        self.body = body; self.lab = f"L_q{CondQ.n}"; CondQ.n += 1; self.dp = dp
        self.head = [salu('s_cmp_eq_u32', None, sPASS, sQP if dp == 0 else sQP1), branch('s_cbranch_scc0', self.lab)]
        self.tail = [label(self.lab)]
        self.cost = 8
    def static(self): return self.head + self.body + self.tail
    def dyn(self, flag): return self.head + (self.body if flag == self.dp else []) + self.tail

class CondL:
    def __init__(self, body):
        self.body = body; self.lab = "L_nl"
        self.head = [salu('s_cmp_eq_u32', None, sPASS, 3), branch('s_cbranch_scc1', self.lab)]
        self.tail = [label(self.lab)]
        self.cost = 16
    def static(self): return self.head + self.body + self.tail
    def dyn(self, flag): return self.head + ([] if LASTPASS[0] else self.body) + self.tail
LASTPASS = [False]
BT = cfg.bt
NIT = 16 // BT
def set_m0r(part, r):
    if BT == 4: return set_m0(part, r)
    return salu('s_add_u32', M0, sMa if r < 2 else sMb, (65536 if part == 'V' else 0) + (r & 1) * 16384)
def k_read_r(kb, j, r, sub):
    d = k_read(kb, j, r % BT if BT == 2 else r, sub); d.tag = ('t', r, 'K'); return d

def HO(lp): return {0: cfg.hv, 6: cfg.hv, 4: cfg.hk, 10: cfg.hk}.get(lp, 0)
_smi = {}
def sm_items(k, lp):
    if (k, lp) not in _smi:
        q = lp % 6; Ssrc, P = Sb[q % 2], Pb[q % 2]
        _smi[(k, lp)] = ([(i, valu('v_exp_f32_e64' if cfg.exp64 else 'v_exp_f32', Ssrc[i], Ssrc[i], trans=True)) for i in range(8)],
                         [(i, valu('v_cvt_pk_bf16_f32', P[i], Ssrc[2 * i], Ssrc[2 * i + 1])) for i in range(4)])
    return _smi[(k, lp)]
def body_phase(k, lp):
    sub, q = divmod(lp, 6)
    qn = (q + 1) % 6; qp = (q - 1) % 6
    pre = []; fb = []
    mf = qk_mfmas(qn, Sb[(q + 1) % 2], NEGM[qn]) + pv_mfmas(qp, Pb[(q - 1) % 2])
    fa = sm_valu(Sb[q % 2], Pb[q % 2], X8[q] if cfg.rowsum == 'valu' else None)
    if q == 4:
        slot, s2 = (k, 1) if sub == 0 else ((k + 1) % 4, 0)
        if sub == 1: pre += [waitv(('t', slot, 'V')), barrier()]
        kr = [k_read_r(kb, j, slot, s2) for kb in range(2) for j in range(4)]
        if cfg.kpair: fb += [(2 * x + 1, kr[2 * x:2 * x + 2]) for x in range(4)]
        else: fb += [(x, [kr[x]]) for x in range(8)]
    if q == 5: pre += [waitl(*ALLK)]
    if q == 0:
        for gi, m in enumerate(mf):
            if gi >= 8 and pv_db(m) is not None: fb.append((gi, v_reads(pv_db(m), k, sub)))
    if q == 1: fb.append((7, [waitl(*VF)]))
    x3 = (k + 3) % 4
    G = cfg.dgap
    if cfg.dgrp == 1:
        if lp in (1, 2, 3): fb.append((G, [dma_piece('K', x3, lp)]))
        if lp == 5: fb.append((G - 1, [set_m0r('V', x3)])); fb.append((G, [dma_piece('V', x3, 0)]))
        if lp in (7, 8, 9): fb.append((G, [dma_piece('V', x3, lp - 6)]))
    elif cfg.dgrp == 2:
        if lp == 2: fb.append((G, [dma_piece('K', x3, 1), dma_piece('K', x3, 2), dma_piece('K', x3, 3)]))
        if lp == 5: fb.append((G - 1, [set_m0r('V', x3)])); fb.append((G, [dma_piece('V', x3, 0)]))
        if lp == 8: fb.append((G, [dma_piece('V', x3, 1), dma_piece('V', x3, 2), dma_piece('V', x3, 3)]))
    assert BT == 4
    cur_m0 = set_m0r('K', x3) if lp < 5 else set_m0r('V', x3)
    if (k, lp) == (0, 8): fb.append((12, [CondQ(q_load_q(0, cur_m0, early=True), 0)]))
    if (k, lp) == (1, 2): fb.append((12, [CondQ(q_load_q(1, cur_m0, early=True), 0)]))
    if (k, lp) == (1, 9): fb.append((12, [CondQ([waitv(('q', 1))] + q_lds_read([QST[0], QST[1]], 0, early=True), 0)]))
    if (k, lp) == (2, 2): fb.append((12, [CondQ([waitl(*QST[0], *QST[1])] + q_load_q(2, cur_m0), 0)]))
    if (k, lp) == (2, 8): fb.append((12, [CondQ(q_load_q(3, cur_m0), 0)]))
    if (k, lp) == (3, 10): fb.append((12, [CondQ(q_load_q(4), 0)]))
    if BT == 2 and k == 1:
        if lp == 7:
            for j in range(4): fb.append((11 + j, [valu('v_xor_b32', aK[j], 32768, aK[j])]))
        if lp in (8, 9):
            for d in range(4): fb.append((9 + 2 * d if lp == 9 else 9 + d // 2 + 6 * (d // 2), [valu('v_xor_b32', aV[4 * (lp - 8) + d], 32768, aV[4 * (lp - 8) + d])]))
    if lp == 11:
        upd = [salu('s_add_u32', sDOFF, sDOFF, 16384)]
        if k == 0:
            upd += [salu('s_cmp_eq_u32', None, sPASS, 12 // BT), salu('s_cselect_b32', sDOFF, sNB, sDOFF, scc_w=False, scc_r=True)]
        fb.append((0, upd[:2]))
        if len(upd) > 2: fb.append((1, upd[2:]))
        if k == 3:
            fb.append((2, [CondL([set_m0r('K', k), dma_piece('K', k, 0)])]))
            fb.append((12, [CondQ(q_load_q(5), 0)]))
        else: fb.append((max(G - 1, 1), [set_m0r('K', k)])); fb.append((max(G, 2), [dma_piece('K', k, 0)]))
        if BT == 2 and k == 1:
            fb.append((13, [salu('s_xor_b32', sMa, sMa, 32768), salu('s_xor_b32', sMb, sMb, 32768)]))
    if cfg.sched == 1: return phase(pre, mf, fa, fb)
    ex, cv = sm_items(k, lp)
    nk, nlp = (k, lp + 1) if lp < 11 else ((k + 1) % BT, 0)
    return phase2(pre, mf, ex[HO(lp):], cv, fb, sm_items(nk, nlp)[0][:HO(nlp)])

BA = [raw(".p2align 6"), label('L_body0')]
for lp in range(6): BA += body_phase(0, lp)
blk['body_a'] = BA
BB = [label('L_body1')]
for lp in range(6, 12): BB += body_phase(0, lp)
for lp in range(12): BB += body_phase(1, lp)
blk['body_b'] = BB
BB = [label('L_body2')]
blk['body_t'] = [salu('s_cmp_eq_u32', None, sPASS, sTP), branch('s_cbranch_scc1', 'L_tail')] if cfg.tail else []
blk['body_c0'] = BB
BB = []
for k in range(2, BT):
    for lp in range(12): BB += body_phase(k, lp)
BB += stamp() + [salu('s_add_u32', sPASS, sPASS, 1), salu('s_cmp_lt_u32', None, sPASS, NIT), branch('s_cbranch_scc1', 'L_body0')]
blk['body_c'] = BB

TL = [label('L_tail'), salu('s_mul_i32', sOH, sHEAD, QH, scc_w=False) if not cfg.nostore else smov(sOH, OOB)]
T = [(n, q) for n in range(28, 32) for q in range(3)] + [(n, q) for n in range(28, 32) for q in range(3, 6)]
TP = lambda i: (27, 5) if i < 0 else T[i]
loc = lambda n: ((n // 2) % 4, n % 2)
ea = {q: epi_a(q) for q in range(3)}; eb = {q: epi_b(q) for q in range(2)}
def cut(L, n, k): return L[len(L) * k // n: len(L) * (k + 1) // n]
textra = {}
stream = ea[0] + ea[1] + eb[0] + ea[2] + eb[1]
TH0 = cfg.th0
nh = 24 - TH0
for k in range(nh): textra[TH0 + k] = cut(stream, nh, k)
TI = {i: r_items(i) for i in range(24)}
def tvrel(i): return TP(i)[0] != TP(i - 1)[0]
def tho(i):
    if i == 0: return HO(0)
    return 2 if (tvrel(i) and i < TH0) else 0
needK = False; needV = False
for i in range(24):
    pre = []; mf = []; fb = []
    light = i < TH0
    if i == 4: pre += [waitv(('t', 3, 'V')), barrier()]
    if needK: pre += [waitl(*ALLK)]; needK = False
    if i + 1 < 24:
        n1, q1 = T[i + 1]
        qk = qk_mfmas(q1, Sb[(i + 1) % 2], NEGM[q1])
        if i + 2 < 24 and T[i + 2][0] != n1:
            kr = [k_read(kb, j, *loc(T[i + 2][0])) for kb in range(2) for j in range(4)]; needK = True
            if light: fb += [(2 * x + 1, kr[2 * x:2 * x + 2]) for x in range(4)]
            else: qk = [[qk[x], kr[x]] for x in range(8)]
        mf += qk
    n0, q0 = TP(i - 1)
    pvm = pv_mfmas(q0, Pb[(i - 1) % 2])
    rel = tvrel(i)
    if light:
        if needV: fb.append((6, [waitl(*VF)])); needV = False
        if rel: fb += [(8 + x, v_reads(pv_db(m), *loc(T[i][0]))) for x, m in enumerate(pvm) if pv_db(m) is not None]
        pl = pvm
    else:
        pl = [([m] + v_reads(pv_db(m), *loc(T[i][0]))) if (rel and pv_db(m) is not None) else [m] for m in pvm]
        if needV: pl[0] = [waitl(*VF)] + pl[0]; needV = False
    if rel: needV = True
    mf += pl
    if light:
        hoist = TI[i + 1][0][:tho(i + 1)]
        TL += phase2(pre, mf, TI[i][0][tho(i):], TI[i][1], fb, hoist)
    else:
        TL += pre + vphase(mf, sm_valu(Sb[i % 2], Pb[i % 2]) + textra[i])
TL += pv_mfmas(5, Pb[1]) + stamp() + [smov(sFIN, 1), branch('s_branch', 'L_epi2')]
blk['tail'] = TL if cfg.tail else []

D1 = [salu('s_mul_i32', sOH, sHEAD, QH, scc_w=False) if not cfg.nostore else smov(sOH, OOB), salu('s_cmp_ge_u32', None, sNEXT, 512), branch('s_cbranch_scc1', 'L_drain')]
blk['bnd_chk'] = D1
N = [smov(sHEAD, sNEXT), smov(sNEXT, '0xffff'), smov(sNB, OOB), smov(sBITN, 2), smov(sQP, 99), smov(sQP1, 99), smov(sTP, 3)] + minit_reset() + [branch('s_branch', 'L_fuse')]
blk['bnd_next'] = N
D = [label('L_drain')] + pv_mfmas(5, Pb[1]) + [smov(sFIN, 1), branch('s_branch', 'L_epi0')]
blk['drain'] = D

F = [label('L_end')] + stamp() + [smov(sFIN, 0)]
F += [valu('v_mov_b32', tA, sFLAGS), valu('v_mov_b32', tB, sM0Q), valu('v_mov_b32', tC, LDS_RING),
      ds_write('ds_write_b32', tB, tA, 0), raw("  s_waitcnt lgkmcnt(0)"), barrier()] + [
      ds_read('ds_read_b32', Y8[i], tC, i * 8192) for i in range(4)] + [raw("  s_waitcnt lgkmcnt(0)"),
      valu('v_or_b32', tA, Y8[0], Y8[1]), valu('v_or3_b32', tA, tA, Y8[2], Y8[3]),
      Inst(f"v_readfirstlane_b32 {sFLAGS}, {tA}", 'valu', regs_of(tA), regs_of(sFLAGS)),
      ] + stamp() + stamp_dump() + [salu('s_cmp_eq_u32', None, sFLAGS, 0), branch('s_cbranch_scc1', 'L_exit')]
blk['end'] = F
M = [label('L_max_pre'), raw('  s_waitcnt vmcnt(0)'), barrier()]
M += [salu('s_and_b32', sT0, sFLAGS, 1), salu('s_add_u32', sT1, sWG, NWG), salu('s_cmp_lg_u32', None, sT0, 0),
      salu('s_cselect_b32', sHEAD, sWG, sT1, scc_w=False, scc_r=True),
      salu('s_cselect_b32', sT0, 1, 2, scc_w=False, scc_r=True), salu('s_andn2_b32', sFLAGS, sFLAGS, sT0),
      smov(sMODE, 1), smov(sBIT, 0), smov(sNEXT, '0xffff')]
M += [salu('s_mul_i32', sQO, sHEAD, QH, scc_w=False)]
for q in range(6):
    M += [buf_load('buffer_load_dwordx4', Qf[q][j], vQo, srdQ, sQO, j * 64, tag=('mq',)) for j in range(4)]
    M += [salu('s_add_u32', sQO, sQO, 4096)]
M += [waitv(('mq',))]
for q in range(6): M += q_scale_q(q)
M += minit_reset()
M += [valu('v_mbcnt_lo_u32_b32', tC, -1, 0), valu('v_mbcnt_hi_u32_b32', tC, -1, tC),
      valu('v_and_b32', tA, 15, tC), valu('v_lshrrev_b32', tB, 4, tC), valu('v_lshlrev_b32', tA, 8, tA),
      valu('v_lshl_add_u32', vX, tB, 4, tA)]
M += [salu('s_mul_i32', sT1, sHEAD, KH, scc_w=False), smov(sIT, 0)]
blk['max_pre'] = M
ML = [label('L_maxloop')]
ML += [buf_load('buffer_load_dwordx4', KF[0][j], vX, srdK, sT1, j * 64, tag=('mk',)) for j in range(4)]
ML += [waitv(('mk',))]
MS = [Sb[0][0:4], Sb[0][4:8], Sb[1][0:4], Sb[1][4:8], X8[0:4], X8[4:8]]
for q in range(6):
    for j in range(4): ML.append(mfma16(MS[q], KF[0][j], Qf[q][j], 0 if j == 0 else MS[q]))
for q in range(6):
    m = NEGM[q][3]
    ML += [valu('v_max3_f32', m, MS[q][0], MS[q][1], m), valu('v_max3_f32', m, MS[q][2], MS[q][3], m)]
ML += [salu('s_add_u32', sT1, sT1, 4096), salu('s_add_u32', sIT, sIT, 1), salu('s_cmp_lt_u32', None, sIT, 64),
       branch('s_cbranch_scc1', 'L_maxloop')]
blk['max_loop'] = ML
blk['max_post'] = stream_head() + [branch('s_branch', 'L_stream')]
blk['exit'] = [label('L_exit'), raw("  s_endpgm")]

def head_trace(first, has_next):
    rp = first and cfg.ramp
    t = list(blk['ramp']) if rp else flat_dyn(blk['fuse'], first)
    for p in range(NIT):
        qf = (p - 12 // BT) if (has_next and p >= 12 // BT) else None
        LASTPASS[0] = (p == NIT - 1)
        b = flat_dyn((blk['body_a'] if p else []) + ([] if (rp and p == 0) else blk['body_b']) + blk['body_c0'] + blk['body_t'], qf)
        if cfg.tail and not has_next and p == NIT - 1:
            return t + b + blk['tail'] + [i for e in EPIS[2:] for i in e.fin()] + blk['end']
        t += b + flat_dyn(blk['body_c'], qf)
    t += blk['bnd_chk'] + (blk['bnd_next'] if has_next else blk['drain'] + [i for e in EPIS for i in e.fin()] + blk['end'])
    return t
trace = blk['entry0'] + blk['entry1'] + blk['entry'] + blk['stream'] + head_trace(True, True) + head_trace(False, False)
for _ in range(2):
    trace += blk['max_pre'] + blk['max_loop'] * 3 + blk['max_post'] + blk['stream'] + head_trace(True, False)
trace += blk['exit']
for b in blk: blk[b] = flat_static(blk[b])

written = {('s', 0), ('s', 1), ('s', 2), ('v', 0)}
for i in trace:
    for r in i.rd:
        if r not in written and (r[0] in 'sx' or i.kind in ('ds_read', 'dma', 'vmem_load')):
            print("UNINIT read", r, "in", i.render().strip()); written.add(r)
    written.update(i.wr)
resolve_waits(trace)
for it in range(10):
    n = check_trace(trace, fix=True, verbose=False)
    if n == 0: break
    if n >= 1000: sys.exit("pending-load errors")
assert check_trace(trace, fix=False) == 0
assert check_lds_protocol(trace)

order = ['entry0', 'entry1', 'entry', 'stream', 'ramp', 'fuse', 'body_a', 'body_b', 'body_c0', 'body_t', 'body_c', 'bnd_chk', 'bnd_next', 'drain', 'tail', 'end',
         'max_pre', 'max_loop', 'max_post', 'exit']
NAME = "standalone__mha_softmax__near_ridge_kernel"
out = f"""; MHA forward (B16 H32 Sq384 Sk1024 D128, bf16) - generated by gen/gen.py (hand-written generator)
; @launch grid=({NWG},1,1) block=(256,1,1) lds={LDS_TOTAL}
.amdgcn_target "amdgcn-amd-amdhsa--gfx950"
.text
.globl {NAME}
.p2align 8
.type {NAME},@function
{NAME}:
"""
for b in order:
    out += f"; ---- {b}\n"
    for i in blk[b]: out += i.render()
out += f""".section .rodata,"a"
.p2align 6
.amdhsa_kernel {NAME}
  .amdhsa_next_free_vgpr 512
  .amdhsa_next_free_sgpr 80
  .amdhsa_accum_offset 256
  .amdhsa_group_segment_fixed_size 0
  .amdhsa_kernarg_size 48
  .amdhsa_user_sgpr_count 2
  .amdhsa_user_sgpr_kernarg_segment_ptr 1
  .amdhsa_system_sgpr_workgroup_id_x 1
.end_amdhsa_kernel
"""
open(sys.argv[1], 'w').write(out)
nn = sum(i.pre_nop for b in ('body_a', 'body_b', 'body_c') for i in blk[b])
print("emitted", sys.argv[1], "insts:", {b: len(blk[b]) for b in order}, "body nops:", nn)
```

```python
import sys, math, struct
from asmlib import *

def f2u(f): return struct.unpack('<I', struct.pack('<f', f))[0]

class Cfg:
    dma_flags = " nt"
    q_flags = " nt"
    st_flags = " nt"
    dma_cost = 8
    thr = 2.0 ** 32
    stamps = 0
    otouch = 0
    nostore = 0
    rowsum = 'mfma'
    bt = 4
    stampdbg = -1
    sched = 2
    hv = 2
    hk = 0
    dgrp = 1
    dgap = 2
    exp64 = 0
    ones1 = 0
    cpf = 2
    ramp = 1
    tail = 1
    kpair = 1
    bgap = 0
    th0 = 13
    q45late = 0
cfg = Cfg()
for a in sys.argv[2:]:
    k, v = a.split('=', 1)
    cur = getattr(cfg, k)
    setattr(cfg, k, type(cur)(v) if not isinstance(cur, str) else v.replace('_', ' '))

NWG = 256
QH = 98304
KH = 262144
Q_BYTES = 512 * QH
K_BYTES = 512 * KH
OOB = 0x10000000
LDS_RING = 131072
LDS_TOTAL = LDS_RING + 32768
SCALE = (128 ** -0.5) * math.log2(math.e)

vTID = V(0)
aK = [V(1 + j) for j in range(4)]
aV = [V(5 + d) for d in range(8)]
dK = [V(13 + i) for i in range(4)]
dV = [V(17 + i) for i in range(2)]
vQo, vOo = V(19), V(20)
vX = V(21)
RL = V(22, 2)
T4 = [V(24, 4), V(28, 4)]
Sb = [V(32, 8), V(40, 8)]
Pb = [V(48, 4), V(52, 4)]
NEGM = [V(56 + 4 * q, 4) for q in range(6)]
Qf = [[V(80 + (q * 4 + j) * 4, 4) for j in range(4)] for q in range(6)]
def Oblk(q, db):
    if q < 4: return A((q * 8 + db) * 4, 4)
    return V(176 + ((q - 4) * 8 + db) * 4, 4)
X8 = V(240, 8)
Y8 = V(248, 8)
KF = [[A(128 + (kb * 4 + j) * 4, 4) for j in range(4)] for kb in range(2)]
VF = [A(160 + db * 4, 4) for db in range(8)]
Lb = [A(192 + 4 * q, 4) for q in range(6)]
ONES = A(216, 4)
S0 = [Sb[0], Y8, Sb[1], Sb[0], Y8, Sb[1]]
QST = [[A(220 + (q * 4 + j) * 4, 4) for j in range(4)] for q in range(2)]
vQs = V(0)

srdQ, srdK, srdV, srdO = S(8, 4), S(12, 4), S(16, 4), S(20, 4)
sWG = S(2)
sW, sM0B, sHEAD, sNEXT, sDOFF, sNB, sPASS, sMODE, sFLAGS, sQO, sBIT, sTHR = [S(24 + i) for i in range(12)]
sARG = S(36, 8)
sC = S(44, 2)
sMASK, sFIRST, sT0, sT1, sIT, sOH, sQH, sQP = S(46), S(47), S(48), S(49), S(50), S(51), S(62), S(63)
M0 = 'm0'
sQO2, sM0Q, sBITN, M0S, sFIN, sMa, sMb, sQP1 = [S(64 + i) for i in range(8)]
sTP = S(74)

def smov(d, x): return salu('s_mov_b32', d, x, scc_w=False)
srdW = S(56, 4); sST = S(52, 2); sSTO = S(54); sST2 = S(60, 2)
sSTI = S(55)
def stamp():
    if not cfg.stamps: return []
    t0, t1 = T4[0][0], T4[0][1]
    def acc_r(d, a): return Inst(f"v_accvgpr_read_b32 {d}, {a}", 'valu', regs_of(a), regs_of(d))
    def acc_w(a, d): return Inst(f"v_accvgpr_write_b32 {a}, {d}", 'valu', regs_of(d), regs_of(a))
    def wl(d, s): return Inst(f"v_writelane_b32 {d}, {s}, {sSTI}", 'valu', regs_of(d) + regs_of(s) + regs_of(sSTI), regs_of(d))
    return [raw(f"  s_memtime {sST}", wr=[sST]), raw(f"  s_memrealtime {sST2}", wr=[sST2]), acc_r(t0, A(252)), acc_r(t1, A(253)),
            raw("  s_waitcnt lgkmcnt(0)"), smov(M0S, M0), smov(M0, sSTI), nop(1),
            Inst(f"v_writelane_b32 {t0}, {sST[0]}, m0", 'valu', regs_of(t0), regs_of(t0)),
            Inst(f"v_writelane_b32 {t1}, {sST2[0]}, m0", 'valu', regs_of(t1), regs_of(t1)),
            smov(M0, M0S), acc_w(A(252), t0), acc_w(A(253), t1), salu('s_add_u32', sSTI, sSTI, 1)]
def stamp_dump():
    if not cfg.stamps: return []
    t = T4[0]
    st = Inst(f"buffer_store_dwordx2 {t[0:2]}, {t[2]}, {srdW}, {sSTO} offen", 'vmem_store', regs_of(t[0:3]) + regs_of(srdW) + regs_of(sSTO), [])
    st.sdata = regs_of(t[0:2])
    if cfg.stampdbg >= 0:
        st = Inst(f"buffer_store_dword {t[1]}, {t[2]}, {srdW}, {sSTO} offen", 'vmem_store', regs_of(t[0:3]) + regs_of(srdW) + regs_of(sSTO), [])
        st.sdata = regs_of(t[1])
        return [Inst(f"v_accvgpr_read_b32 {t[1]}, a253", 'valu', regs_of(A(253)), regs_of(t[1])),
                valu('v_mbcnt_lo_u32_b32', t[2], -1, 0), valu('v_mbcnt_hi_u32_b32', t[2], -1, t[2]), valu('v_lshlrev_b32', t[2], 2, t[2]), st]
    return [Inst(f"v_accvgpr_read_b32 {t[0]}, a252", 'valu', regs_of(A(252)), regs_of(t[0])),
            Inst(f"v_accvgpr_read_b32 {t[1]}, a253", 'valu', regs_of(A(253)), regs_of(t[1])),
            valu('v_mbcnt_lo_u32_b32', t[2], -1, 0), valu('v_mbcnt_hi_u32_b32', t[2], -1, t[2]), valu('v_lshlrev_b32', t[2], 3, t[2]), st]

def phase(pre, mf, fa, fb=(), fa_start=0):
    out = list(pre)
    fb = sorted(fb, key=lambda x: x[0])
    total = sum(i.cost for i in fa) + sum(i.cost for _, l in fb for i in l)
    ng = len(mf)
    budget = max(8, int(math.ceil(total / max(ng - fa_start, 1) / 4.0)) * 4)
    ia = 0
    fb = list(fb)
    for g, m in enumerate(mf):
        out.append(m)
        rem = budget
        while fb and fb[0][0] <= g:
            c = sum(i.cost for i in fb[0][1])
            if c <= rem or rem == budget:
                out += fb[0][1]; rem -= c; fb.pop(0)
            else: break
        while g >= fa_start and ia < len(fa) and fa[ia].cost <= rem:
            out.append(fa[ia]); rem -= fa[ia].cost; ia += 1
    for _, l in fb: out += l
    out += fa[ia:]
    return out

def phase2(pre, mf, exps, cvts, fb, hoist):
    out = list(pre)
    fb = sorted(fb, key=lambda x: x[0])
    exps = list(exps); cvts = list(cvts); hoist = list(hoist)
    done = {i: -1 for i in range(8)}
    for i, _ in exps: done.pop(i)
    ng = len(mf)
    for g, m in enumerate(mf):
        out.append(m)
        rem = 8
        while fb and fb[0][0] <= g:
            c = sum(i.cost for i in fb[0][1])
            if c <= rem or rem == 8:
                out += fb[0][1]; rem -= c; fb.pop(0)
            else: break
        def ready_cvt():
            for n, (i, c) in enumerate(cvts):
                if done.get(2 * i, g) < g and done.get(2 * i + 1, g) < g: return n
            return None
        while rem > 0:
            rc = ready_cvt()
            nready = sum(1 for (i, c) in cvts if done.get(2 * i, g) < g and done.get(2 * i + 1, g) < g)
            if rem == 8 and exps and not (nready >= 2 and len(exps) <= cfg_tail(g, ng, exps, cvts)):
                i, e = exps.pop(0); out.append(e); done[i] = g; rem -= 8
            elif rc is not None:
                out.append(cvts.pop(rc)[1]); rem -= 4
            elif rem == 8 and hoist and g >= (9 if hoist[0][0] < 4 else 12):
                out.append(hoist.pop(0)[1]); rem -= 8
            else: break
    for _, l in fb: out += l
    out += [e for _, e in exps] + [c for _, c in cvts] + [e for _, e in hoist]
    return out
def cfg_tail(g, ng, exps, cvts): return 4

def qk_mfmas(q, Sdst, cinit):
    L = []
    for kb in range(2):
        d = Sdst[4 * kb:4 * kb + 4]
        for j in range(4):
            L.append(mfma16(d, KF[kb][j], Qf[q][j], (cinit if j == 0 else d)))
    return L
def pv_mfmas(q, P, first=False):
    L = [mfma16(Oblk(q, db), VF[db], P, 0 if first else Oblk(q, db)) for db in range(8)]
    if cfg.rowsum == 'mf4':
        L.insert(4, mfma4(Lb[q], ONES[0:2], P[0:2], 0 if first else Lb[q]))
        L.append(mfma4(Lb[q], ONES[0:2], P[2:4], Lb[q]))
    elif cfg.rowsum == 'mfma' or first: L.append(mfma16(Lb[q], ONES, P, 0 if first else Lb[q]))
    return L
def sm_valu(Ssrc, P, lacc=None):
    e = [valu('v_exp_f32', Ssrc[i], Ssrc[i], trans=True) for i in range(8)]
    c = [valu('v_cvt_pk_bf16_f32', P[i], Ssrc[2 * i], Ssrc[2 * i + 1]) for i in range(4)]
    if lacc is not None:
        a = [valu('v_add_f32', lacc, lacc, Ssrc[i]) for i in range(8)]
        return [e[0], e[1], a[0], c[0], e[2], a[1], a[2], e[3], e[4], a[3], c[1], e[5], a[4], a[5], e[6], e[7], c[2], a[6], a[7], c[3]]
    return [e[0], e[1], e[2], c[0], e[3], e[4], c[1], e[5], e[6], c[2], e[7], c[3]]
def k_read(kb, j, slot, sub):
    return ds_read('ds_read_b128', KF[kb][j], aK[j], slot * 16384 + sub * 8192 + kb * 4096, tag=('t', slot, 'K'))
def v_reads(db, slot, sub):
    return [ds_read('ds_read_b64_tr_b16', VF[db][2 * h:2 * h + 2], aV[db], slot * 16384 + sub * 8192 + h * 4096, tag=('t', slot, 'V'))
            for h in range(2)]
def dma_piece(part, slot, idx):
    if part == 'K': d = dma(dK[idx], srdK, sDOFF, idx * 1024, ('t', slot, 'K'), cfg.dma_flags, cfg.dma_cost)
    else: d = dma(dV[idx & 1], srdV, sDOFF, idx * 1024, ('t', slot, 'V'), cfg.dma_flags, cfg.dma_cost)
    d.piece = idx
    return d
def set_m0(part, slot):
    return salu('s_add_u32', M0, sM0B, (65536 if part == 'V' else 0) + slot * 16384)
ALLK = [KF[kb][j] for kb in range(2) for j in range(4)]

def q_loads():
    L = [salu('s_mul_i32', sQO, sHEADQ, QH, scc_w=False)]
    for q in range(6):
        for j in range(4):
            L.append(buf_load('buffer_load_dwordx4', Qf[q][j], vQo, srdQ, sQO, j * 64, tag=('q', q), flags=cfg.q_flags))
        if q < 5: L.append(salu('s_add_u32', sQO, sQO, 4096))
    return L
def q_scale():
    L = []
    for q in range(6):
        L.append(waitv(('q', q)))
        for j in range(4):
            x = Qf[q][j]; t = X8 if (j & 1) == 0 else Y8
            for i in range(4):
                L.append(valu('v_lshlrev_b32', t[2 * i], 16, x[i]))
                L.append(valu('v_and_b32', t[2 * i + 1], sMASK, x[i]))
            for i in range(4):
                L.append(valu('v_pk_mul_f32', t[2 * i:2 * i + 2], t[2 * i:2 * i + 2], sC))
            for i in range(4):
                L.append(valu('v_cvt_pk_bf16_f32', x[i], t[2 * i], t[2 * i + 1]))
    return L
def minit_reset():
    return [valu('v_mov_b32', NEGM[q][3], '0xff800000') for q in range(6)]

def max_valu(q, s=None):
    s = S0[q] if s is None else s; m = NEGM[q][3]; t = RL[q & 1]
    L = [valu('v_max3_f32', m, s[0], s[1], m), valu('v_max3_f32', m, s[2], s[3], m),
         valu('v_max3_f32', m, s[4], s[5], m), valu('v_max3_f32', m, s[6], s[7], m),
         valu('v_mov_b32', t, m), permswap('v_permlane32_swap_b32', t, m), valu('v_max_f32', m, t, m),
         valu('v_mov_b32', t, m), permswap('v_permlane16_swap_b32', t, m), valu('v_max_f32', t, t, m)]
    L += [valu('v_sub_f32', s[i], s[i], t) for i in range(8)]
    L += [valu('v_sub_f32', NEGM[q][i], 0, t) for i in range(4)]
    return L

blk = {}
E = []
E += [salu('s_cmp_ge_u32', None, sWG, NWG), branch('s_cbranch_scc1', 'L_exit')]
E += [raw(f"  s_load_dwordx8 {sARG}, s[0:1], 0", wr=[sARG])]
E += [valu('v_lshrrev_b32', vX, 6, vTID), valu('v_and_b32', vTID, 63, vTID)]
E += [Inst(f"v_readfirstlane_b32 {sW}, {vX}", 'valu', regs_of(vX), regs_of(sW))]
tA, tB, tC, tD = X8[0], X8[1], X8[2], X8[3]
tQ, tG = X8[4], X8[5]
E += [valu('v_and_b32', tQ, 15, vTID), valu('v_lshrrev_b32', tG, 4, vTID)]
E += [smov(sHEAD, sWG), valu('v_lshlrev_b32', tA, 8, tQ), valu('v_xor_b32', tD, tG, tQ)]
E += [salu('s_mul_i32', sT0, sW, 96 * 256, scc_w=False), salu('s_lshl_b32', sM0B, sW, 12), salu('s_lshl_b32', sM0Q, sW, 13), salu('s_add_u32', sM0Q, sM0Q, LDS_RING)]
E += [valu('v_add_u32', tA, sT0, tA), valu('v_lshl_add_u32', vQo, tG, 4, tA)]
E += [valu('v_lshlrev_b32', tB, 8, tG), valu('v_add_u32', tB, sM0B, tB)]
for i in range(4):
    E += [valu('v_xor_b32', tC, 4 * i, tD), valu('v_lshl_add_u32', dK[i], tC, 4, tB)]
def mk_srd(srd, k, nb): return [smov(srd[0], sARG[k]), salu('s_and_b32', srd[1], sARG[k + 1], '0xffff'), smov(srd[2], nb), smov(srd[3], '0x20000')]
E += [smov(srdQ[2], Q_BYTES), smov(srdQ[3], '0x20000'), smov(srdK[2], K_BYTES), smov(srdK[3], '0x20000')]
CPF_EARLY = len(E)
E += [raw("  s_waitcnt lgkmcnt(0)")]
E += [smov(srdQ[0], sARG[0]), salu('s_and_b32', srdQ[1], sARG[1], '0xffff'), smov(srdK[0], sARG[2]), salu('s_and_b32', srdK[1], sARG[3], '0xffff')]
blk['entry0'] = E
E = []
sPC = S(72, 2)
def cpf_code(dst):
    L = [salu('s_lshr_b32', sT1, sWG, 3), salu('s_lshl_b32', sT1, sT1, 2), salu('s_add_u32', sT1, sT1, sW)]
    if cfg.cpf == 1: L += [salu('s_and_b32', sT1, sT1, 31)]
    else: L += [salu('s_cmp_ge_u32', None, sT1, 23 + 10 * cfg.ramp + 8 * cfg.tail), branch('s_cbranch_scc1', 'L_nocpf')]
    L += [salu('s_lshl_b32', sT1, sT1, 10), valu('v_mbcnt_lo_u32_b32', dst[0], -1, 0), valu('v_mbcnt_hi_u32_b32', dst[0], -1, dst[0]),
          valu('v_lshlrev_b32', dst[0], 4, dst[0]), valu('v_add_u32', dst[0], sT1, dst[0]),
          raw(f"  v_min_u32 {dst[0]}, L_max_pre - L_pc - 16, {dst[0]}", kind='valu', rd=[dst[0]], wr=[dst[0]]),
          Inst(f"global_load_dwordx4 {dst[0:4]}, {dst[0]}, {sPC}", 'vmem_load', regs_of(dst[0]) + regs_of(sPC), regs_of(dst[0:4]), tag=('cpf',))]
    if cfg.cpf != 1:
        L[-1].optional = True
        L += [label('L_nocpf')]
    return L
if cfg.cpf == 4:
    blk['entry0'][CPF_EARLY:CPF_EARLY] = [raw(f"  s_getpc_b64 {sPC}", wr=[sPC]), label('L_pc')] + cpf_code(Y8[4:8])
elif cfg.cpf:
    E += [raw(f"  s_getpc_b64 {sPC}", wr=[sPC]), label('L_pc')]
    if cfg.cpf <= 2: E += cpf_code(Y8[4:8])
E += mk_srd(srdV, 4, K_BYTES) + mk_srd(srdO, 6, Q_BYTES)
E += [valu('v_lshlrev_b32', tA, 1, tG), valu('v_xor_b32', tA, tA, tQ)]
for i in range(2):
    E += [valu('v_xor_b32', tC, 8 * i, tA), valu('v_lshl_add_u32', dV[i], tC, 4, tB)]
E += [valu('v_lshlrev_b32', tB, 8, tQ)]
for j in range(4):
    E += [valu('v_xor_b32', tC, 4 * j, tD), valu('v_lshl_add_u32', aK[j], tC, 4, tB)]
E += [valu('v_lshrrev_b32', tA, 2, vTID), valu('v_and_b32', tC, 7, tA), valu('v_lshlrev_b32', tA, 8, tA),
      valu('v_and_b32', tB, 3, vTID), valu('v_lshl_add_u32', tA, tB, 3, tA), valu('v_add_u32', tA, 65536, tA)]
for db in range(8):
    E += [valu('v_xor_b32', tB, db, tC), valu('v_lshl_add_u32', aV[db], tB, 5, tA)]
E += [valu('v_lshlrev_b32', vOo, 4, vTID), valu('v_add_u32', vOo, sT0, vOo)]
E += [smov(sMa, sM0B), salu('s_add_u32', sMb, sM0B, 32768)]
E += [valu('v_lshrrev_b32', tA, 1, tG), valu('v_xor_b32', tA, tA, tQ), valu('v_lshlrev_b32', tA, 4, tA), valu('v_lshl_add_u32', tA, tQ, 8, tA),
      valu('v_and_b32', tB, 1, tG), valu('v_lshl_add_u32', tA, tB, 3, tA), valu('v_add_u32', tA, sM0Q, tA),
      Inst("v_accvgpr_write_b32 a254, " + str(tA), 'valu', regs_of(tA), regs_of(A(254))),
      valu('v_lshlrev_b32', tA, 4, tD), valu('v_lshl_add_u32', tA, tG, 8, tA), valu('v_add_u32', tA, sM0Q, tA),
      Inst("v_accvgpr_write_b32 a255, " + str(tA), 'valu', regs_of(tA), regs_of(A(255)))]
E += [valu('v_mov_b32', tA, '0x3f803f80')]
if cfg.ones1:
    E += [Inst(f"v_cmp_eq_u32 vcc, 0, {tQ}", 'valu', regs_of(tQ), [('x', 'vcc')]),
          Inst(f"v_cndmask_b32 {tA}, 0, {tA}, vcc", 'valu', regs_of(tA) + [('x', 'vcc')], regs_of(tA))]
E += [Inst(f"v_accvgpr_write_b32 {ONES[i]}, {tA}", 'valu', regs_of(tA), regs_of(ONES[i])) for i in range(4)]
E += [smov(sC[0], hex(f2u(SCALE))), smov(sC[1], hex(f2u(SCALE))), smov(sMASK, '0xffff0000'), smov(sTHR, hex(f2u(cfg.thr)))]
E += [salu('s_add_u32', sNEXT, sWG, NWG), smov(sMODE, 0), smov(sFLAGS, 0), smov(sBIT, 1), smov(sFIN, 0)]
E += minit_reset()
if cfg.stamps:
    E += [raw(f"  s_load_dwordx2 {srdW[0:2]}, s[0:1], {32 if cfg.stampdbg >= 0 else 40}", wr=[srdW[0:2]]), raw("  s_waitcnt lgkmcnt(0)"),
          salu('s_and_b32', srdW[1], srdW[1], '0xffff'), smov(srdW[2], 1 << 20), smov(srdW[3], '0x20000'),
          salu('s_lshl_b32', sSTO, sWG, 2), salu('s_add_u32', sSTO, sSTO, sW)]
    if cfg.stampdbg >= 0:
        E += [salu('s_cmp_eq_u32', None, sSTO, cfg.stampdbg), salu('s_cselect_b32', srdW[2], 64, 0, scc_w=False, scc_r=True), smov(sSTO, 0)]
    else: E += [salu('s_lshl_b32', sSTO, sSTO, 9)]
    E += [smov(sSTI, 0), smov(M0, 0), Inst('v_accvgpr_write_b32 a252, 0', 'valu', [], regs_of(A(252))), Inst('v_accvgpr_write_b32 a253, 0', 'valu', [], regs_of(A(253)))]
    E += stamp()
blk['entry'] = E

def q_place(q, early=False):
    if early == 'ramp': return [(sM0Q, 0), (sM0Q, 4096), (sM0B, 65536 + 49152), (sM0Q, 0), (sM0Q, 4096), (sM0B, 49152)][q]
    if q < 2: return (sM0Q, q * 4096) if early else (sM0B, 16384 * (q + 1))
    if q < 4: return (sM0Q, (q - 2) * 4096)
    return (sM0B, 65536 + 49152) if q == 4 else (sM0B, 49152)
def q_load_q(q, restore_m0=None, early=False):
    b, c = q_place(q, early)
    L = [salu('s_add_u32', sQO, sQH, q * 4096), salu('s_add_u32', M0, b, c)]
    for i in range(4):
        d = dma(dK[i], srdQ, sQO, i * 1024, ('q', q), cfg.q_flags, cfg.dma_cost); d.piece = i; L.append(d)
    if restore_m0: L.append(restore_m0)
    return L
def q_lds_read(dsts, q, early=False):
    b, c = q_place(q, early)
    L = [salu('s_add_u32', sT0, b, c)] + [valu('v_add_u32', X8[j], sT0, aK[j]) for j in range(4)]
    for n, d in enumerate(dsts):
        L += [ds_read('ds_read_b128', d[j], X8[j], n * 4096) for j in range(4)]
    return L
def q_unstage_acc(q):
    return [Inst(f"v_accvgpr_read_b32 {Qf[q][j][i]}, {QST[q][j][i]}", 'valu', regs_of(QST[q][j][i]), regs_of(Qf[q][j][i]))
            for j in range(4) for i in range(4)]
def q_scale_q(q):
    L = []
    for j in range(4):
        x = Qf[q][j]; t = X8
        for i in range(4):
            L.append(valu('v_lshlrev_b32', t[2 * i], 16, x[i]))
            L.append(valu('v_and_b32', t[2 * i + 1], sMASK, x[i]))
        for i in range(4):
            L.append(valu('v_pk_mul_f32', t[2 * i:2 * i + 2], t[2 * i:2 * i + 2], sC))
        for i in range(4):
            L.append(valu('v_cvt_pk_bf16_f32', x[i], t[2 * i], t[2 * i + 1]))
    return L
_ti = [0]
def epi_q(q, tsets):
    D = [salu('s_add_u32', sQO2, sOH, q * 4096)]
    D += [Inst(f"v_accvgpr_read_b32 {RL[1]}, {Lb[q][0]}", 'valu', regs_of(Lb[q][0]), regs_of(RL[1]))]
    if cfg.rowsum == 'mf4':
        D += [valu('v_mov_b32', RL[0], RL[1]), permswap('v_permlane32_swap_b32', RL[0], RL[1]), valu('v_add_f32', RL[1], RL[0], RL[1]),
              valu('v_mov_b32', RL[0], RL[1]), permswap('v_permlane16_swap_b32', RL[0], RL[1]), valu('v_add_f32', RL[1], RL[0], RL[1])]
    D += [valu('v_rcp_f32', RL[0], RL[1], trans=True)]
    if q == 0: D += [valu('v_mov_b32', vX, RL[1])]
    else: D += [valu('v_add_f32', vX, vX, RL[1])]
    for dp in range(4):
        if q < 4:
            t = tsets[dp % len(tsets)]
            for bi in range(2):
                o = Oblk(q, 2 * dp + bi)
                D += [Inst(f"v_accvgpr_read_b32 {t[4*bi+i]}, {o[i]}", 'valu', regs_of(o[i]), regs_of(t[4 * bi + i])) for i in range(4)]
        else:
            o = Oblk(q, 2 * dp); t = V(o.n, 8)
        for i in range(4):
            D += [valu('v_pk_mul_f32', t[2 * i:2 * i + 2], t[2 * i:2 * i + 2], RL, extra="op_sel_hi:[1,0]")]
        T = T4[_ti[0] % 2]; _ti[0] += 1
        for i in range(4): D += [valu('v_cvt_pk_bf16_f32', T[i], t[2 * i], t[2 * i + 1])]
        D += [permswap('v_permlane16_swap_b32', T[0], T[2]), permswap('v_permlane16_swap_b32', T[1], T[3])]
        D += [buf_store('buffer_store_dwordx4', T, vOo, srdO, sQO2, dp * 64, flags=cfg.st_flags)]
    return D
aWA, aRA = A(254), A(255)
def acc_read(d, a): return Inst(f"v_accvgpr_read_b32 {d}, {a}", 'valu', regs_of(a), regs_of(d))
def oreg(q, t):
    return Oblk(q, t)
def epi_a(q):
    half = (q & 1) * 4096
    D = [acc_read(RL[1], Lb[q][0])]
    if cfg.ones1:
        D += [valu('v_mov_b32', RL[0], RL[1]), permswap('v_permlane16_swap_b32', RL[0], RL[1]), valu('v_add_f32', RL[1], RL[0], RL[1]),
              valu('v_mov_b32', RL[0], RL[1]), permswap('v_permlane32_swap_b32', RL[0], RL[1]), valu('v_add_f32', RL[1], RL[0], RL[1])]
    D += [valu('v_rcp_f32', RL[0], RL[1], trans=True)]
    D += [valu('v_mov_b32', vX, RL[1]) if q == 0 else valu('v_add_f32', vX, vX, RL[1])]
    D += [acc_read(RL[1], aWA)]
    for dp in range(4):
        if q < 4:
            t = X8
            for bi in range(2):
                o = Oblk(q, 2 * dp + bi)
                D += [acc_read(t[4 * bi + i], o[i]) for i in range(4)]
        else:
            o = Oblk(q, 2 * dp); t = V(o.n, 8)
        mul = [Inst(f"v_pk_mul_f32 {t[2*i:2*i+2]}, {t[2*i:2*i+2]}, {RL} op_sel_hi:[1,0]", 'valu',
                    regs_of(t[2 * i:2 * i + 2]) + regs_of(RL[0]), regs_of(t[2 * i:2 * i + 2])) for i in range(4)]
        D += mul
        T = T4[dp % 2]
        D += [valu('v_cvt_pk_bf16_f32', T[i], t[2 * i], t[2 * i + 1]) for i in range(4)]
        for bi in range(2):
            db = 2 * dp + bi
            D += [ds_write('ds_write_b64', RL[1], T[2 * bi:2 * bi + 2], half)]
            if db < 7: D += [valu('v_xor_b32', RL[1], (db ^ (db + 1)) << 5, RL[1])]
    D += [acc_read(RL[1], aRA)]
    for t in range(4):
        D += [ds_read('ds_read_b128', oreg(q, t), RL[1], half + t * 1024)]
        if t < 3: D += [valu('v_xor_b32', RL[1], (t ^ (t + 1)) << 6, RL[1])]
    return D
def epi_b(q):
    D = [salu('s_add_u32', sQO2, sOH, q * 4096), waitl(*[oreg(q, t) for t in range(4)])]
    D += [buf_store('buffer_store_dwordx4', oreg(q, t), vOo, srdO, sQO2, t * 1024, flags=cfg.st_flags) for t in range(4)]
    return D
def fail_check():
    return [Inst(f"v_cmp_nge_f32 vcc, {sTHR}, {vX}", 'valu', regs_of(sTHR) + regs_of(vX), [('x', 'vcc')]),
            salu('s_cmp_lg_u64', None, 'vcc', 0), salu('s_cselect_b32', sT0, sBIT, 0, scc_w=False, scc_r=True),
            salu('s_or_b32', sFLAGS, sFLAGS, sT0)]

def is_pk(i): return 'v_pk_' in i.text
def vphase(mf, seq, start=0):
    n = len(seq); out = []
    if not mf: return list(seq)
    tot = sum(i.cost for i in seq if isinstance(i, Inst))
    step = (tot * (1.0 - start)) / len(mf)
    acc = 0.0; nxt = tot * start; k = 0
    for idx, i in enumerate(seq):
        if k < len(mf) and acc >= nxt:
            look = [x for x in seq[idx:idx + 3] if isinstance(x, Inst)]
            if not any(is_pk(x) for x in look):
                m = mf[k]; out += (m if isinstance(m, list) else [m]); k += 1; nxt += step
        out.append(i)
        if isinstance(i, Inst): acc += i.cost
    for m in mf[k:]: out += (m if isinstance(m, list) else [m])
    return out

class Cond:
    n = 0
    def __init__(self, first, body):
        self.first, self.body = first, body
        self.lab = f"L_c{Cond.n}"; Cond.n += 1
        self.head = [salu('s_cmp_eq_u32', None, sFIRST, 0), branch('s_cbranch_scc1' if first else 's_cbranch_scc0', self.lab)]
        self.tail = [label(self.lab)]
    def static(self):
        if cfg.ramp: return [] if self.first else self.body
        return self.head + self.body + self.tail
    def dyn(self, first):
        if cfg.ramp: return [] if self.first else self.body
        return self.head + (self.body if first == self.first else []) + self.tail
def flat_static(seq): return [y for x in seq for y in (x.static() if hasattr(x, 'static') else [x])]
def flat_dyn(seq, flag):
    out = []
    for x in seq:
        if hasattr(x, 'dyn'): out += x.dyn(flag)
        elif flag is True and getattr(x, 'nf_only', False): out.append(Ghost(x))
        else: out.append(x)
    return out
def waitv_nf(*tags):
    w = waitv(*tags); w.nf_only = True; return w

def tile_dma(part, t): return [set_m0(part, t)] + [dma_piece(part, t, i) for i in range(4)]
nxt_tile = lambda: [salu('s_add_u32', sDOFF, sDOFF, 16384)]

RE = 'ramp' if cfg.ramp else False
def stream_head():
    return [salu('s_mul_i32', sQH, sHEAD, QH, scc_w=False), salu('s_mul_i32', sT1, sW, 20480, scc_w=False), salu('s_add_u32', sQH, sQH, sT1),
            salu('s_mul_i32', sDOFF, sHEAD, KH, scc_w=False)] + q_load_q(0, early=RE) + tile_dma('K', 0) + q_load_q(1, early=RE)
blk['entry1'] = stream_head()
B = [label('L_stream')]
B += [salu('s_mul_i32', sNB, sNEXT, KH, scc_w=False), salu('s_cmp_lt_u32', None, sNEXT, 512),
      salu('s_cselect_b32', sNB, sNB, OOB, scc_w=False, scc_r=True),
      salu('s_cselect_b32', sQP, 12 // cfg.bt, 99, scc_w=False, scc_r=True), salu('s_cselect_b32', sTP, 99, 3, scc_w=False, scc_r=True), salu('s_add_u32', sQP1, sQP, 1),
      smov(sFIRST, 1), smov(sOH, OOB), smov(sBITN, sBIT), smov(sBIT, 0)]
blk['stream'] = B

zero_init = [valu('v_mov_b32', Oblk(5, db)[i], 0) for db in range(8) for i in range(4)]
zero_init += [Inst(f"v_accvgpr_write_b32 {Lb[5][i]}, 0", 'valu', [], regs_of(Lb[5][i])) for i in range(4)]
FU = [label('L_fuse'), smov(sPASS, 0)] + stamp()
def st2(): return stamp() if cfg.stamps >= 2 else []
GR = [('q', 0), ('t', 0, 'K'), ('q', 1), ('q', 2), ('q', 3), ('t', 0, 'V'), ('q', 4), ('q', 5),
      ('t', 1, 'K'), ('t', 1, 'V'), ('t', 2, 'K'), ('t', 2, 'V')]
def issue(k):
    t = GR[k]
    if t[0] == 'q': return q_load_q(t[1])
    return tile_dma(t[2], t[1]) + (nxt_tile() if t[2] == 'V' else [])
def top(k, extra=()): return [Cond(True, ([waitv(GR[k - 3])] if k <= 10 else []) + issue(k) + list(extra))]
def qscale(q): return [waitl(*Qf[q])] + q_scale_q(q)
class EpiBlk:
    def __init__(self, n, body, last=False):
        self.head = [] if cfg.ramp else [salu('s_cmp_eq_u32', None, sFIRST, 0), branch('s_cbranch_scc0', f'L_epx{n}')]
        self.body = [label(f'L_epi{n}')] + body
        self.chain = [salu('s_cmp_lg_u32', None, sFIN, 0), branch('s_cbranch_scc1', 'L_end' if last else f'L_epi{n+1}')]
        self.tail = [label(f'L_epx{n}')]
    def static(self): return self.head + self.body + self.chain + self.tail
    def dyn(self, first): return self.head + ([] if first else self.body + self.chain) + self.tail
    def fin(self): return self.body + self.chain
EPIS = [EpiBlk(0, epi_a(0) + epi_a(1) + epi_b(0)), EpiBlk(1, epi_a(2) + epi_b(1)), EpiBlk(2, epi_a(3) + epi_b(2)),
        EpiBlk(3, epi_a(4) + epi_b(3) + epi_a(5) + fail_check() + epi_b(4)), EpiBlk(4, epi_b(5), last=True)]
QK0 = lambda q: qk_mfmas(q, S0[q], 0)
PV0 = lambda q: pv_mfmas(q, Pb[q % 2], first=True)
SM0 = lambda q: sm_valu(S0[q], Pb[q % 2])
pv = pv_mfmas(5, Pb[1])
def pv_db(m):
    for db in range(8):
        if VF[db].regs()[0] in m.ab: return db
    return None
mf0 = [([m] + v_reads(pv_db(m), 0, 0)) if pv_db(m) is not None else [m] for m in pv]
for m in mf0:
    for r in m[1:]: r.tag = ('tx', 0, 'V')
def qs01(q): return [Cond(False, q_unstage_acc(q)), Cond(True, [waitl(*Qf[q])])] + q_scale_q(q)
FU += vphase(mf0, top(3, q_lds_read([Qf[0]], 0)) + qs01(0)
             + top(4, [barrier()] + [k_read(kb, j, 0, 0) for kb in range(2) for j in range(4)])
             + top(5, q_lds_read([Qf[1]], 1)) + qs01(1)) + st2()
FU += [waitl(*ALLK)]
FU += vphase(QK0(0) + QK0(1), top(6) + top(7) + [waitv_nf(('q', 3))] + q_lds_read([Qf[2], Qf[3]], 2) + qscale(2)
             + top(8, [barrier()] + [r for db in range(8) for r in v_reads(db, 0, 0)]) + qscale(3)) + st2()
FU += vphase(QK0(2), max_valu(0) + SM0(0) + max_valu(1) + SM0(1)) + st2()
FU += [EPIS[0]] + st2()
FU += [waitl(*VF)]
FU += vphase(QK0(3) + PV0(0), top(9) + [waitv_nf(('q', 4))] + q_lds_read([Qf[4]], 4) + max_valu(2) + qscale(4)) + [EPIS[1]] + st2()
FU += vphase(QK0(4) + PV0(1), top(10) + [waitv_nf(('q', 5))] + q_lds_read([Qf[5]], 5) + SM0(2) + qscale(5) + max_valu(3)) + [EPIS[2]] + st2()
qk5 = QK0(5); qk5 = [[qk5[kb * 4 + j], k_read(kb, j, 0, 1)] for kb in range(2) for j in range(4)]
FU += vphase(qk5 + PV0(2), SM0(3) + max_valu(4) + top(11, cpf_code(T4[1]) if cfg.cpf == 3 else [])) + [EPIS[3]] + st2()
FU += vphase(PV0(3), SM0(4) + max_valu(5)) + [EPIS[4]] + st2()
FU += [waitl(*ALLK)]
FU += vphase(qk_mfmas(0, Sb[0], NEGM[0]) + PV0(4),
             [set_m0('K', 3), dma_piece('K', 3, 0)] + SM0(5) + [dma_piece('K', 3, 1)] + zero_init[:12] + [dma_piece('K', 3, 2)] + zero_init[12:24]
             + [dma_piece('K', 3, 3)] + zero_init[24:] + [set_m0('V', 3), dma_piece('V', 3, 0)])
if cfg.otouch:
    FU += [salu('s_mul_i32', sT0, sHEAD, QH, scc_w=False), salu('s_mul_i32', sT1, sW, 96 * 256, scc_w=False), salu('s_add_u32', sT0, sT0, sT1),
           Inst(f"buffer_load_dword {V(0)}, off, {srdO}, {sT0}", 'vmem_load', regs_of(srdO) + regs_of(sT0), regs_of(V(0)), tag=('ot',))]
if cfg.sched == 2: FU += [valu('v_exp_f32', Sb[0][i], Sb[0][i], trans=True) for i in range(cfg.hv)]
FU += [smov(sFIRST, 0), smov(sBIT, sBITN), salu('s_mul_i32', sQH, sNEXT, QH, scc_w=False), salu('s_mul_i32', sT1, sW, 20480, scc_w=False), salu('s_add_u32', sQH, sQH, sT1)] + stamp() + [branch('s_branch', 'L_body1')]
blk['fuse'] = FU

RP = [label('L_ramp'), smov(sPASS, 0), smov(sFIRST, 0), smov(sBIT, sBITN)] + stamp()
U = [(n, q) for n in range(4) for q in range(3)] + [(n, q) for n in range(4) for q in range(3, 6)] + [(4, 0)]
def rq_load(q): return q_load_q(q, early='ramp')
def rq_fetch(q): return [waitv(('q', q))] + q_lds_read([Qf[q]], q, early='ramp')
def tV(t): return tile_dma('V', t) + nxt_tile()
kall = lambda n: [k_read(kb, j, n // 2, n % 2) for kb in range(2) for j in range(4)]
RP += rq_fetch(0) + rq_load(2) + qscale(0)
RP += [waitv(('t', 0, 'K')), barrier()] + kall(0) + tV(0)
RP += rq_fetch(1) + tile_dma('K', 1)
extra = {
    -1: ([], qscale(1) + rq_fetch(2) + tV(1)),
    0: ([], qscale(2) + [waitv(('t', 0, 'V')), barrier()] + [r for db in range(8) for r in v_reads(db, 0, 0)] + rq_load(3)),
    2: ([], [waitv(('t', 1, 'K'))] + rq_load(4)),
    4: (rq_load(5), []),
    7: ([], [waitv(('q', 3))] + tile_dma('K', 2)),
    9: (rq_fetch(3), tV(2)),
    10: (rq_fetch(4), qscale(3)),
    11: (rq_fetch(5), qscale(4)),
    12: ([], qscale(5) + tile_dma('K', 3)),
    14: ([], tV(3)),
    22: ([], [set_m0('K', 0)] + [dma_piece('K', 0, i) for i in range(4)]),
    23: ([set_m0('V', 0)] + [dma_piece('V', 0, i) for i in range(2)], [dma_piece('V', 0, i) for i in range(2, 4)] + nxt_tile() + [set_m0('K', 1), dma_piece('K', 1, 0)]),
}
needK = True; needV = True
heavy = {-1, 0, 1, 2, 9, 10, 11, 12, 13, 14}
def r_items(i):
    S_, P_ = Sb[i % 2], Pb[i % 2]
    return ([(x, valu('v_exp_f32', S_[x], S_[x], trans=True)) for x in range(8)],
            [(x, valu('v_cvt_pk_bf16_f32', P_[x], S_[2 * x], S_[2 * x + 1])) for x in range(4)])
RI = {i: r_items(i) for i in range(0, 24)}
def vrel(i): return 1 <= i <= 23 and U[i][0] != U[i - 1][0]
def rho(i): return 2 if (vrel(i) and i not in heavy and (i - 1) not in heavy) else 0
for i in range(-1, 24):
    pre = []; mf = []; fb = []
    n1, q1 = U[i + 1]
    light = i not in heavy
    if i == 4: pre += [waitv(('t', 1, 'V')), barrier()]
    if i == 22: pre += [waitl(*VF), waitv(('t', 2, 'V')), barrier()]; needV = False
    if needK: pre += [waitl(*ALLK)]; needK = False
    qk = qk_mfmas(q1, Sb[(i + 1) % 2], 0 if n1 == 0 else NEGM[q1])
    if i + 2 < len(U) and U[i + 2][0] != n1:
        kr = kall(U[i + 2][0]); needK = True
        if light: fb += [(2 * x + 1, kr[2 * x:2 * x + 2]) for x in range(4)]
        else: qk = [[qk[x], kr[x]] for x in range(8)]
    mf += qk
    if i >= 1:
        n0, q0 = U[i - 1]
        pvm = pv_mfmas(q0, Pb[(i - 1) % 2], first=(n0 == 0))
        rel = vrel(i)
        if light:
            if needV: fb.append((6, [waitl(*VF)])); needV = False
            if rel: fb += [(8 + x, v_reads(pv_db(m), U[i][0] // 2, U[i][0] % 2)) for x, m in enumerate(pvm) if pv_db(m) is not None]
            pl = pvm
        else:
            pl = [([m] + v_reads(pv_db(m), U[i][0] // 2, U[i][0] % 2)) if (rel and pv_db(m) is not None) else [m] for m in pvm]
            if needV: pl[0] = [waitl(*VF)] + pl[0]; needV = False
        if rel: needV = True
        mf += pl
    eh, et = extra.get(i, ([], []))
    if light:
        ex = list(eh) + list(et); gp = 2
        while ex:
            grp = []
            while ex and (not grp or grp[-1].kind != 'dma'): grp.append(ex.pop(0))
            fb.append((min(gp, 16), grp)); gp += 2
        hoist = RI[i + 1][0][:rho(i + 1)] if i + 1 <= 23 else []
        RP += phase2(pre, mf, RI[i][0][rho(i):], RI[i][1], fb, hoist)
    else:
        seq = list(eh)
        if i >= 0:
            n, q = U[i]
            if n == 0: seq += max_valu(q, Sb[i % 2])
            seq += sm_valu(Sb[i % 2], Pb[i % 2])
        seq += et
        RP += pre + vphase(mf, seq)
    if cfg.stamps >= 2 and i in (-1, 0, 2, 5, 8, 11, 13, 17): RP += stamp()
RP += [valu('v_exp_f32', Sb[0][i], Sb[0][i], trans=True) for i in range(cfg.hv)]
RP += [salu('s_mul_i32', sQH, sNEXT, QH, scc_w=False), salu('s_mul_i32', sT1, sW, 20480, scc_w=False), salu('s_add_u32', sQH, sQH, sT1)]
RP += stamp() + [branch('s_branch', 'L_body2')]
blk['ramp'] = RP if cfg.ramp else []

class CondQ:
    n = 0
    def __init__(self, body, dp):
        self.body = body; self.lab = f"L_q{CondQ.n}"; CondQ.n += 1; self.dp = dp
        self.head = [salu('s_cmp_eq_u32', None, sPASS, sQP if dp == 0 else sQP1), branch('s_cbranch_scc0', self.lab)]
        self.tail = [label(self.lab)]
        self.cost = 8
    def static(self): return self.head + self.body + self.tail
    def dyn(self, flag): return self.head + (self.body if flag == self.dp else []) + self.tail

class CondL:
    def __init__(self, body):
        self.body = body; self.lab = "L_nl"
        self.head = [salu('s_cmp_eq_u32', None, sPASS, 3), branch('s_cbranch_scc1', self.lab)]
        self.tail = [label(self.lab)]
        self.cost = 16
    def static(self): return self.head + self.body + self.tail
    def dyn(self, flag): return self.head + ([] if LASTPASS[0] else self.body) + self.tail
LASTPASS = [False]
BT = cfg.bt
NIT = 16 // BT
def set_m0r(part, r):
    if BT == 4: return set_m0(part, r)
    return salu('s_add_u32', M0, sMa if r < 2 else sMb, (65536 if part == 'V' else 0) + (r & 1) * 16384)
def k_read_r(kb, j, r, sub):
    d = k_read(kb, j, r % BT if BT == 2 else r, sub); d.tag = ('t', r, 'K'); return d

def HO(lp): return {0: cfg.hv, 6: cfg.hv, 4: cfg.hk, 10: cfg.hk}.get(lp, 0)
_smi = {}
def sm_items(k, lp):
    if (k, lp) not in _smi:
        q = lp % 6; Ssrc, P = Sb[q % 2], Pb[q % 2]
        _smi[(k, lp)] = ([(i, valu('v_exp_f32_e64' if cfg.exp64 else 'v_exp_f32', Ssrc[i], Ssrc[i], trans=True)) for i in range(8)],
                         [(i, valu('v_cvt_pk_bf16_f32', P[i], Ssrc[2 * i], Ssrc[2 * i + 1])) for i in range(4)])
    return _smi[(k, lp)]
def body_phase(k, lp):
    sub, q = divmod(lp, 6)
    qn = (q + 1) % 6; qp = (q - 1) % 6
    pre = []; fb = []
    mf = qk_mfmas(qn, Sb[(q + 1) % 2], NEGM[qn]) + pv_mfmas(qp, Pb[(q - 1) % 2])
    fa = sm_valu(Sb[q % 2], Pb[q % 2], X8[q] if cfg.rowsum == 'valu' else None)
    if q == 4:
        slot, s2 = (k, 1) if sub == 0 else ((k + 1) % 4, 0)
        if sub == 1:
            if cfg.bgap: fb.append((0, [waitv(('t', slot, 'V')), barrier()]))
            else: pre += [waitv(('t', slot, 'V')), barrier()]
        kr = [k_read_r(kb, j, slot, s2) for kb in range(2) for j in range(4)]
        if cfg.kpair: fb += [(2 * x + 1, kr[2 * x:2 * x + 2]) for x in range(4)]
        else: fb += [(x, [kr[x]]) for x in range(8)]
    if q == 5: pre += [waitl(*ALLK)]
    if q == 0:
        for gi, m in enumerate(mf):
            if gi >= 8 and pv_db(m) is not None: fb.append((gi, v_reads(pv_db(m), k, sub)))
    if q == 1: fb.append((7, [waitl(*VF)]))
    x3 = (k + 3) % 4
    G = cfg.dgap
    if cfg.dgrp == 1:
        if lp in (1, 2, 3): fb.append((G, [dma_piece('K', x3, lp)]))
        if lp == 5: fb.append((G - 1, [set_m0r('V', x3)])); fb.append((G, [dma_piece('V', x3, 0)]))
        if lp in (7, 8, 9): fb.append((G, [dma_piece('V', x3, lp - 6)]))
    elif cfg.dgrp == 2:
        if lp == 2: fb.append((G, [dma_piece('K', x3, 1), dma_piece('K', x3, 2), dma_piece('K', x3, 3)]))
        if lp == 5: fb.append((G - 1, [set_m0r('V', x3)])); fb.append((G, [dma_piece('V', x3, 0)]))
        if lp == 8: fb.append((G, [dma_piece('V', x3, 1), dma_piece('V', x3, 2), dma_piece('V', x3, 3)]))
    assert BT == 4
    cur_m0 = set_m0r('K', x3) if lp < 5 else set_m0r('V', x3)
    if (k, lp) == (0, 8): fb.append((12, [CondQ(q_load_q(0, cur_m0, early=True), 0)]))
    if (k, lp) == (1, 2): fb.append((12, [CondQ(q_load_q(1, cur_m0, early=True), 0)]))
    if (k, lp) == (1, 9): fb.append((12, [CondQ([waitv(('q', 1))] + q_lds_read([QST[0], QST[1]], 0, early=True), 0)]))
    if (k, lp) == (2, 2): fb.append((12, [CondQ([waitl(*QST[0], *QST[1])] + q_load_q(2, cur_m0), 0)]))
    if (k, lp) == (2, 8): fb.append((12, [CondQ(q_load_q(3, cur_m0), 0)]))
    if (k, lp) == (3, 10): fb.append((12, [CondQ(q_load_q(4), 0)]))
    if BT == 2 and k == 1:
        if lp == 7:
            for j in range(4): fb.append((11 + j, [valu('v_xor_b32', aK[j], 32768, aK[j])]))
        if lp in (8, 9):
            for d in range(4): fb.append((9 + 2 * d if lp == 9 else 9 + d // 2 + 6 * (d // 2), [valu('v_xor_b32', aV[4 * (lp - 8) + d], 32768, aV[4 * (lp - 8) + d])]))
    if lp == 11:
        upd = [salu('s_add_u32', sDOFF, sDOFF, 16384)]
        if k == 0:
            upd += [salu('s_cmp_eq_u32', None, sPASS, 12 // BT), salu('s_cselect_b32', sDOFF, sNB, sDOFF, scc_w=False, scc_r=True)]
        fb.append((0, upd[:2]))
        if len(upd) > 2: fb.append((1, upd[2:]))
        if k == 3:
            fb.append((2, [CondL([set_m0r('K', k), dma_piece('K', k, 0)])]))
            fb.append((12, [CondQ(q_load_q(5), 0)]))
        else: fb.append((max(G - 1, 1), [set_m0r('K', k)])); fb.append((max(G, 2), [dma_piece('K', k, 0)]))
        if BT == 2 and k == 1:
            fb.append((13, [salu('s_xor_b32', sMa, sMa, 32768), salu('s_xor_b32', sMb, sMb, 32768)]))
    if cfg.sched == 1: return phase(pre, mf, fa, fb)
    ex, cv = sm_items(k, lp)
    nk, nlp = (k, lp + 1) if lp < 11 else ((k + 1) % BT, 0)
    return phase2(pre, mf, ex[HO(lp):], cv, fb, sm_items(nk, nlp)[0][:HO(nlp)])

BA = [raw(".p2align 6"), label('L_body0')]
for lp in range(6): BA += body_phase(0, lp)
blk['body_a'] = BA
BB = [label('L_body1')]
for lp in range(6, 12): BB += body_phase(0, lp)
for lp in range(12): BB += body_phase(1, lp)
blk['body_b'] = BB
BB = [label('L_body2')]
blk['body_t'] = [salu('s_cmp_eq_u32', None, sPASS, sTP), branch('s_cbranch_scc1', 'L_tail')] if cfg.tail else []
blk['body_c0'] = BB
BB = []
for k in range(2, BT):
    for lp in range(12): BB += body_phase(k, lp)
BB += stamp() + [salu('s_add_u32', sPASS, sPASS, 1), salu('s_cmp_lt_u32', None, sPASS, NIT), branch('s_cbranch_scc1', 'L_body0')]
blk['body_c'] = BB

TL = [label('L_tail'), salu('s_mul_i32', sOH, sHEAD, QH, scc_w=False) if not cfg.nostore else smov(sOH, OOB)]
T = [(n, q) for n in range(28, 32) for q in range(3)] + [(n, q) for n in range(28, 32) for q in range(3, 6)]
TP = lambda i: (27, 5) if i < 0 else T[i]
loc = lambda n: ((n // 2) % 4, n % 2)
ea = {q: epi_a(q) for q in range(3)}; eb = {q: epi_b(q) for q in range(2)}
def cut(L, n, k): return L[len(L) * k // n: len(L) * (k + 1) // n]
textra = {}
stream = ea[0] + ea[1] + eb[0] + ea[2] + eb[1]
TH0 = cfg.th0
nh = 24 - TH0
for k in range(nh): textra[TH0 + k] = cut(stream, nh, k)
TI = {i: r_items(i) for i in range(24)}
def tvrel(i): return TP(i)[0] != TP(i - 1)[0]
def tho(i):
    if i == 0: return HO(0)
    return 2 if (tvrel(i) and i < TH0) else 0
needK = False; needV = False
for i in range(24):
    pre = []; mf = []; fb = []
    light = i < TH0
    if i == 4: pre += [waitv(('t', 3, 'V')), barrier()]
    if needK: pre += [waitl(*ALLK)]; needK = False
    if i + 1 < 24:
        n1, q1 = T[i + 1]
        qk = qk_mfmas(q1, Sb[(i + 1) % 2], NEGM[q1])
        if i + 2 < 24 and T[i + 2][0] != n1:
            kr = [k_read(kb, j, *loc(T[i + 2][0])) for kb in range(2) for j in range(4)]; needK = True
            if light: fb += [(2 * x + 1, kr[2 * x:2 * x + 2]) for x in range(4)]
            else: qk = [[qk[x], kr[x]] for x in range(8)]
        mf += qk
    n0, q0 = TP(i - 1)
    pvm = pv_mfmas(q0, Pb[(i - 1) % 2])
    rel = tvrel(i)
    if light:
        if needV: fb.append((6, [waitl(*VF)])); needV = False
        if rel: fb += [(8 + x, v_reads(pv_db(m), *loc(T[i][0]))) for x, m in enumerate(pvm) if pv_db(m) is not None]
        pl = pvm
    else:
        pl = [([m] + v_reads(pv_db(m), *loc(T[i][0]))) if (rel and pv_db(m) is not None) else [m] for m in pvm]
        if needV: pl[0] = [waitl(*VF)] + pl[0]; needV = False
    if rel: needV = True
    mf += pl
    if light:
        hoist = TI[i + 1][0][:tho(i + 1)]
        TL += phase2(pre, mf, TI[i][0][tho(i):], TI[i][1], fb, hoist)
    else:
        TL += pre + vphase(mf, sm_valu(Sb[i % 2], Pb[i % 2]) + textra[i])
TL += pv_mfmas(5, Pb[1]) + stamp() + [smov(sFIN, 1), branch('s_branch', 'L_epi2')]
blk['tail'] = TL if cfg.tail else []

D1 = [salu('s_mul_i32', sOH, sHEAD, QH, scc_w=False) if not cfg.nostore else smov(sOH, OOB), salu('s_cmp_ge_u32', None, sNEXT, 512), branch('s_cbranch_scc1', 'L_drain')]
blk['bnd_chk'] = D1
N = [smov(sHEAD, sNEXT), smov(sNEXT, '0xffff'), smov(sNB, OOB), smov(sBITN, 2), smov(sQP, 99), smov(sQP1, 99), smov(sTP, 3)] + minit_reset() + [branch('s_branch', 'L_fuse')]
blk['bnd_next'] = N
D = [label('L_drain')] + pv_mfmas(5, Pb[1]) + [smov(sFIN, 1), branch('s_branch', 'L_epi0')]
blk['drain'] = D

F = [label('L_end')] + stamp() + [smov(sFIN, 0)]
F += [valu('v_mov_b32', tA, sFLAGS), valu('v_mov_b32', tB, sM0Q), valu('v_mov_b32', tC, LDS_RING),
      ds_write('ds_write_b32', tB, tA, 0), raw("  s_waitcnt lgkmcnt(0)"), barrier()] + [
      ds_read('ds_read_b32', Y8[i], tC, i * 8192) for i in range(4)] + [raw("  s_waitcnt lgkmcnt(0)"),
      valu('v_or_b32', tA, Y8[0], Y8[1]), valu('v_or3_b32', tA, tA, Y8[2], Y8[3]),
      Inst(f"v_readfirstlane_b32 {sFLAGS}, {tA}", 'valu', regs_of(tA), regs_of(sFLAGS)),
      ] + stamp() + stamp_dump() + [salu('s_cmp_eq_u32', None, sFLAGS, 0), branch('s_cbranch_scc1', 'L_exit')]
blk['end'] = F
M = [label('L_max_pre'), raw('  s_waitcnt vmcnt(0)'), barrier()]
M += [salu('s_and_b32', sT0, sFLAGS, 1), salu('s_add_u32', sT1, sWG, NWG), salu('s_cmp_lg_u32', None, sT0, 0),
      salu('s_cselect_b32', sHEAD, sWG, sT1, scc_w=False, scc_r=True),
      salu('s_cselect_b32', sT0, 1, 2, scc_w=False, scc_r=True), salu('s_andn2_b32', sFLAGS, sFLAGS, sT0),
      smov(sMODE, 1), smov(sBIT, 0), smov(sNEXT, '0xffff')]
M += [salu('s_mul_i32', sQO, sHEAD, QH, scc_w=False)]
for q in range(6):
    M += [buf_load('buffer_load_dwordx4', Qf[q][j], vQo, srdQ, sQO, j * 64, tag=('mq',)) for j in range(4)]
    M += [salu('s_add_u32', sQO, sQO, 4096)]
M += [waitv(('mq',))]
for q in range(6): M += q_scale_q(q)
M += minit_reset()
M += [valu('v_mbcnt_lo_u32_b32', tC, -1, 0), valu('v_mbcnt_hi_u32_b32', tC, -1, tC),
      valu('v_and_b32', tA, 15, tC), valu('v_lshrrev_b32', tB, 4, tC), valu('v_lshlrev_b32', tA, 8, tA),
      valu('v_lshl_add_u32', vX, tB, 4, tA)]
M += [salu('s_mul_i32', sT1, sHEAD, KH, scc_w=False), smov(sIT, 0)]
blk['max_pre'] = M
ML = [label('L_maxloop')]
ML += [buf_load('buffer_load_dwordx4', KF[0][j], vX, srdK, sT1, j * 64, tag=('mk',)) for j in range(4)]
ML += [waitv(('mk',))]
MS = [Sb[0][0:4], Sb[0][4:8], Sb[1][0:4], Sb[1][4:8], X8[0:4], X8[4:8]]
for q in range(6):
    for j in range(4): ML.append(mfma16(MS[q], KF[0][j], Qf[q][j], 0 if j == 0 else MS[q]))
for q in range(6):
    m = NEGM[q][3]
    ML += [valu('v_max3_f32', m, MS[q][0], MS[q][1], m), valu('v_max3_f32', m, MS[q][2], MS[q][3], m)]
ML += [salu('s_add_u32', sT1, sT1, 4096), salu('s_add_u32', sIT, sIT, 1), salu('s_cmp_lt_u32', None, sIT, 64),
       branch('s_cbranch_scc1', 'L_maxloop')]
blk['max_loop'] = ML
blk['max_post'] = stream_head() + [branch('s_branch', 'L_stream')]
blk['exit'] = [label('L_exit'), raw("  s_endpgm")]

def head_trace(first, has_next):
    rp = first and cfg.ramp
    t = list(blk['ramp']) if rp else flat_dyn(blk['fuse'], first)
    for p in range(NIT):
        qf = (p - 12 // BT) if (has_next and p >= 12 // BT) else None
        LASTPASS[0] = (p == NIT - 1)
        b = flat_dyn((blk['body_a'] if p else []) + ([] if (rp and p == 0) else blk['body_b']) + blk['body_c0'] + blk['body_t'], qf)
        if cfg.tail and not has_next and p == NIT - 1:
            return t + b + blk['tail'] + [i for e in EPIS[2:] for i in e.fin()] + blk['end']
        t += b + flat_dyn(blk['body_c'], qf)
    t += blk['bnd_chk'] + (blk['bnd_next'] if has_next else blk['drain'] + [i for e in EPIS for i in e.fin()] + blk['end'])
    return t
trace = blk['entry0'] + blk['entry1'] + blk['entry'] + blk['stream'] + head_trace(True, True) + head_trace(False, False)
for _ in range(2):
    trace += blk['max_pre'] + blk['max_loop'] * 3 + blk['max_post'] + blk['stream'] + head_trace(True, False)
trace += blk['exit']
for b in blk: blk[b] = flat_static(blk[b])

written = {('s', 0), ('s', 1), ('s', 2), ('v', 0)}
for i in trace:
    for r in i.rd:
        if r not in written and (r[0] in 'sx' or i.kind in ('ds_read', 'dma', 'vmem_load')):
            print("UNINIT read", r, "in", i.render().strip()); written.add(r)
    written.update(i.wr)
resolve_waits(trace)
for it in range(10):
    n = check_trace(trace, fix=True, verbose=False)
    if n == 0: break
    if n >= 1000: sys.exit("pending-load errors")
assert check_trace(trace, fix=False) == 0
assert check_lds_protocol(trace)

order = ['entry0', 'entry1', 'entry', 'stream', 'ramp', 'fuse', 'body_a', 'body_b', 'body_c0', 'body_t', 'body_c', 'bnd_chk', 'bnd_next', 'drain', 'tail', 'end',
         'max_pre', 'max_loop', 'max_post', 'exit']
NAME = "standalone__mha_softmax__near_ridge_kernel"
out = f"""; MHA forward (B16 H32 Sq384 Sk1024 D128, bf16) - generated by gen/gen.py (hand-written generator)
; @launch grid=({NWG},1,1) block=(256,1,1) lds={LDS_TOTAL}
.amdgcn_target "amdgcn-amd-amdhsa--gfx950"
.text
.globl {NAME}
.p2align 8
.type {NAME},@function
{NAME}:
"""
for b in order:
    out += f"; ---- {b}\n"
    for i in blk[b]: out += i.render()
out += f""".section .rodata,"a"
.p2align 6
.amdhsa_kernel {NAME}
  .amdhsa_next_free_vgpr 512
  .amdhsa_next_free_sgpr 80
  .amdhsa_accum_offset 256
  .amdhsa_group_segment_fixed_size 0
  .amdhsa_kernarg_size 48
  .amdhsa_user_sgpr_count 2
  .amdhsa_user_sgpr_kernarg_segment_ptr 1
  .amdhsa_system_sgpr_workgroup_id_x 1
.end_amdhsa_kernel
"""
open(sys.argv[1], 'w').write(out)
nn = sum(i.pre_nop for b in ('body_a', 'body_b', 'body_c') for i in blk[b])
print("emitted", sys.argv[1], "insts:", {b: len(blk[b]) for b in order}, "body nops:", nn)
```

```python
import sys, math, struct
from asmlib import *

def f2u(f): return struct.unpack('<I', struct.pack('<f', f))[0]

class Cfg:
    dma_flags = " nt"
    q_flags = " nt"
    st_flags = " nt"
    dma_cost = 8
    thr = 2.0 ** 32
    stamps = 0
    otouch = 0
    nostore = 0
    rowsum = 'mfma'
    bt = 4
    stampdbg = -1
    sched = 2
    hv = 2
    hk = 0
    dgrp = 1
    dgap = 2
    exp64 = 0
    ones1 = 0
    cpf = 2
    ramp = 1
    tail = 1
    kpair = 1
    bgap = 0
    vsum = '123'
    th0 = 13
    q45late = 0
cfg = Cfg()
for a in sys.argv[2:]:
    k, v = a.split('=', 1)
    cur = getattr(cfg, k)
    setattr(cfg, k, type(cur)(v) if not isinstance(cur, str) else v.replace('_', ' '))

NWG = 256
QH = 98304
KH = 262144
Q_BYTES = 512 * QH
K_BYTES = 512 * KH
OOB = 0x10000000
LDS_RING = 131072
LDS_TOTAL = LDS_RING + 32768
SCALE = (128 ** -0.5) * math.log2(math.e)

vTID = V(0)
aK = [V(1 + j) for j in range(4)]
aV = [V(5 + d) for d in range(8)]
dK = [V(13 + i) for i in range(4)]
dV = [V(17 + i) for i in range(2)]
vQo, vOo = V(19), V(20)
vX = V(21)
RL = V(22, 2)
T4 = [V(24, 4), V(28, 4)]
Sb = [V(32, 8), V(40, 8)]
Pb = [V(48, 4), V(52, 4)]
NEGM = [V(56 + 4 * q, 4) for q in range(6)]
Qf = [[V(80 + (q * 4 + j) * 4, 4) for j in range(4)] for q in range(6)]
def Oblk(q, db):
    if q < 4: return A((q * 8 + db) * 4, 4)
    return V(176 + ((q - 4) * 8 + db) * 4, 4)
X8 = V(240, 8)
Y8 = V(248, 8)
KF = [[A(128 + (kb * 4 + j) * 4, 4) for j in range(4)] for kb in range(2)]
VF = [A(160 + db * 4, 4) for db in range(8)]
Lb = [A(192 + 4 * q, 4) for q in range(6)]
ONES = A(216, 4)
S0 = [Sb[0], Y8, Sb[1], Sb[0], Y8, Sb[1]]
QST = [[A(220 + (q * 4 + j) * 4, 4) for j in range(4)] for q in range(2)]
vQs = V(0)

srdQ, srdK, srdV, srdO = S(8, 4), S(12, 4), S(16, 4), S(20, 4)
sWG = S(2)
sW, sM0B, sHEAD, sNEXT, sDOFF, sNB, sPASS, sMODE, sFLAGS, sQO, sBIT, sTHR = [S(24 + i) for i in range(12)]
sARG = S(36, 8)
sC = S(44, 2)
sMASK, sFIRST, sT0, sT1, sIT, sOH, sQH, sQP = S(46), S(47), S(48), S(49), S(50), S(51), S(62), S(63)
M0 = 'm0'
sQO2, sM0Q, sBITN, M0S, sFIN, sMa, sMb, sQP1 = [S(64 + i) for i in range(8)]
sTP = S(74)

def smov(d, x): return salu('s_mov_b32', d, x, scc_w=False)
srdW = S(56, 4); sST = S(52, 2); sSTO = S(54); sST2 = S(60, 2)
sSTI = S(55)
def stamp():
    if not cfg.stamps: return []
    t0, t1 = T4[0][0], T4[0][1]
    def acc_r(d, a): return Inst(f"v_accvgpr_read_b32 {d}, {a}", 'valu', regs_of(a), regs_of(d))
    def acc_w(a, d): return Inst(f"v_accvgpr_write_b32 {a}, {d}", 'valu', regs_of(d), regs_of(a))
    def wl(d, s): return Inst(f"v_writelane_b32 {d}, {s}, {sSTI}", 'valu', regs_of(d) + regs_of(s) + regs_of(sSTI), regs_of(d))
    return [raw(f"  s_memtime {sST}", wr=[sST]), raw(f"  s_memrealtime {sST2}", wr=[sST2]), acc_r(t0, A(252)), acc_r(t1, A(253)),
            raw("  s_waitcnt lgkmcnt(0)"), smov(M0S, M0), smov(M0, sSTI), nop(1),
            Inst(f"v_writelane_b32 {t0}, {sST[0]}, m0", 'valu', regs_of(t0), regs_of(t0)),
            Inst(f"v_writelane_b32 {t1}, {sST2[0]}, m0", 'valu', regs_of(t1), regs_of(t1)),
            smov(M0, M0S), acc_w(A(252), t0), acc_w(A(253), t1), salu('s_add_u32', sSTI, sSTI, 1)]
def stamp_dump():
    if not cfg.stamps: return []
    t = T4[0]
    st = Inst(f"buffer_store_dwordx2 {t[0:2]}, {t[2]}, {srdW}, {sSTO} offen", 'vmem_store', regs_of(t[0:3]) + regs_of(srdW) + regs_of(sSTO), [])
    st.sdata = regs_of(t[0:2])
    if cfg.stampdbg >= 0:
        st = Inst(f"buffer_store_dword {t[1]}, {t[2]}, {srdW}, {sSTO} offen", 'vmem_store', regs_of(t[0:3]) + regs_of(srdW) + regs_of(sSTO), [])
        st.sdata = regs_of(t[1])
        return [Inst(f"v_accvgpr_read_b32 {t[1]}, a253", 'valu', regs_of(A(253)), regs_of(t[1])),
                valu('v_mbcnt_lo_u32_b32', t[2], -1, 0), valu('v_mbcnt_hi_u32_b32', t[2], -1, t[2]), valu('v_lshlrev_b32', t[2], 2, t[2]), st]
    return [Inst(f"v_accvgpr_read_b32 {t[0]}, a252", 'valu', regs_of(A(252)), regs_of(t[0])),
            Inst(f"v_accvgpr_read_b32 {t[1]}, a253", 'valu', regs_of(A(253)), regs_of(t[1])),
            valu('v_mbcnt_lo_u32_b32', t[2], -1, 0), valu('v_mbcnt_hi_u32_b32', t[2], -1, t[2]), valu('v_lshlrev_b32', t[2], 3, t[2]), st]

def phase(pre, mf, fa, fb=(), fa_start=0):
    out = list(pre)
    fb = sorted(fb, key=lambda x: x[0])
    total = sum(i.cost for i in fa) + sum(i.cost for _, l in fb for i in l)
    ng = len(mf)
    budget = max(8, int(math.ceil(total / max(ng - fa_start, 1) / 4.0)) * 4)
    ia = 0
    fb = list(fb)
    for g, m in enumerate(mf):
        out.append(m)
        rem = budget
        while fb and fb[0][0] <= g:
            c = sum(i.cost for i in fb[0][1])
            if c <= rem or rem == budget:
                out += fb[0][1]; rem -= c; fb.pop(0)
            else: break
        while g >= fa_start and ia < len(fa) and fa[ia].cost <= rem:
            out.append(fa[ia]); rem -= fa[ia].cost; ia += 1
    for _, l in fb: out += l
    out += fa[ia:]
    return out

def phase2(pre, mf, exps, cvts, fb, hoist, adds=()):
    out = list(pre)
    fb = sorted(fb, key=lambda x: x[0])
    exps = list(exps); cvts = list(cvts); hoist = list(hoist)
    done = {i: -1 for i in range(8)}
    for i, _ in exps: done.pop(i)
    ng = len(mf)
    adds = list(adds); cdone = {}
    for g, m in enumerate(mf):
        out.append(m)
        rem = 8
        while fb and fb[0][0] <= g:
            c = sum(i.cost for i in fb[0][1])
            if c <= rem or rem == 8:
                out += fb[0][1]; rem -= c; fb.pop(0)
            else: break
        def ready_cvt():
            for n, (i, c) in enumerate(cvts):
                if done.get(2 * i, g) < g and done.get(2 * i + 1, g) < g: return n
            return None
        while rem > 0:
            rc = ready_cvt()
            nready = sum(1 for (i, c) in cvts if done.get(2 * i, g) < g and done.get(2 * i + 1, g) < g)
            if rem == 8 and exps and not (nready >= 2 and len(exps) <= cfg_tail(g, ng, exps, cvts)):
                i, e = exps.pop(0); out.append(e); done[i] = g; rem -= 8
            elif rc is not None:
                ci, cinst = cvts.pop(rc); out.append(cinst); cdone[ci] = g; rem -= 4
            elif adds and all(c in cdone for c in adds[0][0]):
                out.append(adds.pop(0)[1]); rem -= 4
            elif rem == 8 and hoist and g >= (9 if hoist[0][0] < 4 else 12):
                out.append(hoist.pop(0)[1]); rem -= 8
            else: break
    for _, l in fb: out += l
    out += [e for _, e in exps] + [c for _, c in cvts] + [a for _, a in adds] + [e for _, e in hoist]
    return out
def cfg_tail(g, ng, exps, cvts): return 4

def qk_mfmas(q, Sdst, cinit):
    L = []
    for kb in range(2):
        d = Sdst[4 * kb:4 * kb + 4]
        for j in range(4):
            L.append(mfma16(d, KF[kb][j], Qf[q][j], (cinit if j == 0 else d)))
    return L
def pv_mfmas(q, P, first=False, nosum=False):
    L = [mfma16(Oblk(q, db), VF[db], P, 0 if first else Oblk(q, db)) for db in range(8)]
    if nosum: return L
    if cfg.rowsum == 'mf4':
        L.insert(4, mfma4(Lb[q], ONES[0:2], P[0:2], 0 if first else Lb[q]))
        L.append(mfma4(Lb[q], ONES[0:2], P[2:4], Lb[q]))
    elif cfg.rowsum == 'mfma' or first: L.append(mfma16(Lb[q], ONES, P, 0 if first else Lb[q]))
    return L
def sm_valu(Ssrc, P, lacc=None):
    e = [valu('v_exp_f32', Ssrc[i], Ssrc[i], trans=True) for i in range(8)]
    c = [valu('v_cvt_pk_bf16_f32', P[i], Ssrc[2 * i], Ssrc[2 * i + 1]) for i in range(4)]
    if lacc is not None:
        a = [valu('v_add_f32', lacc, lacc, Ssrc[i]) for i in range(8)]
        return [e[0], e[1], a[0], c[0], e[2], a[1], a[2], e[3], e[4], a[3], c[1], e[5], a[4], a[5], e[6], e[7], c[2], a[6], a[7], c[3]]
    return [e[0], e[1], e[2], c[0], e[3], e[4], c[1], e[5], e[6], c[2], e[7], c[3]]
def k_read(kb, j, slot, sub):
    return ds_read('ds_read_b128', KF[kb][j], aK[j], slot * 16384 + sub * 8192 + kb * 4096, tag=('t', slot, 'K'))
def v_reads(db, slot, sub):
    return [ds_read('ds_read_b64_tr_b16', VF[db][2 * h:2 * h + 2], aV[db], slot * 16384 + sub * 8192 + h * 4096, tag=('t', slot, 'V'))
            for h in range(2)]
def dma_piece(part, slot, idx):
    if part == 'K': d = dma(dK[idx], srdK, sDOFF, idx * 1024, ('t', slot, 'K'), cfg.dma_flags, cfg.dma_cost)
    else: d = dma(dV[idx & 1], srdV, sDOFF, idx * 1024, ('t', slot, 'V'), cfg.dma_flags, cfg.dma_cost)
    d.piece = idx
    return d
def set_m0(part, slot):
    return salu('s_add_u32', M0, sM0B, (65536 if part == 'V' else 0) + slot * 16384)
ALLK = [KF[kb][j] for kb in range(2) for j in range(4)]

def q_loads():
    L = [salu('s_mul_i32', sQO, sHEADQ, QH, scc_w=False)]
    for q in range(6):
        for j in range(4):
            L.append(buf_load('buffer_load_dwordx4', Qf[q][j], vQo, srdQ, sQO, j * 64, tag=('q', q), flags=cfg.q_flags))
        if q < 5: L.append(salu('s_add_u32', sQO, sQO, 4096))
    return L
def q_scale():
    L = []
    for q in range(6):
        L.append(waitv(('q', q)))
        for j in range(4):
            x = Qf[q][j]; t = X8 if (j & 1) == 0 else Y8
            for i in range(4):
                L.append(valu('v_lshlrev_b32', t[2 * i], 16, x[i]))
                L.append(valu('v_and_b32', t[2 * i + 1], sMASK, x[i]))
            for i in range(4):
                L.append(valu('v_pk_mul_f32', t[2 * i:2 * i + 2], t[2 * i:2 * i + 2], sC))
            for i in range(4):
                L.append(valu('v_cvt_pk_bf16_f32', x[i], t[2 * i], t[2 * i + 1]))
    return L
def minit_reset():
    return [valu('v_mov_b32', NEGM[q][3], '0xff800000') for q in range(6)]

def max_valu(q, s=None):
    s = S0[q] if s is None else s; m = NEGM[q][3]; t = RL[q & 1]
    L = [valu('v_max3_f32', m, s[0], s[1], m), valu('v_max3_f32', m, s[2], s[3], m),
         valu('v_max3_f32', m, s[4], s[5], m), valu('v_max3_f32', m, s[6], s[7], m),
         valu('v_mov_b32', t, m), permswap('v_permlane32_swap_b32', t, m), valu('v_max_f32', m, t, m),
         valu('v_mov_b32', t, m), permswap('v_permlane16_swap_b32', t, m), valu('v_max_f32', t, t, m)]
    L += [valu('v_sub_f32', s[i], s[i], t) for i in range(8)]
    L += [valu('v_sub_f32', NEGM[q][i], 0, t) for i in range(4)]
    return L

blk = {}
E = []
E += [salu('s_cmp_ge_u32', None, sWG, NWG), branch('s_cbranch_scc1', 'L_exit')]
E += [raw(f"  s_load_dwordx8 {sARG}, s[0:1], 0", wr=[sARG])]
E += [valu('v_lshrrev_b32', vX, 6, vTID), valu('v_and_b32', vTID, 63, vTID)]
E += [Inst(f"v_readfirstlane_b32 {sW}, {vX}", 'valu', regs_of(vX), regs_of(sW))]
tA, tB, tC, tD = X8[0], X8[1], X8[2], X8[3]
tQ, tG = X8[4], X8[5]
E += [valu('v_and_b32', tQ, 15, vTID), valu('v_lshrrev_b32', tG, 4, vTID)]
E += [smov(sHEAD, sWG), valu('v_lshlrev_b32', tA, 8, tQ), valu('v_xor_b32', tD, tG, tQ)]
E += [salu('s_mul_i32', sT0, sW, 96 * 256, scc_w=False), salu('s_lshl_b32', sM0B, sW, 12), salu('s_lshl_b32', sM0Q, sW, 13), salu('s_add_u32', sM0Q, sM0Q, LDS_RING)]
E += [valu('v_add_u32', tA, sT0, tA), valu('v_lshl_add_u32', vQo, tG, 4, tA)]
E += [valu('v_lshlrev_b32', tB, 8, tG), valu('v_add_u32', tB, sM0B, tB)]
for i in range(4):
    E += [valu('v_xor_b32', tC, 4 * i, tD), valu('v_lshl_add_u32', dK[i], tC, 4, tB)]
def mk_srd(srd, k, nb): return [smov(srd[0], sARG[k]), salu('s_and_b32', srd[1], sARG[k + 1], '0xffff'), smov(srd[2], nb), smov(srd[3], '0x20000')]
E += [smov(srdQ[2], Q_BYTES), smov(srdQ[3], '0x20000'), smov(srdK[2], K_BYTES), smov(srdK[3], '0x20000')]
CPF_EARLY = len(E)
E += [raw("  s_waitcnt lgkmcnt(0)")]
E += [smov(srdQ[0], sARG[0]), salu('s_and_b32', srdQ[1], sARG[1], '0xffff'), smov(srdK[0], sARG[2]), salu('s_and_b32', srdK[1], sARG[3], '0xffff')]
blk['entry0'] = E
E = []
sPC = S(72, 2)
def cpf_code(dst):
    L = [salu('s_lshr_b32', sT1, sWG, 3), salu('s_lshl_b32', sT1, sT1, 2), salu('s_add_u32', sT1, sT1, sW)]
    if cfg.cpf == 1: L += [salu('s_and_b32', sT1, sT1, 31)]
    else: L += [salu('s_cmp_ge_u32', None, sT1, 23 + 10 * cfg.ramp + 8 * cfg.tail), branch('s_cbranch_scc1', 'L_nocpf')]
    L += [salu('s_lshl_b32', sT1, sT1, 10), valu('v_mbcnt_lo_u32_b32', dst[0], -1, 0), valu('v_mbcnt_hi_u32_b32', dst[0], -1, dst[0]),
          valu('v_lshlrev_b32', dst[0], 4, dst[0]), valu('v_add_u32', dst[0], sT1, dst[0]),
          raw(f"  v_min_u32 {dst[0]}, L_max_pre - L_pc - 16, {dst[0]}", kind='valu', rd=[dst[0]], wr=[dst[0]]),
          Inst(f"global_load_dwordx4 {dst[0:4]}, {dst[0]}, {sPC}", 'vmem_load', regs_of(dst[0]) + regs_of(sPC), regs_of(dst[0:4]), tag=('cpf',))]
    if cfg.cpf != 1:
        L[-1].optional = True
        L += [label('L_nocpf')]
    return L
if cfg.cpf == 4:
    blk['entry0'][CPF_EARLY:CPF_EARLY] = [raw(f"  s_getpc_b64 {sPC}", wr=[sPC]), label('L_pc')] + cpf_code(Y8[4:8])
elif cfg.cpf:
    E += [raw(f"  s_getpc_b64 {sPC}", wr=[sPC]), label('L_pc')]
    if cfg.cpf <= 2: E += cpf_code(Y8[4:8])
E += mk_srd(srdV, 4, K_BYTES) + mk_srd(srdO, 6, Q_BYTES)
E += [valu('v_lshlrev_b32', tA, 1, tG), valu('v_xor_b32', tA, tA, tQ)]
for i in range(2):
    E += [valu('v_xor_b32', tC, 8 * i, tA), valu('v_lshl_add_u32', dV[i], tC, 4, tB)]
E += [valu('v_lshlrev_b32', tB, 8, tQ)]
for j in range(4):
    E += [valu('v_xor_b32', tC, 4 * j, tD), valu('v_lshl_add_u32', aK[j], tC, 4, tB)]
E += [valu('v_lshrrev_b32', tA, 2, vTID), valu('v_and_b32', tC, 7, tA), valu('v_lshlrev_b32', tA, 8, tA),
      valu('v_and_b32', tB, 3, vTID), valu('v_lshl_add_u32', tA, tB, 3, tA), valu('v_add_u32', tA, 65536, tA)]
for db in range(8):
    E += [valu('v_xor_b32', tB, db, tC), valu('v_lshl_add_u32', aV[db], tB, 5, tA)]
E += [valu('v_lshlrev_b32', vOo, 4, vTID), valu('v_add_u32', vOo, sT0, vOo)]
E += [smov(sMa, sM0B), salu('s_add_u32', sMb, sM0B, 32768)]
E += [valu('v_lshrrev_b32', tA, 1, tG), valu('v_xor_b32', tA, tA, tQ), valu('v_lshlrev_b32', tA, 4, tA), valu('v_lshl_add_u32', tA, tQ, 8, tA),
      valu('v_and_b32', tB, 1, tG), valu('v_lshl_add_u32', tA, tB, 3, tA), valu('v_add_u32', tA, sM0Q, tA),
      Inst("v_accvgpr_write_b32 a254, " + str(tA), 'valu', regs_of(tA), regs_of(A(254))),
      valu('v_lshlrev_b32', tA, 4, tD), valu('v_lshl_add_u32', tA, tG, 8, tA), valu('v_add_u32', tA, sM0Q, tA),
      Inst("v_accvgpr_write_b32 a255, " + str(tA), 'valu', regs_of(tA), regs_of(A(255)))]
E += [valu('v_mov_b32', tA, '0x3f803f80')]
if cfg.ones1:
    E += [Inst(f"v_cmp_eq_u32 vcc, 0, {tQ}", 'valu', regs_of(tQ), [('x', 'vcc')]),
          Inst(f"v_cndmask_b32 {tA}, 0, {tA}, vcc", 'valu', regs_of(tA) + [('x', 'vcc')], regs_of(tA))]
E += [Inst(f"v_accvgpr_write_b32 {ONES[i]}, {tA}", 'valu', regs_of(tA), regs_of(ONES[i])) for i in range(4)]
E += [smov(sC[0], hex(f2u(SCALE))), smov(sC[1], hex(f2u(SCALE))), smov(sMASK, '0xffff0000'), smov(sTHR, hex(f2u(cfg.thr)))]
E += [salu('s_add_u32', sNEXT, sWG, NWG), smov(sMODE, 0), smov(sFLAGS, 0), smov(sBIT, 1), smov(sFIN, 0)]
E += minit_reset()
if cfg.stamps:
    E += [raw(f"  s_load_dwordx2 {srdW[0:2]}, s[0:1], {32 if cfg.stampdbg >= 0 else 40}", wr=[srdW[0:2]]), raw("  s_waitcnt lgkmcnt(0)"),
          salu('s_and_b32', srdW[1], srdW[1], '0xffff'), smov(srdW[2], 1 << 20), smov(srdW[3], '0x20000'),
          salu('s_lshl_b32', sSTO, sWG, 2), salu('s_add_u32', sSTO, sSTO, sW)]
    if cfg.stampdbg >= 0:
        E += [salu('s_cmp_eq_u32', None, sSTO, cfg.stampdbg), salu('s_cselect_b32', srdW[2], 64, 0, scc_w=False, scc_r=True), smov(sSTO, 0)]
    else: E += [salu('s_lshl_b32', sSTO, sSTO, 9)]
    E += [smov(sSTI, 0), smov(M0, 0), Inst('v_accvgpr_write_b32 a252, 0', 'valu', [], regs_of(A(252))), Inst('v_accvgpr_write_b32 a253, 0', 'valu', [], regs_of(A(253)))]
    E += stamp()
blk['entry'] = E

def q_place(q, early=False):
    if early == 'ramp': return [(sM0Q, 0), (sM0Q, 4096), (sM0B, 65536 + 49152), (sM0Q, 0), (sM0Q, 4096), (sM0B, 49152)][q]
    if q < 2: return (sM0Q, q * 4096) if early else (sM0B, 16384 * (q + 1))
    if q < 4: return (sM0Q, (q - 2) * 4096)
    return (sM0B, 65536 + 49152) if q == 4 else (sM0B, 49152)
def q_load_q(q, restore_m0=None, early=False):
    b, c = q_place(q, early)
    L = [salu('s_add_u32', sQO, sQH, q * 4096), salu('s_add_u32', M0, b, c)]
    for i in range(4):
        d = dma(dK[i], srdQ, sQO, i * 1024, ('q', q), cfg.q_flags, cfg.dma_cost); d.piece = i; L.append(d)
    if restore_m0: L.append(restore_m0)
    return L
def q_lds_read(dsts, q, early=False):
    b, c = q_place(q, early)
    L = [salu('s_add_u32', sT0, b, c)] + [valu('v_add_u32', X8[j], sT0, aK[j]) for j in range(4)]
    for n, d in enumerate(dsts):
        L += [ds_read('ds_read_b128', d[j], X8[j], n * 4096) for j in range(4)]
    return L
def q_unstage_acc(q):
    return [Inst(f"v_accvgpr_read_b32 {Qf[q][j][i]}, {QST[q][j][i]}", 'valu', regs_of(QST[q][j][i]), regs_of(Qf[q][j][i]))
            for j in range(4) for i in range(4)]
def q_scale_q(q):
    L = []
    for j in range(4):
        x = Qf[q][j]; t = X8
        for i in range(4):
            L.append(valu('v_lshlrev_b32', t[2 * i], 16, x[i]))
            L.append(valu('v_and_b32', t[2 * i + 1], sMASK, x[i]))
        for i in range(4):
            L.append(valu('v_pk_mul_f32', t[2 * i:2 * i + 2], t[2 * i:2 * i + 2], sC))
        for i in range(4):
            L.append(valu('v_cvt_pk_bf16_f32', x[i], t[2 * i], t[2 * i + 1]))
    return L
_ti = [0]
def epi_q(q, tsets):
    D = [salu('s_add_u32', sQO2, sOH, q * 4096)]
    D += [Inst(f"v_accvgpr_read_b32 {RL[1]}, {Lb[q][0]}", 'valu', regs_of(Lb[q][0]), regs_of(RL[1]))]
    if cfg.rowsum == 'mf4':
        D += [valu('v_mov_b32', RL[0], RL[1]), permswap('v_permlane32_swap_b32', RL[0], RL[1]), valu('v_add_f32', RL[1], RL[0], RL[1]),
              valu('v_mov_b32', RL[0], RL[1]), permswap('v_permlane16_swap_b32', RL[0], RL[1]), valu('v_add_f32', RL[1], RL[0], RL[1])]
    D += [valu('v_rcp_f32', RL[0], RL[1], trans=True)]
    if q == 0: D += [valu('v_mov_b32', vX, RL[1])]
    else: D += [valu('v_add_f32', vX, vX, RL[1])]
    for dp in range(4):
        if q < 4:
            t = tsets[dp % len(tsets)]
            for bi in range(2):
                o = Oblk(q, 2 * dp + bi)
                D += [Inst(f"v_accvgpr_read_b32 {t[4*bi+i]}, {o[i]}", 'valu', regs_of(o[i]), regs_of(t[4 * bi + i])) for i in range(4)]
        else:
            o = Oblk(q, 2 * dp); t = V(o.n, 8)
        for i in range(4):
            D += [valu('v_pk_mul_f32', t[2 * i:2 * i + 2], t[2 * i:2 * i + 2], RL, extra="op_sel_hi:[1,0]")]
        T = T4[_ti[0] % 2]; _ti[0] += 1
        for i in range(4): D += [valu('v_cvt_pk_bf16_f32', T[i], t[2 * i], t[2 * i + 1])]
        D += [permswap('v_permlane16_swap_b32', T[0], T[2]), permswap('v_permlane16_swap_b32', T[1], T[3])]
        D += [buf_store('buffer_store_dwordx4', T, vOo, srdO, sQO2, dp * 64, flags=cfg.st_flags)]
    return D
VS = {int(c): r for c, r in zip(cfg.vsum, [V(0), V(19), V(21)])}
sFA = S(76, 2)
aWA, aRA = A(254), A(255)
def acc_read(d, a): return Inst(f"v_accvgpr_read_b32 {d}, {a}", 'valu', regs_of(a), regs_of(d))
def oreg(q, t):
    return Oblk(q, t)
def epi_a(q):
    half = (q & 1) * 4096
    D = [acc_read(RL[1], Lb[q][0])]
    if cfg.ones1:
        D += [valu('v_mov_b32', RL[0], RL[1]), permswap('v_permlane16_swap_b32', RL[0], RL[1]), valu('v_add_f32', RL[1], RL[0], RL[1]),
              valu('v_mov_b32', RL[0], RL[1]), permswap('v_permlane32_swap_b32', RL[0], RL[1]), valu('v_add_f32', RL[1], RL[0], RL[1])]
    if q in VS:
        v = VS[q]
        D += [valu('v_mov_b32', RL[0], v), permswap('v_permlane16_swap_b32', RL[0], v), valu('v_add_f32', v, RL[0], v),
              valu('v_mov_b32', RL[0], v), permswap('v_permlane32_swap_b32', RL[0], v), valu('v_add_f32', v, RL[0], v),
              valu('v_add_f32', RL[1], RL[1], v), valu('v_mov_b32', v, 0)]
    D += [valu('v_rcp_f32', RL[0], RL[1], trans=True)]
    D += [Inst(f"v_cmp_nge_f32 vcc, {sTHR}, {RL[1]}", 'valu', regs_of(sTHR) + regs_of(RL[1]), [('x', 'vcc')])]
    FC = [salu('s_mov_b64', sFA, 'vcc', scc_w=False) if q == 0 else salu('s_or_b64', sFA, sFA, 'vcc')]
    D += [acc_read(RL[1], aWA)]
    for dp in range(4):
        if q < 4:
            t = X8
            for bi in range(2):
                o = Oblk(q, 2 * dp + bi)
                D += [acc_read(t[4 * bi + i], o[i]) for i in range(4)]
        else:
            o = Oblk(q, 2 * dp); t = V(o.n, 8)
        mul = [Inst(f"v_pk_mul_f32 {t[2*i:2*i+2]}, {t[2*i:2*i+2]}, {RL} op_sel_hi:[1,0]", 'valu',
                    regs_of(t[2 * i:2 * i + 2]) + regs_of(RL[0]), regs_of(t[2 * i:2 * i + 2])) for i in range(4)]
        D += mul
        if dp == 0: D += FC
        T = T4[dp % 2]
        D += [valu('v_cvt_pk_bf16_f32', T[i], t[2 * i], t[2 * i + 1]) for i in range(4)]
        for bi in range(2):
            db = 2 * dp + bi
            D += [ds_write('ds_write_b64', RL[1], T[2 * bi:2 * bi + 2], half)]
            if db < 7: D += [valu('v_xor_b32', RL[1], (db ^ (db + 1)) << 5, RL[1])]
    D += [acc_read(RL[1], aRA)]
    for t in range(4):
        D += [ds_read('ds_read_b128', oreg(q, t), RL[1], half + t * 1024)]
        if t < 3: D += [valu('v_xor_b32', RL[1], (t ^ (t + 1)) << 6, RL[1])]
    return D
def epi_b(q):
    D = [salu('s_add_u32', sQO2, sOH, q * 4096), waitl(*[oreg(q, t) for t in range(4)])]
    D += [buf_store('buffer_store_dwordx4', oreg(q, t), vOo, srdO, sQO2, t * 1024, flags=cfg.st_flags) for t in range(4)]
    return D
def fail_check():
    return [salu('s_cmp_lg_u64', None, sFA, 0), salu('s_cselect_b32', sT0, sBIT, 0, scc_w=False, scc_r=True),
            salu('s_or_b32', sFLAGS, sFLAGS, sT0)]

def is_pk(i): return 'v_pk_' in i.text
def vphase(mf, seq, start=0):
    n = len(seq); out = []
    if not mf: return list(seq)
    tot = sum(i.cost for i in seq if isinstance(i, Inst))
    step = (tot * (1.0 - start)) / len(mf)
    acc = 0.0; nxt = tot * start; k = 0
    for idx, i in enumerate(seq):
        if k < len(mf) and acc >= nxt:
            look = [x for x in seq[idx:idx + 3] if isinstance(x, Inst)]
            if not any(is_pk(x) for x in look):
                m = mf[k]; out += (m if isinstance(m, list) else [m]); k += 1; nxt += step
        out.append(i)
        if isinstance(i, Inst): acc += i.cost
    for m in mf[k:]: out += (m if isinstance(m, list) else [m])
    return out

class Cond:
    n = 0
    def __init__(self, first, body):
        self.first, self.body = first, body
        self.lab = f"L_c{Cond.n}"; Cond.n += 1
        self.head = [salu('s_cmp_eq_u32', None, sFIRST, 0), branch('s_cbranch_scc1' if first else 's_cbranch_scc0', self.lab)]
        self.tail = [label(self.lab)]
    def static(self):
        if cfg.ramp: return [] if self.first else self.body
        return self.head + self.body + self.tail
    def dyn(self, first):
        if cfg.ramp: return [] if self.first else self.body
        return self.head + (self.body if first == self.first else []) + self.tail
def flat_static(seq): return [y for x in seq for y in (x.static() if hasattr(x, 'static') else [x])]
def flat_dyn(seq, flag):
    out = []
    for x in seq:
        if hasattr(x, 'dyn'): out += x.dyn(flag)
        elif flag is True and getattr(x, 'nf_only', False): out.append(Ghost(x))
        else: out.append(x)
    return out
def waitv_nf(*tags):
    w = waitv(*tags); w.nf_only = True; return w

def tile_dma(part, t): return [set_m0(part, t)] + [dma_piece(part, t, i) for i in range(4)]
nxt_tile = lambda: [salu('s_add_u32', sDOFF, sDOFF, 16384)]

RE = 'ramp' if cfg.ramp else False
def stream_head():
    return [salu('s_mul_i32', sQH, sHEAD, QH, scc_w=False), salu('s_mul_i32', sT1, sW, 20480, scc_w=False), salu('s_add_u32', sQH, sQH, sT1),
            salu('s_mul_i32', sDOFF, sHEAD, KH, scc_w=False)] + q_load_q(0, early=RE) + tile_dma('K', 0) + q_load_q(1, early=RE)
blk['entry1'] = stream_head()
B = [label('L_stream')]
B += [salu('s_mul_i32', sNB, sNEXT, KH, scc_w=False), salu('s_cmp_lt_u32', None, sNEXT, 512),
      salu('s_cselect_b32', sNB, sNB, OOB, scc_w=False, scc_r=True),
      salu('s_cselect_b32', sQP, 12 // cfg.bt, 99, scc_w=False, scc_r=True), salu('s_cselect_b32', sTP, 99, 3, scc_w=False, scc_r=True), salu('s_add_u32', sQP1, sQP, 1),
      smov(sFIRST, 1), smov(sOH, OOB), smov(sBITN, sBIT), smov(sBIT, 0)]
blk['stream'] = B

zero_init = [valu('v_mov_b32', Oblk(5, db)[i], 0) for db in range(8) for i in range(4)]
zero_init += [Inst(f"v_accvgpr_write_b32 {Lb[5][i]}, 0", 'valu', [], regs_of(Lb[5][i])) for i in range(4)]
FU = [label('L_fuse'), smov(sPASS, 0)] + stamp()
def st2(): return stamp() if cfg.stamps >= 2 else []
GR = [('q', 0), ('t', 0, 'K'), ('q', 1), ('q', 2), ('q', 3), ('t', 0, 'V'), ('q', 4), ('q', 5),
      ('t', 1, 'K'), ('t', 1, 'V'), ('t', 2, 'K'), ('t', 2, 'V')]
def issue(k):
    t = GR[k]
    if t[0] == 'q': return q_load_q(t[1])
    return tile_dma(t[2], t[1]) + (nxt_tile() if t[2] == 'V' else [])
def top(k, extra=()): return [Cond(True, ([waitv(GR[k - 3])] if k <= 10 else []) + issue(k) + list(extra))]
def qscale(q): return [waitl(*Qf[q])] + q_scale_q(q)
class EpiBlk:
    def __init__(self, n, body, last=False):
        self.head = [] if cfg.ramp else [salu('s_cmp_eq_u32', None, sFIRST, 0), branch('s_cbranch_scc0', f'L_epx{n}')]
        self.body = [label(f'L_epi{n}')] + body
        self.chain = [salu('s_cmp_lg_u32', None, sFIN, 0), branch('s_cbranch_scc1', 'L_end' if last else f'L_epi{n+1}')]
        self.tail = [label(f'L_epx{n}')]
    def static(self): return self.head + self.body + self.chain + self.tail
    def dyn(self, first): return self.head + ([] if first else self.body + self.chain) + self.tail
    def fin(self): return self.body + self.chain
EPIS = [EpiBlk(0, epi_a(0) + epi_a(1) + epi_b(0)), EpiBlk(1, epi_a(2) + epi_b(1)), EpiBlk(2, epi_a(3) + epi_b(2)),
        EpiBlk(3, epi_a(4) + epi_b(3) + epi_a(5) + fail_check() + epi_b(4)), EpiBlk(4, epi_b(5), last=True)]
QK0 = lambda q: qk_mfmas(q, S0[q], 0)
PV0 = lambda q: pv_mfmas(q, Pb[q % 2], first=True)
SM0 = lambda q: sm_valu(S0[q], Pb[q % 2])
pv = pv_mfmas(5, Pb[1])
def pv_db(m):
    for db in range(8):
        if VF[db].regs()[0] in m.ab: return db
    return None
mf0 = [([m] + v_reads(pv_db(m), 0, 0)) if pv_db(m) is not None else [m] for m in pv]
for m in mf0:
    for r in m[1:]: r.tag = ('tx', 0, 'V')
def qs01(q): return [Cond(False, q_unstage_acc(q)), Cond(True, [waitl(*Qf[q])])] + q_scale_q(q)
FU += vphase(mf0, top(3, q_lds_read([Qf[0]], 0)) + qs01(0)
             + top(4, [barrier()] + [k_read(kb, j, 0, 0) for kb in range(2) for j in range(4)])
             + top(5, q_lds_read([Qf[1]], 1)) + qs01(1)) + st2()
FU += [waitl(*ALLK)]
FU += vphase(QK0(0) + QK0(1), top(6) + top(7) + [waitv_nf(('q', 3))] + q_lds_read([Qf[2], Qf[3]], 2) + qscale(2)
             + top(8, [barrier()] + [r for db in range(8) for r in v_reads(db, 0, 0)]) + qscale(3)) + st2()
FU += vphase(QK0(2), max_valu(0) + SM0(0) + max_valu(1) + SM0(1)) + st2()
FU += [EPIS[0]] + st2()
FU += [waitl(*VF)]
FU += vphase(QK0(3) + PV0(0), top(9) + [waitv_nf(('q', 4))] + q_lds_read([Qf[4]], 4) + max_valu(2) + qscale(4)) + [EPIS[1]] + st2()
FU += vphase(QK0(4) + PV0(1), top(10) + [waitv_nf(('q', 5))] + q_lds_read([Qf[5]], 5) + SM0(2) + qscale(5) + max_valu(3)) + [EPIS[2]] + st2()
qk5 = QK0(5); qk5 = [[qk5[kb * 4 + j], k_read(kb, j, 0, 1)] for kb in range(2) for j in range(4)]
FU += vphase(qk5 + PV0(2), SM0(3) + max_valu(4) + top(11, cpf_code(T4[1]) if cfg.cpf == 3 else [])) + [EPIS[3]] + st2()
FU += vphase(PV0(3), SM0(4) + max_valu(5)) + [EPIS[4]] + st2()
FU += [waitl(*ALLK)]
FU += vphase(qk_mfmas(0, Sb[0], NEGM[0]) + PV0(4),
             [set_m0('K', 3), dma_piece('K', 3, 0)] + SM0(5) + [dma_piece('K', 3, 1)] + zero_init[:12] + [dma_piece('K', 3, 2)] + zero_init[12:24]
             + [dma_piece('K', 3, 3)] + zero_init[24:] + [set_m0('V', 3), dma_piece('V', 3, 0)])
if cfg.otouch:
    FU += [salu('s_mul_i32', sT0, sHEAD, QH, scc_w=False), salu('s_mul_i32', sT1, sW, 96 * 256, scc_w=False), salu('s_add_u32', sT0, sT0, sT1),
           Inst(f"buffer_load_dword {V(0)}, off, {srdO}, {sT0}", 'vmem_load', regs_of(srdO) + regs_of(sT0), regs_of(V(0)), tag=('ot',))]
if cfg.sched == 2: FU += [valu('v_exp_f32', Sb[0][i], Sb[0][i], trans=True) for i in range(cfg.hv)]
FU += [smov(sFIRST, 0), smov(sBIT, sBITN), salu('s_mul_i32', sQH, sNEXT, QH, scc_w=False), salu('s_mul_i32', sT1, sW, 20480, scc_w=False), salu('s_add_u32', sQH, sQH, sT1)] + stamp() + [branch('s_branch', 'L_body1')]
blk['fuse'] = FU

RP = [label('L_ramp'), smov(sPASS, 0), smov(sFIRST, 0), smov(sBIT, sBITN)] + [valu('v_mov_b32', v, 0) for v in VS.values()] + stamp()
U = [(n, q) for n in range(4) for q in range(3)] + [(n, q) for n in range(4) for q in range(3, 6)] + [(4, 0)]
def rq_load(q): return q_load_q(q, early='ramp')
def rq_fetch(q): return [waitv(('q', q))] + q_lds_read([Qf[q]], q, early='ramp')
def tV(t): return tile_dma('V', t) + nxt_tile()
kall = lambda n: [k_read(kb, j, n // 2, n % 2) for kb in range(2) for j in range(4)]
RP += rq_fetch(0) + rq_load(2) + qscale(0)
RP += [waitv(('t', 0, 'K')), barrier()] + kall(0) + tV(0)
RP += rq_fetch(1) + tile_dma('K', 1)
extra = {
    -1: ([], qscale(1) + rq_fetch(2) + tV(1)),
    0: ([], qscale(2) + [waitv(('t', 0, 'V')), barrier()] + [r for db in range(8) for r in v_reads(db, 0, 0)] + rq_load(3)),
    2: ([], [waitv(('t', 1, 'K'))] + rq_load(4)),
    4: (rq_load(5), []),
    7: ([], [waitv(('q', 3))] + tile_dma('K', 2)),
    9: (rq_fetch(3), tV(2)),
    10: (rq_fetch(4), qscale(3)),
    11: (rq_fetch(5), qscale(4)),
    12: ([], qscale(5) + tile_dma('K', 3)),
    14: ([], tV(3)),
    22: ([], [set_m0('K', 0)] + [dma_piece('K', 0, i) for i in range(4)]),
    23: ([set_m0('V', 0)] + [dma_piece('V', 0, i) for i in range(2)], [dma_piece('V', 0, i) for i in range(2, 4)] + nxt_tile() + [set_m0('K', 1), dma_piece('K', 1, 0)]),
}
needK = True; needV = True
heavy = {-1, 0, 1, 2, 9, 10, 11, 12, 13, 14}
def r_items(i):
    S_, P_ = Sb[i % 2], Pb[i % 2]
    return ([(x, valu('v_exp_f32', S_[x], S_[x], trans=True)) for x in range(8)],
            [(x, valu('v_cvt_pk_bf16_f32', P_[x], S_[2 * x], S_[2 * x + 1])) for x in range(4)])
RI = {i: r_items(i) for i in range(0, 24)}
def vrel(i): return 1 <= i <= 23 and U[i][0] != U[i - 1][0]
def rho(i): return 2 if (vrel(i) and i not in heavy and (i - 1) not in heavy) else 0
for i in range(-1, 24):
    pre = []; mf = []; fb = []
    n1, q1 = U[i + 1]
    light = i not in heavy
    if i == 4: pre += [waitv(('t', 1, 'V')), barrier()]
    if i == 22: pre += [waitl(*VF), waitv(('t', 2, 'V')), barrier()]; needV = False
    if needK: pre += [waitl(*ALLK)]; needK = False
    qk = qk_mfmas(q1, Sb[(i + 1) % 2], 0 if n1 == 0 else NEGM[q1])
    if i + 2 < len(U) and U[i + 2][0] != n1:
        kr = kall(U[i + 2][0]); needK = True
        if light: fb += [(2 * x + 1, kr[2 * x:2 * x + 2]) for x in range(4)]
        else: qk = [[qk[x], kr[x]] for x in range(8)]
    mf += qk
    if i >= 1:
        n0, q0 = U[i - 1]
        pvm = pv_mfmas(q0, Pb[(i - 1) % 2], first=(n0 == 0))
        rel = vrel(i)
        if light:
            if needV: fb.append((6, [waitl(*VF)])); needV = False
            if rel: fb += [(8 + x, v_reads(pv_db(m), U[i][0] // 2, U[i][0] % 2)) for x, m in enumerate(pvm) if pv_db(m) is not None]
            pl = pvm
        else:
            pl = [([m] + v_reads(pv_db(m), U[i][0] // 2, U[i][0] % 2)) if (rel and pv_db(m) is not None) else [m] for m in pvm]
            if needV: pl[0] = [waitl(*VF)] + pl[0]; needV = False
        if rel: needV = True
        mf += pl
    eh, et = extra.get(i, ([], []))
    if light:
        ex = list(eh) + list(et); gp = 2
        while ex:
            grp = []
            while ex and (not grp or grp[-1].kind != 'dma'): grp.append(ex.pop(0))
            fb.append((min(gp, 16), grp)); gp += 2
        hoist = RI[i + 1][0][:rho(i + 1)] if i + 1 <= 23 else []
        RP += phase2(pre, mf, RI[i][0][rho(i):], RI[i][1], fb, hoist)
    else:
        seq = list(eh)
        if i >= 0:
            n, q = U[i]
            if n == 0: seq += max_valu(q, Sb[i % 2])
            seq += sm_valu(Sb[i % 2], Pb[i % 2])
        seq += et
        RP += pre + vphase(mf, seq)
    if cfg.stamps >= 2 and i in (-1, 0, 2, 5, 8, 11, 13, 17): RP += stamp()
RP += [valu('v_exp_f32', Sb[0][i], Sb[0][i], trans=True) for i in range(cfg.hv)]
RP += [salu('s_mul_i32', sQH, sNEXT, QH, scc_w=False), salu('s_mul_i32', sT1, sW, 20480, scc_w=False), salu('s_add_u32', sQH, sQH, sT1)]
RP += stamp() + [branch('s_branch', 'L_body2')]
blk['ramp'] = RP if cfg.ramp else []

class CondQ:
    n = 0
    def __init__(self, body, dp):
        self.body = body; self.lab = f"L_q{CondQ.n}"; CondQ.n += 1; self.dp = dp
        self.head = [salu('s_cmp_eq_u32', None, sPASS, sQP if dp == 0 else sQP1), branch('s_cbranch_scc0', self.lab)]
        self.tail = [label(self.lab)]
        self.cost = 8
    def static(self): return self.head + self.body + self.tail
    def dyn(self, flag): return self.head + (self.body if flag == self.dp else []) + self.tail

class CondL:
    def __init__(self, body):
        self.body = body; self.lab = "L_nl"
        self.head = [salu('s_cmp_eq_u32', None, sPASS, 3), branch('s_cbranch_scc1', self.lab)]
        self.tail = [label(self.lab)]
        self.cost = 16
    def static(self): return self.head + self.body + self.tail
    def dyn(self, flag): return self.head + ([] if LASTPASS[0] else self.body) + self.tail
LASTPASS = [False]
BT = cfg.bt
NIT = 16 // BT
def set_m0r(part, r):
    if BT == 4: return set_m0(part, r)
    return salu('s_add_u32', M0, sMa if r < 2 else sMb, (65536 if part == 'V' else 0) + (r & 1) * 16384)
def k_read_r(kb, j, r, sub):
    d = k_read(kb, j, r % BT if BT == 2 else r, sub); d.tag = ('t', r, 'K'); return d

def HO(lp): return {0: cfg.hv, 6: cfg.hv, 4: cfg.hk, 10: cfg.hk}.get(lp, 0)
_smi = {}
def sm_items(k, lp):
    if (k, lp) not in _smi:
        q = lp % 6; Ssrc, P = Sb[q % 2], Pb[q % 2]
        _smi[(k, lp)] = ([(i, valu('v_exp_f32_e64' if cfg.exp64 else 'v_exp_f32', Ssrc[i], Ssrc[i], trans=True)) for i in range(8)],
                         [(i, valu('v_cvt_pk_bf16_f32', P[i], Ssrc[2 * i], Ssrc[2 * i + 1])) for i in range(4)])
    return _smi[(k, lp)]
def body_phase(k, lp):
    sub, q = divmod(lp, 6)
    qn = (q + 1) % 6; qp = (q - 1) % 6
    pre = []; fb = []
    mf = qk_mfmas(qn, Sb[(q + 1) % 2], NEGM[qn]) + pv_mfmas(qp, Pb[(q - 1) % 2], nosum=(qp in VS))
    fa = sm_valu(Sb[q % 2], Pb[q % 2], X8[q] if cfg.rowsum == 'valu' else None)
    if q == 4:
        slot, s2 = (k, 1) if sub == 0 else ((k + 1) % 4, 0)
        if sub == 1:
            if cfg.bgap: fb.append((0, [waitv(('t', slot, 'V')), barrier()]))
            else: pre += [waitv(('t', slot, 'V')), barrier()]
        kr = [k_read_r(kb, j, slot, s2) for kb in range(2) for j in range(4)]
        if cfg.kpair: fb += [(2 * x + 1, kr[2 * x:2 * x + 2]) for x in range(4)]
        else: fb += [(x, [kr[x]]) for x in range(8)]
    if q == 5: pre += [waitl(*ALLK)]
    if q == 0:
        for gi, m in enumerate(mf):
            if gi >= 8 and pv_db(m) is not None: fb.append((gi, v_reads(pv_db(m), k, sub)))
    if q == 1: fb.append((7, [waitl(*VF)]))
    x3 = (k + 3) % 4
    G = cfg.dgap
    if cfg.dgrp == 1:
        if lp in (1, 2, 3): fb.append((G, [dma_piece('K', x3, lp)]))
        if lp == 5: fb.append((G - 1, [set_m0r('V', x3)])); fb.append((G, [dma_piece('V', x3, 0)]))
        if lp in (7, 8, 9): fb.append((G, [dma_piece('V', x3, lp - 6)]))
    elif cfg.dgrp == 2:
        if lp == 2: fb.append((G, [dma_piece('K', x3, 1), dma_piece('K', x3, 2), dma_piece('K', x3, 3)]))
        if lp == 5: fb.append((G - 1, [set_m0r('V', x3)])); fb.append((G, [dma_piece('V', x3, 0)]))
        if lp == 8: fb.append((G, [dma_piece('V', x3, 1), dma_piece('V', x3, 2), dma_piece('V', x3, 3)]))
    assert BT == 4
    cur_m0 = set_m0r('K', x3) if lp < 5 else set_m0r('V', x3)
    if (k, lp) == (0, 8): fb.append((12, [CondQ(q_load_q(0, cur_m0, early=True), 0)]))
    if (k, lp) == (1, 2): fb.append((12, [CondQ(q_load_q(1, cur_m0, early=True), 0)]))
    if (k, lp) == (1, 9): fb.append((12, [CondQ([waitv(('q', 1))] + q_lds_read([QST[0], QST[1]], 0, early=True), 0)]))
    if (k, lp) == (2, 2): fb.append((12, [CondQ([waitl(*QST[0], *QST[1])] + q_load_q(2, cur_m0), 0)]))
    if (k, lp) == (2, 8): fb.append((12, [CondQ(q_load_q(3, cur_m0), 0)]))
    if (k, lp) == (3, 10): fb.append((12, [CondQ(q_load_q(4), 0)]))
    if BT == 2 and k == 1:
        if lp == 7:
            for j in range(4): fb.append((11 + j, [valu('v_xor_b32', aK[j], 32768, aK[j])]))
        if lp in (8, 9):
            for d in range(4): fb.append((9 + 2 * d if lp == 9 else 9 + d // 2 + 6 * (d // 2), [valu('v_xor_b32', aV[4 * (lp - 8) + d], 32768, aV[4 * (lp - 8) + d])]))
    if lp == 11:
        upd = [salu('s_add_u32', sDOFF, sDOFF, 16384)]
        if k == 0:
            upd += [salu('s_cmp_eq_u32', None, sPASS, 12 // BT), salu('s_cselect_b32', sDOFF, sNB, sDOFF, scc_w=False, scc_r=True)]
        fb.append((0, upd[:2]))
        if len(upd) > 2: fb.append((1, upd[2:]))
        if k == 3:
            fb.append((2, [CondL([set_m0r('K', k), dma_piece('K', k, 0)])]))
            fb.append((12, [CondQ(q_load_q(5), 0)]))
        else: fb.append((max(G - 1, 1), [set_m0r('K', k)])); fb.append((max(G, 2), [dma_piece('K', k, 0)]))
        if BT == 2 and k == 1:
            fb.append((13, [salu('s_xor_b32', sMa, sMa, 32768), salu('s_xor_b32', sMb, sMb, 32768)]))
    if cfg.sched == 1: return phase(pre, mf, fa, fb)
    ex, cv = sm_items(k, lp)
    nk, nlp = (k, lp + 1) if lp < 11 else ((k + 1) % BT, 0)
    adds = []
    if q in VS:
        s_ = Sb[q % 2]; ad = lambda d, a: valu('v_add_f32', d, d, a)
        adds = [((0,), ad(s_[0], s_[1])), ((1,), ad(s_[2], s_[3])), ((2,), ad(s_[4], s_[5])), ((3,), ad(s_[6], s_[7])),
                ((0, 1), ad(s_[0], s_[2])), ((2, 3), ad(s_[4], s_[6])), ((2, 3), ad(s_[0], s_[4])), ((2, 3), ad(VS[q], s_[0]))]
    return phase2(pre, mf, ex[HO(lp):], cv, fb, sm_items(nk, nlp)[0][:HO(nlp)], adds)

BA = [raw(".p2align 6"), label('L_body0')]
for lp in range(6): BA += body_phase(0, lp)
blk['body_a'] = BA
BB = [label('L_body1')]
for lp in range(6, 12): BB += body_phase(0, lp)
for lp in range(12): BB += body_phase(1, lp)
blk['body_b'] = BB
BB = [label('L_body2')]
blk['body_t'] = [salu('s_cmp_eq_u32', None, sPASS, sTP), branch('s_cbranch_scc1', 'L_tail')] if cfg.tail else []
blk['body_c0'] = BB
BB = []
for k in range(2, BT):
    for lp in range(12): BB += body_phase(k, lp)
BB += stamp() + [salu('s_add_u32', sPASS, sPASS, 1), salu('s_cmp_lt_u32', None, sPASS, NIT), branch('s_cbranch_scc1', 'L_body0')]
blk['body_c'] = BB

TL = [label('L_tail'), salu('s_mul_i32', sOH, sHEAD, QH, scc_w=False) if not cfg.nostore else smov(sOH, OOB)]
T = [(n, q) for n in range(28, 32) for q in range(3)] + [(n, q) for n in range(28, 32) for q in range(3, 6)]
TP = lambda i: (27, 5) if i < 0 else T[i]
loc = lambda n: ((n // 2) % 4, n % 2)
ea = {q: epi_a(q) for q in range(3)}; eb = {q: epi_b(q) for q in range(2)}
def cut(L, n, k): return L[len(L) * k // n: len(L) * (k + 1) // n]
textra = {}
stream = ea[0] + ea[1] + eb[0] + ea[2] + eb[1]
TH0 = cfg.th0
nh = 24 - TH0
for k in range(nh): textra[TH0 + k] = cut(stream, nh, k)
TI = {i: r_items(i) for i in range(24)}
def tvrel(i): return TP(i)[0] != TP(i - 1)[0]
def tho(i):
    if i == 0: return HO(0)
    return 2 if (tvrel(i) and i < TH0) else 0
needK = False; needV = False
for i in range(24):
    pre = []; mf = []; fb = []
    light = i < TH0
    if i == 4: pre += [waitv(('t', 3, 'V')), barrier()]
    if needK: pre += [waitl(*ALLK)]; needK = False
    if i + 1 < 24:
        n1, q1 = T[i + 1]
        qk = qk_mfmas(q1, Sb[(i + 1) % 2], NEGM[q1])
        if i + 2 < 24 and T[i + 2][0] != n1:
            kr = [k_read(kb, j, *loc(T[i + 2][0])) for kb in range(2) for j in range(4)]; needK = True
            if light: fb += [(2 * x + 1, kr[2 * x:2 * x + 2]) for x in range(4)]
            else: qk = [[qk[x], kr[x]] for x in range(8)]
        mf += qk
    n0, q0 = TP(i - 1)
    pvm = pv_mfmas(q0, Pb[(i - 1) % 2])
    rel = tvrel(i)
    if light:
        if needV: fb.append((6, [waitl(*VF)])); needV = False
        if rel: fb += [(8 + x, v_reads(pv_db(m), *loc(T[i][0]))) for x, m in enumerate(pvm) if pv_db(m) is not None]
        pl = pvm
    else:
        pl = [([m] + v_reads(pv_db(m), *loc(T[i][0]))) if (rel and pv_db(m) is not None) else [m] for m in pvm]
        if needV: pl[0] = [waitl(*VF)] + pl[0]; needV = False
    if rel: needV = True
    mf += pl
    if light:
        hoist = TI[i + 1][0][:tho(i + 1)]
        TL += phase2(pre, mf, TI[i][0][tho(i):], TI[i][1], fb, hoist)
    else:
        TL += pre + vphase(mf, sm_valu(Sb[i % 2], Pb[i % 2]) + textra[i])
TL += pv_mfmas(5, Pb[1]) + stamp() + [smov(sFIN, 1), branch('s_branch', 'L_epi2')]
blk['tail'] = TL if cfg.tail else []

D1 = [salu('s_mul_i32', sOH, sHEAD, QH, scc_w=False) if not cfg.nostore else smov(sOH, OOB), salu('s_cmp_ge_u32', None, sNEXT, 512), branch('s_cbranch_scc1', 'L_drain')]
blk['bnd_chk'] = D1
N = [smov(sHEAD, sNEXT), smov(sNEXT, '0xffff'), smov(sNB, OOB), smov(sBITN, 2), smov(sQP, 99), smov(sQP1, 99), smov(sTP, 3)] + minit_reset() + [branch('s_branch', 'L_fuse')]
blk['bnd_next'] = N
D = [label('L_drain')] + pv_mfmas(5, Pb[1]) + [smov(sFIN, 1), branch('s_branch', 'L_epi0')]
blk['drain'] = D

F = [label('L_end')] + stamp() + [smov(sFIN, 0)]
F += [valu('v_mov_b32', tA, sFLAGS), valu('v_mov_b32', tB, sM0Q), valu('v_mov_b32', tC, LDS_RING),
      ds_write('ds_write_b32', tB, tA, 0), raw("  s_waitcnt lgkmcnt(0)"), barrier()] + [
      ds_read('ds_read_b32', Y8[i], tC, i * 8192) for i in range(4)] + [raw("  s_waitcnt lgkmcnt(0)"),
      valu('v_or_b32', tA, Y8[0], Y8[1]), valu('v_or3_b32', tA, tA, Y8[2], Y8[3]),
      Inst(f"v_readfirstlane_b32 {sFLAGS}, {tA}", 'valu', regs_of(tA), regs_of(sFLAGS)),
      ] + stamp() + stamp_dump() + [salu('s_cmp_eq_u32', None, sFLAGS, 0), branch('s_cbranch_scc1', 'L_exit')]
blk['end'] = F
M = [label('L_max_pre'), raw('  s_waitcnt vmcnt(0)'), barrier()]
M += [salu('s_and_b32', sT0, sFLAGS, 1), salu('s_add_u32', sT1, sWG, NWG), salu('s_cmp_lg_u32', None, sT0, 0),
      salu('s_cselect_b32', sHEAD, sWG, sT1, scc_w=False, scc_r=True),
      salu('s_cselect_b32', sT0, 1, 2, scc_w=False, scc_r=True), salu('s_andn2_b32', sFLAGS, sFLAGS, sT0),
      smov(sMODE, 1), smov(sBIT, 0), smov(sNEXT, '0xffff')]
M += [valu('v_mbcnt_lo_u32_b32', tC, -1, 0), valu('v_mbcnt_hi_u32_b32', tC, -1, tC),
      valu('v_and_b32', tA, 15, tC), valu('v_lshrrev_b32', tB, 4, tC), valu('v_lshlrev_b32', tA, 8, tA),
      valu('v_lshl_add_u32', vX, tB, 4, tA), salu('s_mul_i32', sT0, sW, 96 * 256, scc_w=False), valu('v_add_u32', vQo, sT0, vX)]
M += [salu('s_mul_i32', sQO, sHEAD, QH, scc_w=False)]
for q in range(6):
    M += [buf_load('buffer_load_dwordx4', Qf[q][j], vQo, srdQ, sQO, j * 64, tag=('mq',)) for j in range(4)]
    M += [salu('s_add_u32', sQO, sQO, 4096)]
M += [waitv(('mq',))]
for q in range(6): M += q_scale_q(q)
M += minit_reset()
M += [salu('s_mul_i32', sT1, sHEAD, KH, scc_w=False), smov(sIT, 0)]
blk['max_pre'] = M
ML = [label('L_maxloop')]
ML += [buf_load('buffer_load_dwordx4', KF[0][j], vX, srdK, sT1, j * 64, tag=('mk',)) for j in range(4)]
ML += [waitv(('mk',))]
MS = [Sb[0][0:4], Sb[0][4:8], Sb[1][0:4], Sb[1][4:8], X8[0:4], X8[4:8]]
for q in range(6):
    for j in range(4): ML.append(mfma16(MS[q], KF[0][j], Qf[q][j], 0 if j == 0 else MS[q]))
for q in range(6):
    m = NEGM[q][3]
    ML += [valu('v_max3_f32', m, MS[q][0], MS[q][1], m), valu('v_max3_f32', m, MS[q][2], MS[q][3], m)]
ML += [salu('s_add_u32', sT1, sT1, 4096), salu('s_add_u32', sIT, sIT, 1), salu('s_cmp_lt_u32', None, sIT, 64),
       branch('s_cbranch_scc1', 'L_maxloop')]
blk['max_loop'] = ML
blk['max_post'] = stream_head() + [branch('s_branch', 'L_stream')]
blk['exit'] = [label('L_exit'), raw("  s_endpgm")]

def head_trace(first, has_next):
    rp = first and cfg.ramp
    t = list(blk['ramp']) if rp else flat_dyn(blk['fuse'], first)
    for p in range(NIT):
        qf = (p - 12 // BT) if (has_next and p >= 12 // BT) else None
        LASTPASS[0] = (p == NIT - 1)
        b = flat_dyn((blk['body_a'] if p else []) + ([] if (rp and p == 0) else blk['body_b']) + blk['body_c0'] + blk['body_t'], qf)
        if cfg.tail and not has_next and p == NIT - 1:
            return t + b + blk['tail'] + [i for e in EPIS[2:] for i in e.fin()] + blk['end']
        t += b + flat_dyn(blk['body_c'], qf)
    t += blk['bnd_chk'] + (blk['bnd_next'] if has_next else blk['drain'] + [i for e in EPIS for i in e.fin()] + blk['end'])
    return t
trace = blk['entry0'] + blk['entry1'] + blk['entry'] + blk['stream'] + head_trace(True, True) + head_trace(False, False)
for _ in range(2):
    trace += blk['max_pre'] + blk['max_loop'] * 3 + blk['max_post'] + blk['stream'] + head_trace(True, False)
trace += blk['exit']
for b in blk: blk[b] = flat_static(blk[b])

written = {('s', 0), ('s', 1), ('s', 2), ('v', 0)}
for i in trace:
    for r in i.rd:
        if r not in written and (r[0] in 'sx' or i.kind in ('ds_read', 'dma', 'vmem_load')):
            print("UNINIT read", r, "in", i.render().strip()); written.add(r)
    written.update(i.wr)
resolve_waits(trace)
for it in range(10):
    n = check_trace(trace, fix=True, verbose=False)
    if n == 0: break
    if n >= 1000: sys.exit("pending-load errors")
assert check_trace(trace, fix=False) == 0
assert check_lds_protocol(trace)

order = ['entry0', 'entry1', 'entry', 'stream', 'ramp', 'fuse', 'body_a', 'body_b', 'body_c0', 'body_t', 'body_c', 'bnd_chk', 'bnd_next', 'drain', 'tail', 'end',
         'max_pre', 'max_loop', 'max_post', 'exit']
NAME = "standalone__mha_softmax__near_ridge_kernel"
out = f"""; MHA forward (B16 H32 Sq384 Sk1024 D128, bf16) - generated by gen/gen.py (hand-written generator)
; @launch grid=({NWG},1,1) block=(256,1,1) lds={LDS_TOTAL}
.amdgcn_target "amdgcn-amd-amdhsa--gfx950"
.text
.globl {NAME}
.p2align 8
.type {NAME},@function
{NAME}:
"""
for b in order:
    out += f"; ---- {b}\n"
    for i in blk[b]: out += i.render()
out += f""".section .rodata,"a"
.p2align 6
.amdhsa_kernel {NAME}
  .amdhsa_next_free_vgpr 512
  .amdhsa_next_free_sgpr 88
  .amdhsa_accum_offset 256
  .amdhsa_group_segment_fixed_size 0
  .amdhsa_kernarg_size 48
  .amdhsa_user_sgpr_count 2
  .amdhsa_user_sgpr_kernarg_segment_ptr 1
  .amdhsa_system_sgpr_workgroup_id_x 1
.end_amdhsa_kernel
"""
open(sys.argv[1], 'w').write(out)
nn = sum(i.pre_nop for b in ('body_a', 'body_b', 'body_c') for i in blk[b])
print("emitted", sys.argv[1], "insts:", {b: len(blk[b]) for b in order}, "body nops:", nn)
```

```python
import sys, math, struct
from asmlib import *

def f2u(f): return struct.unpack('<I', struct.pack('<f', f))[0]

class Cfg:
    dma_flags = " nt"
    q_flags = " nt"
    st_flags = " nt"
    dma_cost = 8
    thr = 2.0 ** 32
    stamps = 0
    otouch = 0
    nostore = 0
    rowsum = 'mfma'
    bt = 4
    stampdbg = -1
    sched = 2
    hv = 2
    hk = 0
    dgrp = 1
    dgap = 2
    exp64 = 0
    ones1 = 0
    cpf = 2
    ramp = 1
    tail = 1
    kpair = 1
    bgap = 0
    th0 = 13
    q45late = 0
cfg = Cfg()
for a in sys.argv[2:]:
    k, v = a.split('=', 1)
    cur = getattr(cfg, k)
    setattr(cfg, k, type(cur)(v) if not isinstance(cur, str) else v.replace('_', ' '))

NWG = 256
QH = 98304
KH = 262144
Q_BYTES = 512 * QH
K_BYTES = 512 * KH
OOB = 0x10000000
LDS_RING = 131072
LDS_TOTAL = LDS_RING + 32768
SCALE = (128 ** -0.5) * math.log2(math.e)

vTID = V(0)
aK = [V(1 + j) for j in range(4)]
aV = [V(5 + d) for d in range(8)]
dK = [V(13 + i) for i in range(4)]
dV = [V(17 + i) for i in range(2)]
vQo, vOo = V(19), V(20)
vX = V(21)
RL = V(22, 2)
T4 = [V(24, 4), V(28, 4)]
Sb = [V(32, 8), V(40, 8)]
Pb = [V(48, 4), V(52, 4)]
NEGM = [V(56 + 4 * q, 4) for q in range(6)]
Qf = [[V(80 + (q * 4 + j) * 4, 4) for j in range(4)] for q in range(6)]
def Oblk(q, db):
    if q < 4: return A((q * 8 + db) * 4, 4)
    return V(176 + ((q - 4) * 8 + db) * 4, 4)
X8 = V(240, 8)
Y8 = V(248, 8)
KF = [[A(128 + (kb * 4 + j) * 4, 4) for j in range(4)] for kb in range(2)]
VF = [A(160 + db * 4, 4) for db in range(8)]
Lb = [A(192 + 4 * q, 4) for q in range(6)]
ONES = A(216, 4)
S0 = [Sb[0], Y8, Sb[1], Sb[0], Y8, Sb[1]]
QST = [[A(220 + (q * 4 + j) * 4, 4) for j in range(4)] for q in range(2)]
vQs = V(0)

srdQ, srdK, srdV, srdO = S(8, 4), S(12, 4), S(16, 4), S(20, 4)
sWG = S(2)
sW, sM0B, sHEAD, sNEXT, sDOFF, sNB, sPASS, sMODE, sFLAGS, sQO, sBIT, sTHR = [S(24 + i) for i in range(12)]
sARG = S(36, 8)
sC = S(44, 2)
sMASK, sFIRST, sT0, sT1, sIT, sOH, sQH, sQP = S(46), S(47), S(48), S(49), S(50), S(51), S(62), S(63)
M0 = 'm0'
sQO2, sM0Q, sBITN, M0S, sFIN, sMa, sMb, sQP1 = [S(64 + i) for i in range(8)]
sTP = S(74)

def smov(d, x): return salu('s_mov_b32', d, x, scc_w=False)
srdW = S(56, 4); sST = S(52, 2); sSTO = S(54); sST2 = S(60, 2)
sSTI = S(55)
def stamp():
    if not cfg.stamps: return []
    t0, t1 = T4[0][0], T4[0][1]
    def acc_r(d, a): return Inst(f"v_accvgpr_read_b32 {d}, {a}", 'valu', regs_of(a), regs_of(d))
    def acc_w(a, d): return Inst(f"v_accvgpr_write_b32 {a}, {d}", 'valu', regs_of(d), regs_of(a))
    def wl(d, s): return Inst(f"v_writelane_b32 {d}, {s}, {sSTI}", 'valu', regs_of(d) + regs_of(s) + regs_of(sSTI), regs_of(d))
    return [raw(f"  s_memtime {sST}", wr=[sST]), raw(f"  s_memrealtime {sST2}", wr=[sST2]), acc_r(t0, A(252)), acc_r(t1, A(253)),
            raw("  s_waitcnt lgkmcnt(0)"), smov(M0S, M0), smov(M0, sSTI), nop(1),
            Inst(f"v_writelane_b32 {t0}, {sST[0]}, m0", 'valu', regs_of(t0), regs_of(t0)),
            Inst(f"v_writelane_b32 {t1}, {sST2[0]}, m0", 'valu', regs_of(t1), regs_of(t1)),
            smov(M0, M0S), acc_w(A(252), t0), acc_w(A(253), t1), salu('s_add_u32', sSTI, sSTI, 1)]
def stamp_dump():
    if not cfg.stamps: return []
    t = T4[0]
    st = Inst(f"buffer_store_dwordx2 {t[0:2]}, {t[2]}, {srdW}, {sSTO} offen", 'vmem_store', regs_of(t[0:3]) + regs_of(srdW) + regs_of(sSTO), [])
    st.sdata = regs_of(t[0:2])
    if cfg.stampdbg >= 0:
        st = Inst(f"buffer_store_dword {t[1]}, {t[2]}, {srdW}, {sSTO} offen", 'vmem_store', regs_of(t[0:3]) + regs_of(srdW) + regs_of(sSTO), [])
        st.sdata = regs_of(t[1])
        return [Inst(f"v_accvgpr_read_b32 {t[1]}, a253", 'valu', regs_of(A(253)), regs_of(t[1])),
                valu('v_mbcnt_lo_u32_b32', t[2], -1, 0), valu('v_mbcnt_hi_u32_b32', t[2], -1, t[2]), valu('v_lshlrev_b32', t[2], 2, t[2]), st]
    return [Inst(f"v_accvgpr_read_b32 {t[0]}, a252", 'valu', regs_of(A(252)), regs_of(t[0])),
            Inst(f"v_accvgpr_read_b32 {t[1]}, a253", 'valu', regs_of(A(253)), regs_of(t[1])),
            valu('v_mbcnt_lo_u32_b32', t[2], -1, 0), valu('v_mbcnt_hi_u32_b32', t[2], -1, t[2]), valu('v_lshlrev_b32', t[2], 3, t[2]), st]

def phase(pre, mf, fa, fb=(), fa_start=0):
    out = list(pre)
    fb = sorted(fb, key=lambda x: x[0])
    total = sum(i.cost for i in fa) + sum(i.cost for _, l in fb for i in l)
    ng = len(mf)
    budget = max(8, int(math.ceil(total / max(ng - fa_start, 1) / 4.0)) * 4)
    ia = 0
    fb = list(fb)
    for g, m in enumerate(mf):
        out.append(m)
        rem = budget
        while fb and fb[0][0] <= g:
            c = sum(i.cost for i in fb[0][1])
            if c <= rem or rem == budget:
                out += fb[0][1]; rem -= c; fb.pop(0)
            else: break
        while g >= fa_start and ia < len(fa) and fa[ia].cost <= rem:
            out.append(fa[ia]); rem -= fa[ia].cost; ia += 1
    for _, l in fb: out += l
    out += fa[ia:]
    return out

def phase2(pre, mf, exps, cvts, fb, hoist):
    out = list(pre)
    fb = sorted(fb, key=lambda x: x[0])
    exps = list(exps); cvts = list(cvts); hoist = list(hoist)
    done = {i: -1 for i in range(8)}
    for i, _ in exps: done.pop(i)
    ng = len(mf)
    for g, m in enumerate(mf):
        out.append(m)
        rem = 8
        while fb and fb[0][0] <= g:
            c = sum(i.cost for i in fb[0][1])
            if c <= rem or rem == 8:
                out += fb[0][1]; rem -= c; fb.pop(0)
            else: break
        def ready_cvt():
            for n, (i, c) in enumerate(cvts):
                if done.get(2 * i, g) < g and done.get(2 * i + 1, g) < g: return n
            return None
        while rem > 0:
            rc = ready_cvt()
            nready = sum(1 for (i, c) in cvts if done.get(2 * i, g) < g and done.get(2 * i + 1, g) < g)
            if rem == 8 and exps and not (nready >= 2 and len(exps) <= cfg_tail(g, ng, exps, cvts)):
                i, e = exps.pop(0); out.append(e); done[i] = g; rem -= 8
            elif rc is not None:
                out.append(cvts.pop(rc)[1]); rem -= 4
            elif rem == 8 and hoist and g >= (9 if hoist[0][0] < 4 else 12):
                out.append(hoist.pop(0)[1]); rem -= 8
            else: break
    for _, l in fb: out += l
    out += [e for _, e in exps] + [c for _, c in cvts] + [e for _, e in hoist]
    return out
def cfg_tail(g, ng, exps, cvts): return 4

def qk_mfmas(q, Sdst, cinit):
    L = []
    for kb in range(2):
        d = Sdst[4 * kb:4 * kb + 4]
        for j in range(4):
            L.append(mfma16(d, KF[kb][j], Qf[q][j], (cinit if j == 0 else d)))
    return L
def pv_mfmas(q, P, first=False):
    L = [mfma16(Oblk(q, db), VF[db], P, 0 if first else Oblk(q, db)) for db in range(8)]
    if cfg.rowsum == 'mf4':
        L.insert(4, mfma4(Lb[q], ONES[0:2], P[0:2], 0 if first else Lb[q]))
        L.append(mfma4(Lb[q], ONES[0:2], P[2:4], Lb[q]))
    elif cfg.rowsum == 'mfma' or first: L.append(mfma16(Lb[q], ONES, P, 0 if first else Lb[q]))
    return L
def sm_valu(Ssrc, P, lacc=None):
    e = [valu('v_exp_f32', Ssrc[i], Ssrc[i], trans=True) for i in range(8)]
    c = [valu('v_cvt_pk_bf16_f32', P[i], Ssrc[2 * i], Ssrc[2 * i + 1]) for i in range(4)]
    if lacc is not None:
        a = [valu('v_add_f32', lacc, lacc, Ssrc[i]) for i in range(8)]
        return [e[0], e[1], a[0], c[0], e[2], a[1], a[2], e[3], e[4], a[3], c[1], e[5], a[4], a[5], e[6], e[7], c[2], a[6], a[7], c[3]]
    return [e[0], e[1], e[2], c[0], e[3], e[4], c[1], e[5], e[6], c[2], e[7], c[3]]
def k_read(kb, j, slot, sub):
    return ds_read('ds_read_b128', KF[kb][j], aK[j], slot * 16384 + sub * 8192 + kb * 4096, tag=('t', slot, 'K'))
def v_reads(db, slot, sub):
    return [ds_read('ds_read_b64_tr_b16', VF[db][2 * h:2 * h + 2], aV[db], slot * 16384 + sub * 8192 + h * 4096, tag=('t', slot, 'V'))
            for h in range(2)]
def dma_piece(part, slot, idx):
    if part == 'K': d = dma(dK[idx], srdK, sDOFF, idx * 1024, ('t', slot, 'K'), cfg.dma_flags, cfg.dma_cost)
    else: d = dma(dV[idx & 1], srdV, sDOFF, idx * 1024, ('t', slot, 'V'), cfg.dma_flags, cfg.dma_cost)
    d.piece = idx
    return d
def set_m0(part, slot):
    return salu('s_add_u32', M0, sM0B, (65536 if part == 'V' else 0) + slot * 16384)
ALLK = [KF[kb][j] for kb in range(2) for j in range(4)]

def q_loads():
    L = [salu('s_mul_i32', sQO, sHEADQ, QH, scc_w=False)]
    for q in range(6):
        for j in range(4):
            L.append(buf_load('buffer_load_dwordx4', Qf[q][j], vQo, srdQ, sQO, j * 64, tag=('q', q), flags=cfg.q_flags))
        if q < 5: L.append(salu('s_add_u32', sQO, sQO, 4096))
    return L
def q_scale():
    L = []
    for q in range(6):
        L.append(waitv(('q', q)))
        for j in range(4):
            x = Qf[q][j]; t = X8 if (j & 1) == 0 else Y8
            for i in range(4):
                L.append(valu('v_lshlrev_b32', t[2 * i], 16, x[i]))
                L.append(valu('v_and_b32', t[2 * i + 1], sMASK, x[i]))
            for i in range(4):
                L.append(valu('v_pk_mul_f32', t[2 * i:2 * i + 2], t[2 * i:2 * i + 2], sC))
            for i in range(4):
                L.append(valu('v_cvt_pk_bf16_f32', x[i], t[2 * i], t[2 * i + 1]))
    return L
def minit_reset():
    return [valu('v_mov_b32', NEGM[q][3], '0xff800000') for q in range(6)]

def max_valu(q, s=None):
    s = S0[q] if s is None else s; m = NEGM[q][3]; t = RL[q & 1]
    L = [valu('v_max3_f32', m, s[0], s[1], m), valu('v_max3_f32', m, s[2], s[3], m),
         valu('v_max3_f32', m, s[4], s[5], m), valu('v_max3_f32', m, s[6], s[7], m),
         valu('v_mov_b32', t, m), permswap('v_permlane32_swap_b32', t, m), valu('v_max_f32', m, t, m),
         valu('v_mov_b32', t, m), permswap('v_permlane16_swap_b32', t, m), valu('v_max_f32', t, t, m)]
    L += [valu('v_sub_f32', s[i], s[i], t) for i in range(8)]
    L += [valu('v_sub_f32', NEGM[q][i], 0, t) for i in range(4)]
    return L

blk = {}
E = []
E += [salu('s_cmp_ge_u32', None, sWG, NWG), branch('s_cbranch_scc1', 'L_exit')]
E += [raw(f"  s_load_dwordx8 {sARG}, s[0:1], 0", wr=[sARG])]
E += [valu('v_lshrrev_b32', vX, 6, vTID), valu('v_and_b32', vTID, 63, vTID)]
E += [Inst(f"v_readfirstlane_b32 {sW}, {vX}", 'valu', regs_of(vX), regs_of(sW))]
tA, tB, tC, tD = X8[0], X8[1], X8[2], X8[3]
tQ, tG = X8[4], X8[5]
E += [valu('v_and_b32', tQ, 15, vTID), valu('v_lshrrev_b32', tG, 4, vTID)]
E += [salu('s_lshl_b32', sHEAD, sWG, 1), valu('v_lshlrev_b32', tA, 8, tQ), valu('v_xor_b32', tD, tG, tQ)]
E += [salu('s_mul_i32', sT0, sW, 96 * 256, scc_w=False), salu('s_lshl_b32', sM0B, sW, 12), salu('s_lshl_b32', sM0Q, sW, 13), salu('s_add_u32', sM0Q, sM0Q, LDS_RING)]
E += [valu('v_add_u32', tA, sT0, tA), valu('v_lshl_add_u32', vQo, tG, 4, tA)]
E += [valu('v_lshlrev_b32', tB, 8, tG), valu('v_add_u32', tB, sM0B, tB)]
for i in range(4):
    E += [valu('v_xor_b32', tC, 4 * i, tD), valu('v_lshl_add_u32', dK[i], tC, 4, tB)]
def mk_srd(srd, k, nb): return [smov(srd[0], sARG[k]), salu('s_and_b32', srd[1], sARG[k + 1], '0xffff'), smov(srd[2], nb), smov(srd[3], '0x20000')]
E += [smov(srdQ[2], Q_BYTES), smov(srdQ[3], '0x20000'), smov(srdK[2], K_BYTES), smov(srdK[3], '0x20000')]
CPF_EARLY = len(E)
E += [raw("  s_waitcnt lgkmcnt(0)")]
E += [smov(srdQ[0], sARG[0]), salu('s_and_b32', srdQ[1], sARG[1], '0xffff'), smov(srdK[0], sARG[2]), salu('s_and_b32', srdK[1], sARG[3], '0xffff')]
blk['entry0'] = E
E = []
sPC = S(72, 2)
def cpf_code(dst):
    L = [salu('s_lshr_b32', sT1, sWG, 3), salu('s_lshl_b32', sT1, sT1, 2), salu('s_add_u32', sT1, sT1, sW)]
    if cfg.cpf == 1: L += [salu('s_and_b32', sT1, sT1, 31)]
    else: L += [salu('s_cmp_ge_u32', None, sT1, 23 + 10 * cfg.ramp + 8 * cfg.tail), branch('s_cbranch_scc1', 'L_nocpf')]
    L += [salu('s_lshl_b32', sT1, sT1, 10), valu('v_mbcnt_lo_u32_b32', dst[0], -1, 0), valu('v_mbcnt_hi_u32_b32', dst[0], -1, dst[0]),
          valu('v_lshlrev_b32', dst[0], 4, dst[0]), valu('v_add_u32', dst[0], sT1, dst[0]),
          raw(f"  v_min_u32 {dst[0]}, L_max_pre - L_pc - 16, {dst[0]}", kind='valu', rd=[dst[0]], wr=[dst[0]]),
          Inst(f"global_load_dwordx4 {dst[0:4]}, {dst[0]}, {sPC}", 'vmem_load', regs_of(dst[0]) + regs_of(sPC), regs_of(dst[0:4]), tag=('cpf',))]
    if cfg.cpf != 1:
        L[-1].optional = True
        L += [label('L_nocpf')]
    return L
if cfg.cpf == 4:
    blk['entry0'][CPF_EARLY:CPF_EARLY] = [raw(f"  s_getpc_b64 {sPC}", wr=[sPC]), label('L_pc')] + cpf_code(Y8[4:8])
elif cfg.cpf:
    E += [raw(f"  s_getpc_b64 {sPC}", wr=[sPC]), label('L_pc')]
    if cfg.cpf <= 2: E += cpf_code(Y8[4:8])
E += mk_srd(srdV, 4, K_BYTES) + mk_srd(srdO, 6, Q_BYTES)
E += [valu('v_lshlrev_b32', tA, 1, tG), valu('v_xor_b32', tA, tA, tQ)]
for i in range(2):
    E += [valu('v_xor_b32', tC, 8 * i, tA), valu('v_lshl_add_u32', dV[i], tC, 4, tB)]
E += [valu('v_lshlrev_b32', tB, 8, tQ)]
for j in range(4):
    E += [valu('v_xor_b32', tC, 4 * j, tD), valu('v_lshl_add_u32', aK[j], tC, 4, tB)]
E += [valu('v_lshrrev_b32', tA, 2, vTID), valu('v_and_b32', tC, 7, tA), valu('v_lshlrev_b32', tA, 8, tA),
      valu('v_and_b32', tB, 3, vTID), valu('v_lshl_add_u32', tA, tB, 3, tA), valu('v_add_u32', tA, 65536, tA)]
for db in range(8):
    E += [valu('v_xor_b32', tB, db, tC), valu('v_lshl_add_u32', aV[db], tB, 5, tA)]
E += [valu('v_lshlrev_b32', vOo, 4, vTID), valu('v_add_u32', vOo, sT0, vOo)]
E += [smov(sMa, sM0B), salu('s_add_u32', sMb, sM0B, 32768)]
E += [valu('v_lshrrev_b32', tA, 1, tG), valu('v_xor_b32', tA, tA, tQ), valu('v_lshlrev_b32', tA, 4, tA), valu('v_lshl_add_u32', tA, tQ, 8, tA),
      valu('v_and_b32', tB, 1, tG), valu('v_lshl_add_u32', tA, tB, 3, tA), valu('v_add_u32', tA, sM0Q, tA),
      Inst("v_accvgpr_write_b32 a254, " + str(tA), 'valu', regs_of(tA), regs_of(A(254))),
      valu('v_lshlrev_b32', tA, 4, tD), valu('v_lshl_add_u32', tA, tG, 8, tA), valu('v_add_u32', tA, sM0Q, tA),
      Inst("v_accvgpr_write_b32 a255, " + str(tA), 'valu', regs_of(tA), regs_of(A(255)))]
E += [valu('v_mov_b32', tA, '0x3f803f80')]
if cfg.ones1:
    E += [Inst(f"v_cmp_eq_u32 vcc, 0, {tQ}", 'valu', regs_of(tQ), [('x', 'vcc')]),
          Inst(f"v_cndmask_b32 {tA}, 0, {tA}, vcc", 'valu', regs_of(tA) + [('x', 'vcc')], regs_of(tA))]
E += [Inst(f"v_accvgpr_write_b32 {ONES[i]}, {tA}", 'valu', regs_of(tA), regs_of(ONES[i])) for i in range(4)]
E += [smov(sC[0], hex(f2u(SCALE))), smov(sC[1], hex(f2u(SCALE))), smov(sMASK, '0xffff0000'), smov(sTHR, hex(f2u(cfg.thr)))]
E += [salu('s_add_u32', sNEXT, sHEAD, 1), smov(sMODE, 0), smov(sFLAGS, 0), smov(sBIT, 1), smov(sFIN, 0)]
E += minit_reset()
if cfg.stamps:
    E += [raw(f"  s_load_dwordx2 {srdW[0:2]}, s[0:1], {32 if cfg.stampdbg >= 0 else 40}", wr=[srdW[0:2]]), raw("  s_waitcnt lgkmcnt(0)"),
          salu('s_and_b32', srdW[1], srdW[1], '0xffff'), smov(srdW[2], 1 << 20), smov(srdW[3], '0x20000'),
          salu('s_lshl_b32', sSTO, sWG, 2), salu('s_add_u32', sSTO, sSTO, sW)]
    if cfg.stampdbg >= 0:
        E += [salu('s_cmp_eq_u32', None, sSTO, cfg.stampdbg), salu('s_cselect_b32', srdW[2], 64, 0, scc_w=False, scc_r=True), smov(sSTO, 0)]
    else: E += [salu('s_lshl_b32', sSTO, sSTO, 9)]
    E += [smov(sSTI, 0), smov(M0, 0), Inst('v_accvgpr_write_b32 a252, 0', 'valu', [], regs_of(A(252))), Inst('v_accvgpr_write_b32 a253, 0', 'valu', [], regs_of(A(253)))]
    E += stamp()
blk['entry'] = E

def q_place(q, early=False):
    if early == 'ramp': return [(sM0Q, 0), (sM0Q, 4096), (sM0B, 65536 + 49152), (sM0Q, 0), (sM0Q, 4096), (sM0B, 49152)][q]
    if q < 2: return (sM0Q, q * 4096) if early else (sM0B, 16384 * (q + 1))
    if q < 4: return (sM0Q, (q - 2) * 4096)
    return (sM0B, 65536 + 49152) if q == 4 else (sM0B, 49152)
def q_load_q(q, restore_m0=None, early=False):
    b, c = q_place(q, early)
    L = [salu('s_add_u32', sQO, sQH, q * 4096), salu('s_add_u32', M0, b, c)]
    for i in range(4):
        d = dma(dK[i], srdQ, sQO, i * 1024, ('q', q), cfg.q_flags, cfg.dma_cost); d.piece = i; L.append(d)
    if restore_m0: L.append(restore_m0)
    return L
def q_lds_read(dsts, q, early=False):
    b, c = q_place(q, early)
    L = [salu('s_add_u32', sT0, b, c)] + [valu('v_add_u32', X8[j], sT0, aK[j]) for j in range(4)]
    for n, d in enumerate(dsts):
        L += [ds_read('ds_read_b128', d[j], X8[j], n * 4096) for j in range(4)]
    return L
def q_unstage_acc(q):
    return [Inst(f"v_accvgpr_read_b32 {Qf[q][j][i]}, {QST[q][j][i]}", 'valu', regs_of(QST[q][j][i]), regs_of(Qf[q][j][i]))
            for j in range(4) for i in range(4)]
def q_scale_q(q):
    L = []
    for j in range(4):
        x = Qf[q][j]; t = X8
        for i in range(4):
            L.append(valu('v_lshlrev_b32', t[2 * i], 16, x[i]))
            L.append(valu('v_and_b32', t[2 * i + 1], sMASK, x[i]))
        for i in range(4):
            L.append(valu('v_pk_mul_f32', t[2 * i:2 * i + 2], t[2 * i:2 * i + 2], sC))
        for i in range(4):
            L.append(valu('v_cvt_pk_bf16_f32', x[i], t[2 * i], t[2 * i + 1]))
    return L
_ti = [0]
def epi_q(q, tsets):
    D = [salu('s_add_u32', sQO2, sOH, q * 4096)]
    D += [Inst(f"v_accvgpr_read_b32 {RL[1]}, {Lb[q][0]}", 'valu', regs_of(Lb[q][0]), regs_of(RL[1]))]
    if cfg.rowsum == 'mf4':
        D += [valu('v_mov_b32', RL[0], RL[1]), permswap('v_permlane32_swap_b32', RL[0], RL[1]), valu('v_add_f32', RL[1], RL[0], RL[1]),
              valu('v_mov_b32', RL[0], RL[1]), permswap('v_permlane16_swap_b32', RL[0], RL[1]), valu('v_add_f32', RL[1], RL[0], RL[1])]
    D += [valu('v_rcp_f32', RL[0], RL[1], trans=True)]
    if q == 0: D += [valu('v_mov_b32', vX, RL[1])]
    else: D += [valu('v_add_f32', vX, vX, RL[1])]
    for dp in range(4):
        if q < 4:
            t = tsets[dp % len(tsets)]
            for bi in range(2):
                o = Oblk(q, 2 * dp + bi)
                D += [Inst(f"v_accvgpr_read_b32 {t[4*bi+i]}, {o[i]}", 'valu', regs_of(o[i]), regs_of(t[4 * bi + i])) for i in range(4)]
        else:
            o = Oblk(q, 2 * dp); t = V(o.n, 8)
        for i in range(4):
            D += [valu('v_pk_mul_f32', t[2 * i:2 * i + 2], t[2 * i:2 * i + 2], RL, extra="op_sel_hi:[1,0]")]
        T = T4[_ti[0] % 2]; _ti[0] += 1
        for i in range(4): D += [valu('v_cvt_pk_bf16_f32', T[i], t[2 * i], t[2 * i + 1])]
        D += [permswap('v_permlane16_swap_b32', T[0], T[2]), permswap('v_permlane16_swap_b32', T[1], T[3])]
        D += [buf_store('buffer_store_dwordx4', T, vOo, srdO, sQO2, dp * 64, flags=cfg.st_flags)]
    return D
aWA, aRA = A(254), A(255)
def acc_read(d, a): return Inst(f"v_accvgpr_read_b32 {d}, {a}", 'valu', regs_of(a), regs_of(d))
def oreg(q, t):
    return Oblk(q, t)
def epi_a(q):
    half = (q & 1) * 4096
    D = [acc_read(RL[1], Lb[q][0])]
    if cfg.ones1:
        D += [valu('v_mov_b32', RL[0], RL[1]), permswap('v_permlane16_swap_b32', RL[0], RL[1]), valu('v_add_f32', RL[1], RL[0], RL[1]),
              valu('v_mov_b32', RL[0], RL[1]), permswap('v_permlane32_swap_b32', RL[0], RL[1]), valu('v_add_f32', RL[1], RL[0], RL[1])]
    D += [valu('v_rcp_f32', RL[0], RL[1], trans=True)]
    D += [valu('v_mov_b32', vX, RL[1]) if q == 0 else valu('v_add_f32', vX, vX, RL[1])]
    D += [acc_read(RL[1], aWA)]
    for dp in range(4):
        if q < 4:
            t = X8
            for bi in range(2):
                o = Oblk(q, 2 * dp + bi)
                D += [acc_read(t[4 * bi + i], o[i]) for i in range(4)]
        else:
            o = Oblk(q, 2 * dp); t = V(o.n, 8)
        mul = [Inst(f"v_pk_mul_f32 {t[2*i:2*i+2]}, {t[2*i:2*i+2]}, {RL} op_sel_hi:[1,0]", 'valu',
                    regs_of(t[2 * i:2 * i + 2]) + regs_of(RL[0]), regs_of(t[2 * i:2 * i + 2])) for i in range(4)]
        D += mul
        T = T4[dp % 2]
        D += [valu('v_cvt_pk_bf16_f32', T[i], t[2 * i], t[2 * i + 1]) for i in range(4)]
        for bi in range(2):
            db = 2 * dp + bi
            D += [ds_write('ds_write_b64', RL[1], T[2 * bi:2 * bi + 2], half)]
            if db < 7: D += [valu('v_xor_b32', RL[1], (db ^ (db + 1)) << 5, RL[1])]
    D += [acc_read(RL[1], aRA)]
    for t in range(4):
        D += [ds_read('ds_read_b128', oreg(q, t), RL[1], half + t * 1024)]
        if t < 3: D += [valu('v_xor_b32', RL[1], (t ^ (t + 1)) << 6, RL[1])]
    return D
def epi_b(q):
    D = [salu('s_add_u32', sQO2, sOH, q * 4096), waitl(*[oreg(q, t) for t in range(4)])]
    D += [buf_store('buffer_store_dwordx4', oreg(q, t), vOo, srdO, sQO2, t * 1024, flags=cfg.st_flags) for t in range(4)]
    return D
def fail_check():
    return [Inst(f"v_cmp_nge_f32 vcc, {sTHR}, {vX}", 'valu', regs_of(sTHR) + regs_of(vX), [('x', 'vcc')]),
            salu('s_cmp_lg_u64', None, 'vcc', 0), salu('s_cselect_b32', sT0, sBIT, 0, scc_w=False, scc_r=True),
            salu('s_or_b32', sFLAGS, sFLAGS, sT0)]

def is_pk(i): return 'v_pk_' in i.text
def vphase(mf, seq, start=0):
    n = len(seq); out = []
    if not mf: return list(seq)
    tot = sum(i.cost for i in seq if isinstance(i, Inst))
    step = (tot * (1.0 - start)) / len(mf)
    acc = 0.0; nxt = tot * start; k = 0
    for idx, i in enumerate(seq):
        if k < len(mf) and acc >= nxt:
            look = [x for x in seq[idx:idx + 3] if isinstance(x, Inst)]
            if not any(is_pk(x) for x in look):
                m = mf[k]; out += (m if isinstance(m, list) else [m]); k += 1; nxt += step
        out.append(i)
        if isinstance(i, Inst): acc += i.cost
    for m in mf[k:]: out += (m if isinstance(m, list) else [m])
    return out

class Cond:
    n = 0
    def __init__(self, first, body):
        self.first, self.body = first, body
        self.lab = f"L_c{Cond.n}"; Cond.n += 1
        self.head = [salu('s_cmp_eq_u32', None, sFIRST, 0), branch('s_cbranch_scc1' if first else 's_cbranch_scc0', self.lab)]
        self.tail = [label(self.lab)]
    def static(self):
        if cfg.ramp: return [] if self.first else self.body
        return self.head + self.body + self.tail
    def dyn(self, first):
        if cfg.ramp: return [] if self.first else self.body
        return self.head + (self.body if first == self.first else []) + self.tail
def flat_static(seq): return [y for x in seq for y in (x.static() if hasattr(x, 'static') else [x])]
def flat_dyn(seq, flag):
    out = []
    for x in seq:
        if hasattr(x, 'dyn'): out += x.dyn(flag)
        elif flag is True and getattr(x, 'nf_only', False): out.append(Ghost(x))
        else: out.append(x)
    return out
def waitv_nf(*tags):
    w = waitv(*tags); w.nf_only = True; return w

def tile_dma(part, t): return [set_m0(part, t)] + [dma_piece(part, t, i) for i in range(4)]
nxt_tile = lambda: [salu('s_add_u32', sDOFF, sDOFF, 16384)]

RE = 'ramp' if cfg.ramp else False
def stream_head():
    return [salu('s_mul_i32', sQH, sHEAD, QH, scc_w=False), salu('s_mul_i32', sT1, sW, 20480, scc_w=False), salu('s_add_u32', sQH, sQH, sT1),
            salu('s_mul_i32', sDOFF, sHEAD, KH, scc_w=False)] + q_load_q(0, early=RE) + tile_dma('K', 0) + q_load_q(1, early=RE)
blk['entry1'] = stream_head()
B = [label('L_stream')]
B += [salu('s_mul_i32', sNB, sNEXT, KH, scc_w=False), salu('s_cmp_lt_u32', None, sNEXT, 512),
      salu('s_cselect_b32', sNB, sNB, OOB, scc_w=False, scc_r=True),
      salu('s_cselect_b32', sQP, 12 // cfg.bt, 99, scc_w=False, scc_r=True), salu('s_cselect_b32', sTP, 99, 3, scc_w=False, scc_r=True), salu('s_add_u32', sQP1, sQP, 1),
      smov(sFIRST, 1), smov(sOH, OOB), smov(sBITN, sBIT), smov(sBIT, 0)]
blk['stream'] = B

zero_init = [valu('v_mov_b32', Oblk(5, db)[i], 0) for db in range(8) for i in range(4)]
zero_init += [Inst(f"v_accvgpr_write_b32 {Lb[5][i]}, 0", 'valu', [], regs_of(Lb[5][i])) for i in range(4)]
FU = [label('L_fuse'), smov(sPASS, 0)] + stamp()
def st2(): return stamp() if cfg.stamps >= 2 else []
GR = [('q', 0), ('t', 0, 'K'), ('q', 1), ('q', 2), ('q', 3), ('t', 0, 'V'), ('q', 4), ('q', 5),
      ('t', 1, 'K'), ('t', 1, 'V'), ('t', 2, 'K'), ('t', 2, 'V')]
def issue(k):
    t = GR[k]
    if t[0] == 'q': return q_load_q(t[1])
    return tile_dma(t[2], t[1]) + (nxt_tile() if t[2] == 'V' else [])
def top(k, extra=()): return [Cond(True, ([waitv(GR[k - 3])] if k <= 10 else []) + issue(k) + list(extra))]
def qscale(q): return [waitl(*Qf[q])] + q_scale_q(q)
class EpiBlk:
    def __init__(self, n, body, last=False):
        self.head = [] if cfg.ramp else [salu('s_cmp_eq_u32', None, sFIRST, 0), branch('s_cbranch_scc0', f'L_epx{n}')]
        self.body = [label(f'L_epi{n}')] + body
        self.chain = [salu('s_cmp_lg_u32', None, sFIN, 0), branch('s_cbranch_scc1', 'L_end' if last else f'L_epi{n+1}')]
        self.tail = [label(f'L_epx{n}')]
    def static(self): return self.head + self.body + self.chain + self.tail
    def dyn(self, first): return self.head + ([] if first else self.body + self.chain) + self.tail
    def fin(self): return self.body + self.chain
EPIS = [EpiBlk(0, epi_a(0) + epi_a(1) + epi_b(0)), EpiBlk(1, epi_a(2) + epi_b(1)), EpiBlk(2, epi_a(3) + epi_b(2)),
        EpiBlk(3, epi_a(4) + epi_b(3) + epi_a(5) + fail_check() + epi_b(4)), EpiBlk(4, epi_b(5), last=True)]
QK0 = lambda q: qk_mfmas(q, S0[q], 0)
PV0 = lambda q: pv_mfmas(q, Pb[q % 2], first=True)
SM0 = lambda q: sm_valu(S0[q], Pb[q % 2])
pv = pv_mfmas(5, Pb[1])
def pv_db(m):
    for db in range(8):
        if VF[db].regs()[0] in m.ab: return db
    return None
mf0 = [([m] + v_reads(pv_db(m), 0, 0)) if pv_db(m) is not None else [m] for m in pv]
for m in mf0:
    for r in m[1:]: r.tag = ('tx', 0, 'V')
def qs01(q): return [Cond(False, q_unstage_acc(q)), Cond(True, [waitl(*Qf[q])])] + q_scale_q(q)
FU += vphase(mf0, top(3, q_lds_read([Qf[0]], 0)) + qs01(0)
             + top(4, [barrier()] + [k_read(kb, j, 0, 0) for kb in range(2) for j in range(4)])
             + top(5, q_lds_read([Qf[1]], 1)) + qs01(1)) + st2()
FU += [waitl(*ALLK)]
FU += vphase(QK0(0) + QK0(1), top(6) + top(7) + [waitv_nf(('q', 3))] + q_lds_read([Qf[2], Qf[3]], 2) + qscale(2)
             + top(8, [barrier()] + [r for db in range(8) for r in v_reads(db, 0, 0)]) + qscale(3)) + st2()
FU += vphase(QK0(2), max_valu(0) + SM0(0) + max_valu(1) + SM0(1)) + st2()
FU += [EPIS[0]] + st2()
FU += [waitl(*VF)]
FU += vphase(QK0(3) + PV0(0), top(9) + [waitv_nf(('q', 4))] + q_lds_read([Qf[4]], 4) + max_valu(2) + qscale(4)) + [EPIS[1]] + st2()
FU += vphase(QK0(4) + PV0(1), top(10) + [waitv_nf(('q', 5))] + q_lds_read([Qf[5]], 5) + SM0(2) + qscale(5) + max_valu(3)) + [EPIS[2]] + st2()
qk5 = QK0(5); qk5 = [[qk5[kb * 4 + j], k_read(kb, j, 0, 1)] for kb in range(2) for j in range(4)]
FU += vphase(qk5 + PV0(2), SM0(3) + max_valu(4) + top(11, cpf_code(T4[1]) if cfg.cpf == 3 else [])) + [EPIS[3]] + st2()
FU += vphase(PV0(3), SM0(4) + max_valu(5)) + [EPIS[4]] + st2()
FU += [waitl(*ALLK)]
FU += vphase(qk_mfmas(0, Sb[0], NEGM[0]) + PV0(4),
             [set_m0('K', 3), dma_piece('K', 3, 0)] + SM0(5) + [dma_piece('K', 3, 1)] + zero_init[:12] + [dma_piece('K', 3, 2)] + zero_init[12:24]
             + [dma_piece('K', 3, 3)] + zero_init[24:] + [set_m0('V', 3), dma_piece('V', 3, 0)])
if cfg.otouch:
    FU += [salu('s_mul_i32', sT0, sHEAD, QH, scc_w=False), salu('s_mul_i32', sT1, sW, 96 * 256, scc_w=False), salu('s_add_u32', sT0, sT0, sT1),
           Inst(f"buffer_load_dword {V(0)}, off, {srdO}, {sT0}", 'vmem_load', regs_of(srdO) + regs_of(sT0), regs_of(V(0)), tag=('ot',))]
if cfg.sched == 2: FU += [valu('v_exp_f32', Sb[0][i], Sb[0][i], trans=True) for i in range(cfg.hv)]
FU += [smov(sFIRST, 0), smov(sBIT, sBITN), salu('s_mul_i32', sQH, sNEXT, QH, scc_w=False), salu('s_mul_i32', sT1, sW, 20480, scc_w=False), salu('s_add_u32', sQH, sQH, sT1)] + stamp() + [branch('s_branch', 'L_body1')]
blk['fuse'] = FU

RP = [label('L_ramp'), smov(sPASS, 0), smov(sFIRST, 0), smov(sBIT, sBITN)] + stamp()
U = [(n, q) for n in range(4) for q in range(3)] + [(n, q) for n in range(4) for q in range(3, 6)] + [(4, 0)]
def rq_load(q): return q_load_q(q, early='ramp')
def rq_fetch(q): return [waitv(('q', q))] + q_lds_read([Qf[q]], q, early='ramp')
def tV(t): return tile_dma('V', t) + nxt_tile()
kall = lambda n: [k_read(kb, j, n // 2, n % 2) for kb in range(2) for j in range(4)]
RP += rq_fetch(0) + rq_load(2) + qscale(0)
RP += [waitv(('t', 0, 'K')), barrier()] + kall(0) + tV(0)
RP += rq_fetch(1) + tile_dma('K', 1)
extra = {
    -1: ([], qscale(1) + rq_fetch(2) + tV(1)),
    0: ([], qscale(2) + [waitv(('t', 0, 'V')), barrier()] + [r for db in range(8) for r in v_reads(db, 0, 0)] + rq_load(3)),
    2: ([], [waitv(('t', 1, 'K'))] + rq_load(4)),
    4: (rq_load(5), []),
    7: ([], [waitv(('q', 3))] + tile_dma('K', 2)),
    9: (rq_fetch(3), tV(2)),
    10: (rq_fetch(4), qscale(3)),
    11: (rq_fetch(5), qscale(4)),
    12: ([], qscale(5) + tile_dma('K', 3)),
    14: ([], tV(3)),
    22: ([], [set_m0('K', 0)] + [dma_piece('K', 0, i) for i in range(4)]),
    23: ([set_m0('V', 0)] + [dma_piece('V', 0, i) for i in range(2)], [dma_piece('V', 0, i) for i in range(2, 4)] + nxt_tile() + [set_m0('K', 1), dma_piece('K', 1, 0)]),
}
needK = True; needV = True
heavy = {-1, 0, 1, 2, 9, 10, 11, 12, 13, 14}
def r_items(i):
    S_, P_ = Sb[i % 2], Pb[i % 2]
    return ([(x, valu('v_exp_f32', S_[x], S_[x], trans=True)) for x in range(8)],
            [(x, valu('v_cvt_pk_bf16_f32', P_[x], S_[2 * x], S_[2 * x + 1])) for x in range(4)])
RI = {i: r_items(i) for i in range(0, 24)}
def vrel(i): return 1 <= i <= 23 and U[i][0] != U[i - 1][0]
def rho(i): return 2 if (vrel(i) and i not in heavy and (i - 1) not in heavy) else 0
for i in range(-1, 24):
    pre = []; mf = []; fb = []
    n1, q1 = U[i + 1]
    light = i not in heavy
    if i == 4: pre += [waitv(('t', 1, 'V')), barrier()]
    if i == 22: pre += [waitl(*VF), waitv(('t', 2, 'V')), barrier()]; needV = False
    if needK: pre += [waitl(*ALLK)]; needK = False
    qk = qk_mfmas(q1, Sb[(i + 1) % 2], 0 if n1 == 0 else NEGM[q1])
    if i + 2 < len(U) and U[i + 2][0] != n1:
        kr = kall(U[i + 2][0]); needK = True
        if light: fb += [(2 * x + 1, kr[2 * x:2 * x + 2]) for x in range(4)]
        else: qk = [[qk[x], kr[x]] for x in range(8)]
    mf += qk
    if i >= 1:
        n0, q0 = U[i - 1]
        pvm = pv_mfmas(q0, Pb[(i - 1) % 2], first=(n0 == 0))
        rel = vrel(i)
        if light:
            if needV: fb.append((6, [waitl(*VF)])); needV = False
            if rel: fb += [(8 + x, v_reads(pv_db(m), U[i][0] // 2, U[i][0] % 2)) for x, m in enumerate(pvm) if pv_db(m) is not None]
            pl = pvm
        else:
            pl = [([m] + v_reads(pv_db(m), U[i][0] // 2, U[i][0] % 2)) if (rel and pv_db(m) is not None) else [m] for m in pvm]
            if needV: pl[0] = [waitl(*VF)] + pl[0]; needV = False
        if rel: needV = True
        mf += pl
    eh, et = extra.get(i, ([], []))
    if light:
        ex = list(eh) + list(et); gp = 2
        while ex:
            grp = []
            while ex and (not grp or grp[-1].kind != 'dma'): grp.append(ex.pop(0))
            fb.append((min(gp, 16), grp)); gp += 2
        hoist = RI[i + 1][0][:rho(i + 1)] if i + 1 <= 23 else []
        RP += phase2(pre, mf, RI[i][0][rho(i):], RI[i][1], fb, hoist)
    else:
        seq = list(eh)
        if i >= 0:
            n, q = U[i]
            if n == 0: seq += max_valu(q, Sb[i % 2])
            seq += sm_valu(Sb[i % 2], Pb[i % 2])
        seq += et
        RP += pre + vphase(mf, seq)
    if cfg.stamps >= 2 and i in (-1, 0, 2, 5, 8, 11, 13, 17): RP += stamp()
RP += [valu('v_exp_f32', Sb[0][i], Sb[0][i], trans=True) for i in range(cfg.hv)]
RP += [salu('s_mul_i32', sQH, sNEXT, QH, scc_w=False), salu('s_mul_i32', sT1, sW, 20480, scc_w=False), salu('s_add_u32', sQH, sQH, sT1)]
RP += stamp() + [branch('s_branch', 'L_body2')]
blk['ramp'] = RP if cfg.ramp else []

class CondQ:
    n = 0
    def __init__(self, body, dp):
        self.body = body; self.lab = f"L_q{CondQ.n}"; CondQ.n += 1; self.dp = dp
        self.head = [salu('s_cmp_eq_u32', None, sPASS, sQP if dp == 0 else sQP1), branch('s_cbranch_scc0', self.lab)]
        self.tail = [label(self.lab)]
        self.cost = 8
    def static(self): return self.head + self.body + self.tail
    def dyn(self, flag): return self.head + (self.body if flag == self.dp else []) + self.tail

class CondL:
    def __init__(self, body):
        self.body = body; self.lab = "L_nl"
        self.head = [salu('s_cmp_eq_u32', None, sPASS, 3), branch('s_cbranch_scc1', self.lab)]
        self.tail = [label(self.lab)]
        self.cost = 16
    def static(self): return self.head + self.body + self.tail
    def dyn(self, flag): return self.head + ([] if LASTPASS[0] else self.body) + self.tail
LASTPASS = [False]
BT = cfg.bt
NIT = 16 // BT
def set_m0r(part, r):
    if BT == 4: return set_m0(part, r)
    return salu('s_add_u32', M0, sMa if r < 2 else sMb, (65536 if part == 'V' else 0) + (r & 1) * 16384)
def k_read_r(kb, j, r, sub):
    d = k_read(kb, j, r % BT if BT == 2 else r, sub); d.tag = ('t', r, 'K'); return d

def HO(lp): return {0: cfg.hv, 6: cfg.hv, 4: cfg.hk, 10: cfg.hk}.get(lp, 0)
_smi = {}
def sm_items(k, lp):
    if (k, lp) not in _smi:
        q = lp % 6; Ssrc, P = Sb[q % 2], Pb[q % 2]
        _smi[(k, lp)] = ([(i, valu('v_exp_f32_e64' if cfg.exp64 else 'v_exp_f32', Ssrc[i], Ssrc[i], trans=True)) for i in range(8)],
                         [(i, valu('v_cvt_pk_bf16_f32', P[i], Ssrc[2 * i], Ssrc[2 * i + 1])) for i in range(4)])
    return _smi[(k, lp)]
def body_phase(k, lp):
    sub, q = divmod(lp, 6)
    qn = (q + 1) % 6; qp = (q - 1) % 6
    pre = []; fb = []
    mf = qk_mfmas(qn, Sb[(q + 1) % 2], NEGM[qn]) + pv_mfmas(qp, Pb[(q - 1) % 2])
    fa = sm_valu(Sb[q % 2], Pb[q % 2], X8[q] if cfg.rowsum == 'valu' else None)
    if q == 4:
        slot, s2 = (k, 1) if sub == 0 else ((k + 1) % 4, 0)
        if sub == 1:
            if cfg.bgap: fb.append((0, [waitv(('t', slot, 'V')), barrier()]))
            else: pre += [waitv(('t', slot, 'V')), barrier()]
        kr = [k_read_r(kb, j, slot, s2) for kb in range(2) for j in range(4)]
        if cfg.kpair: fb += [(2 * x + 1, kr[2 * x:2 * x + 2]) for x in range(4)]
        else: fb += [(x, [kr[x]]) for x in range(8)]
    if q == 5: pre += [waitl(*ALLK)]
    if q == 0:
        for gi, m in enumerate(mf):
            if gi >= 8 and pv_db(m) is not None: fb.append((gi, v_reads(pv_db(m), k, sub)))
    if q == 1: fb.append((7, [waitl(*VF)]))
    x3 = (k + 3) % 4
    G = cfg.dgap
    if cfg.dgrp == 1:
        if lp in (1, 2, 3): fb.append((G, [dma_piece('K', x3, lp)]))
        if lp == 5: fb.append((G - 1, [set_m0r('V', x3)])); fb.append((G, [dma_piece('V', x3, 0)]))
        if lp in (7, 8, 9): fb.append((G, [dma_piece('V', x3, lp - 6)]))
    elif cfg.dgrp == 2:
        if lp == 2: fb.append((G, [dma_piece('K', x3, 1), dma_piece('K', x3, 2), dma_piece('K', x3, 3)]))
        if lp == 5: fb.append((G - 1, [set_m0r('V', x3)])); fb.append((G, [dma_piece('V', x3, 0)]))
        if lp == 8: fb.append((G, [dma_piece('V', x3, 1), dma_piece('V', x3, 2), dma_piece('V', x3, 3)]))
    assert BT == 4
    cur_m0 = set_m0r('K', x3) if lp < 5 else set_m0r('V', x3)
    if (k, lp) == (0, 8): fb.append((12, [CondQ(q_load_q(0, cur_m0, early=True), 0)]))
    if (k, lp) == (1, 2): fb.append((12, [CondQ(q_load_q(1, cur_m0, early=True), 0)]))
    if (k, lp) == (1, 9): fb.append((12, [CondQ([waitv(('q', 1))] + q_lds_read([QST[0], QST[1]], 0, early=True), 0)]))
    if (k, lp) == (2, 2): fb.append((12, [CondQ([waitl(*QST[0], *QST[1])] + q_load_q(2, cur_m0), 0)]))
    if (k, lp) == (2, 8): fb.append((12, [CondQ(q_load_q(3, cur_m0), 0)]))
    if (k, lp) == (3, 10): fb.append((12, [CondQ(q_load_q(4), 0)]))
    if BT == 2 and k == 1:
        if lp == 7:
            for j in range(4): fb.append((11 + j, [valu('v_xor_b32', aK[j], 32768, aK[j])]))
        if lp in (8, 9):
            for d in range(4): fb.append((9 + 2 * d if lp == 9 else 9 + d // 2 + 6 * (d // 2), [valu('v_xor_b32', aV[4 * (lp - 8) + d], 32768, aV[4 * (lp - 8) + d])]))
    if lp == 11:
        upd = [salu('s_add_u32', sDOFF, sDOFF, 16384)]
        if k == 0:
            upd += [salu('s_cmp_eq_u32', None, sPASS, 12 // BT), salu('s_cselect_b32', sDOFF, sNB, sDOFF, scc_w=False, scc_r=True)]
        fb.append((0, upd[:2]))
        if len(upd) > 2: fb.append((1, upd[2:]))
        if k == 3:
            fb.append((2, [CondL([set_m0r('K', k), dma_piece('K', k, 0)])]))
            fb.append((12, [CondQ(q_load_q(5), 0)]))
        else: fb.append((max(G - 1, 1), [set_m0r('K', k)])); fb.append((max(G, 2), [dma_piece('K', k, 0)]))
        if BT == 2 and k == 1:
            fb.append((13, [salu('s_xor_b32', sMa, sMa, 32768), salu('s_xor_b32', sMb, sMb, 32768)]))
    if cfg.sched == 1: return phase(pre, mf, fa, fb)
    ex, cv = sm_items(k, lp)
    nk, nlp = (k, lp + 1) if lp < 11 else ((k + 1) % BT, 0)
    return phase2(pre, mf, ex[HO(lp):], cv, fb, sm_items(nk, nlp)[0][:HO(nlp)])

BA = [raw(".p2align 6"), label('L_body0')]
for lp in range(6): BA += body_phase(0, lp)
blk['body_a'] = BA
BB = [label('L_body1')]
for lp in range(6, 12): BB += body_phase(0, lp)
for lp in range(12): BB += body_phase(1, lp)
blk['body_b'] = BB
BB = [label('L_body2')]
blk['body_t'] = [salu('s_cmp_eq_u32', None, sPASS, sTP), branch('s_cbranch_scc1', 'L_tail')] if cfg.tail else []
blk['body_c0'] = BB
BB = []
for k in range(2, BT):
    for lp in range(12): BB += body_phase(k, lp)
BB += stamp() + [salu('s_add_u32', sPASS, sPASS, 1), salu('s_cmp_lt_u32', None, sPASS, NIT), branch('s_cbranch_scc1', 'L_body0')]
blk['body_c'] = BB

TL = [label('L_tail'), salu('s_mul_i32', sOH, sHEAD, QH, scc_w=False) if not cfg.nostore else smov(sOH, OOB)]
T = [(n, q) for n in range(28, 32) for q in range(3)] + [(n, q) for n in range(28, 32) for q in range(3, 6)]
TP = lambda i: (27, 5) if i < 0 else T[i]
loc = lambda n: ((n // 2) % 4, n % 2)
ea = {q: epi_a(q) for q in range(3)}; eb = {q: epi_b(q) for q in range(2)}
def cut(L, n, k): return L[len(L) * k // n: len(L) * (k + 1) // n]
textra = {}
stream = ea[0] + ea[1] + eb[0] + ea[2] + eb[1]
TH0 = cfg.th0
nh = 24 - TH0
for k in range(nh): textra[TH0 + k] = cut(stream, nh, k)
TI = {i: r_items(i) for i in range(24)}
def tvrel(i): return TP(i)[0] != TP(i - 1)[0]
def tho(i):
    if i == 0: return HO(0)
    return 2 if (tvrel(i) and i < TH0) else 0
needK = False; needV = False
for i in range(24):
    pre = []; mf = []; fb = []
    light = i < TH0
    if i == 4: pre += [waitv(('t', 3, 'V')), barrier()]
    if needK: pre += [waitl(*ALLK)]; needK = False
    if i + 1 < 24:
        n1, q1 = T[i + 1]
        qk = qk_mfmas(q1, Sb[(i + 1) % 2], NEGM[q1])
        if i + 2 < 24 and T[i + 2][0] != n1:
            kr = [k_read(kb, j, *loc(T[i + 2][0])) for kb in range(2) for j in range(4)]; needK = True
            if light: fb += [(2 * x + 1, kr[2 * x:2 * x + 2]) for x in range(4)]
            else: qk = [[qk[x], kr[x]] for x in range(8)]
        mf += qk
    n0, q0 = TP(i - 1)
    pvm = pv_mfmas(q0, Pb[(i - 1) % 2])
    rel = tvrel(i)
    if light:
        if needV: fb.append((6, [waitl(*VF)])); needV = False
        if rel: fb += [(8 + x, v_reads(pv_db(m), *loc(T[i][0]))) for x, m in enumerate(pvm) if pv_db(m) is not None]
        pl = pvm
    else:
        pl = [([m] + v_reads(pv_db(m), *loc(T[i][0]))) if (rel and pv_db(m) is not None) else [m] for m in pvm]
        if needV: pl[0] = [waitl(*VF)] + pl[0]; needV = False
    if rel: needV = True
    mf += pl
    if light:
        hoist = TI[i + 1][0][:tho(i + 1)]
        TL += phase2(pre, mf, TI[i][0][tho(i):], TI[i][1], fb, hoist)
    else:
        TL += pre + vphase(mf, sm_valu(Sb[i % 2], Pb[i % 2]) + textra[i])
TL += pv_mfmas(5, Pb[1]) + stamp() + [smov(sFIN, 1), branch('s_branch', 'L_epi2')]
blk['tail'] = TL if cfg.tail else []

D1 = [salu('s_mul_i32', sOH, sHEAD, QH, scc_w=False) if not cfg.nostore else smov(sOH, OOB), salu('s_cmp_ge_u32', None, sNEXT, 512), branch('s_cbranch_scc1', 'L_drain')]
blk['bnd_chk'] = D1
N = [smov(sHEAD, sNEXT), smov(sNEXT, '0xffff'), smov(sNB, OOB), smov(sBITN, 2), smov(sQP, 99), smov(sQP1, 99), smov(sTP, 3)] + minit_reset() + [branch('s_branch', 'L_fuse')]
blk['bnd_next'] = N
D = [label('L_drain')] + pv_mfmas(5, Pb[1]) + [smov(sFIN, 1), branch('s_branch', 'L_epi0')]
blk['drain'] = D

F = [label('L_end')] + stamp() + [smov(sFIN, 0)]
F += [valu('v_mov_b32', tA, sFLAGS), valu('v_mov_b32', tB, sM0Q), valu('v_mov_b32', tC, LDS_RING),
      ds_write('ds_write_b32', tB, tA, 0), raw("  s_waitcnt lgkmcnt(0)"), barrier()] + [
      ds_read('ds_read_b32', Y8[i], tC, i * 8192) for i in range(4)] + [raw("  s_waitcnt lgkmcnt(0)"),
      valu('v_or_b32', tA, Y8[0], Y8[1]), valu('v_or3_b32', tA, tA, Y8[2], Y8[3]),
      Inst(f"v_readfirstlane_b32 {sFLAGS}, {tA}", 'valu', regs_of(tA), regs_of(sFLAGS)),
      ] + stamp() + stamp_dump() + [salu('s_cmp_eq_u32', None, sFLAGS, 0), branch('s_cbranch_scc1', 'L_exit')]
blk['end'] = F
M = [label('L_max_pre'), raw('  s_waitcnt vmcnt(0)'), barrier()]
M += [salu('s_and_b32', sT0, sFLAGS, 1), salu('s_lshl_b32', sHEAD, sWG, 1), salu('s_add_u32', sT1, sHEAD, 1), salu('s_cmp_lg_u32', None, sT0, 0),
      salu('s_cselect_b32', sHEAD, sHEAD, sT1, scc_w=False, scc_r=True),
      salu('s_cselect_b32', sT0, 1, 2, scc_w=False, scc_r=True), salu('s_andn2_b32', sFLAGS, sFLAGS, sT0),
      smov(sMODE, 1), smov(sBIT, 0), smov(sNEXT, '0xffff')]
M += [salu('s_mul_i32', sQO, sHEAD, QH, scc_w=False)]
for q in range(6):
    M += [buf_load('buffer_load_dwordx4', Qf[q][j], vQo, srdQ, sQO, j * 64, tag=('mq',)) for j in range(4)]
    M += [salu('s_add_u32', sQO, sQO, 4096)]
M += [waitv(('mq',))]
for q in range(6): M += q_scale_q(q)
M += minit_reset()
M += [valu('v_mbcnt_lo_u32_b32', tC, -1, 0), valu('v_mbcnt_hi_u32_b32', tC, -1, tC),
      valu('v_and_b32', tA, 15, tC), valu('v_lshrrev_b32', tB, 4, tC), valu('v_lshlrev_b32', tA, 8, tA),
      valu('v_lshl_add_u32', vX, tB, 4, tA)]
M += [salu('s_mul_i32', sT1, sHEAD, KH, scc_w=False), smov(sIT, 0)]
blk['max_pre'] = M
ML = [label('L_maxloop')]
ML += [buf_load('buffer_load_dwordx4', KF[0][j], vX, srdK, sT1, j * 64, tag=('mk',)) for j in range(4)]
ML += [waitv(('mk',))]
MS = [Sb[0][0:4], Sb[0][4:8], Sb[1][0:4], Sb[1][4:8], X8[0:4], X8[4:8]]
for q in range(6):
    for j in range(4): ML.append(mfma16(MS[q], KF[0][j], Qf[q][j], 0 if j == 0 else MS[q]))
for q in range(6):
    m = NEGM[q][3]
    ML += [valu('v_max3_f32', m, MS[q][0], MS[q][1], m), valu('v_max3_f32', m, MS[q][2], MS[q][3], m)]
ML += [salu('s_add_u32', sT1, sT1, 4096), salu('s_add_u32', sIT, sIT, 1), salu('s_cmp_lt_u32', None, sIT, 64),
       branch('s_cbranch_scc1', 'L_maxloop')]
blk['max_loop'] = ML
blk['max_post'] = stream_head() + [branch('s_branch', 'L_stream')]
blk['exit'] = [label('L_exit'), raw("  s_endpgm")]

def head_trace(first, has_next):
    rp = first and cfg.ramp
    t = list(blk['ramp']) if rp else flat_dyn(blk['fuse'], first)
    for p in range(NIT):
        qf = (p - 12 // BT) if (has_next and p >= 12 // BT) else None
        LASTPASS[0] = (p == NIT - 1)
        b = flat_dyn((blk['body_a'] if p else []) + ([] if (rp and p == 0) else blk['body_b']) + blk['body_c0'] + blk['body_t'], qf)
        if cfg.tail and not has_next and p == NIT - 1:
            return t + b + blk['tail'] + [i for e in EPIS[2:] for i in e.fin()] + blk['end']
        t += b + flat_dyn(blk['body_c'], qf)
    t += blk['bnd_chk'] + (blk['bnd_next'] if has_next else blk['drain'] + [i for e in EPIS for i in e.fin()] + blk['end'])
    return t
trace = blk['entry0'] + blk['entry1'] + blk['entry'] + blk['stream'] + head_trace(True, True) + head_trace(False, False)
for _ in range(2):
    trace += blk['max_pre'] + blk['max_loop'] * 3 + blk['max_post'] + blk['stream'] + head_trace(True, False)
trace += blk['exit']
for b in blk: blk[b] = flat_static(blk[b])

written = {('s', 0), ('s', 1), ('s', 2), ('v', 0)}
for i in trace:
    for r in i.rd:
        if r not in written and (r[0] in 'sx' or i.kind in ('ds_read', 'dma', 'vmem_load')):
            print("UNINIT read", r, "in", i.render().strip()); written.add(r)
    written.update(i.wr)
resolve_waits(trace)
for it in range(10):
    n = check_trace(trace, fix=True, verbose=False)
    if n == 0: break
    if n >= 1000: sys.exit("pending-load errors")
assert check_trace(trace, fix=False) == 0
assert check_lds_protocol(trace)

order = ['entry0', 'entry1', 'entry', 'stream', 'ramp', 'fuse', 'body_a', 'body_b', 'body_c0', 'body_t', 'body_c', 'bnd_chk', 'bnd_next', 'drain', 'tail', 'end',
         'max_pre', 'max_loop', 'max_post', 'exit']
NAME = "standalone__mha_softmax__near_ridge_kernel"
out = f"""; MHA forward (B16 H32 Sq384 Sk1024 D128, bf16) - generated by gen/gen.py (hand-written generator)
; @launch grid=({NWG},1,1) block=(256,1,1) lds={LDS_TOTAL}
.amdgcn_target "amdgcn-amd-amdhsa--gfx950"
.text
.globl {NAME}
.p2align 8
.type {NAME},@function
{NAME}:
"""
for b in order:
    out += f"; ---- {b}\n"
    for i in blk[b]: out += i.render()
out += f""".section .rodata,"a"
.p2align 6
.amdhsa_kernel {NAME}
  .amdhsa_next_free_vgpr 512
  .amdhsa_next_free_sgpr 80
  .amdhsa_accum_offset 256
  .amdhsa_group_segment_fixed_size 0
  .amdhsa_kernarg_size 48
  .amdhsa_user_sgpr_count 2
  .amdhsa_user_sgpr_kernarg_segment_ptr 1
  .amdhsa_system_sgpr_workgroup_id_x 1
.end_amdhsa_kernel
"""
open(sys.argv[1], 'w').write(out)
nn = sum(i.pre_nop for b in ('body_a', 'body_b', 'body_c') for i in blk[b])
print("emitted", sys.argv[1], "insts:", {b: len(blk[b]) for b in order}, "body nops:", nn)
```
